```python
import torch

def _softmax(x, axis=-1):
    return torch.softmax(x, dim=axis)
def _gelu(x):
    return torch.nn.functional.gelu(x, approximate="tanh")
def _silu(x):
    return torch.nn.functional.silu(x)
def _sigmoid(x):
    return torch.sigmoid(x)
def _layernorm(x, axis=-1, eps=1e-5):
    m = x.mean(dim=axis, keepdim=True)
    v = x.var(dim=axis, keepdim=True, unbiased=False)
    return (x - m) / torch.sqrt(v + eps)
def _scatter_add(tgt, idx, src, axis=0):
    return tgt.clone().index_add_(axis, idx, src)
def _segment_sum(src, seg, n):
    out = torch.zeros((n,) + src.shape[1:], dtype=src.dtype)
    return out.index_add_(0, seg, src)
def _pad(x, pw):
    flat = tuple(v for pair in reversed(pw) for v in pair)
    return torch.nn.functional.pad(x, flat)

kernel_name = 'gated_mix__ssm_conv_h3__dense_activation_relu__prompt'

def setup_inputs():

    _w = (lambda a: (lambda t: t.to(torch.bfloat16) if t.is_floating_point() else t)(torch.as_tensor(a)))
    def _A_setup():
        B, S, D = 1, 2048, 512
        ks = 4
        return {
            "q": _w((lambda *s: torch.randn(*s, dtype=torch.bfloat16) * 0.05)(B, S, D)),
            "k": _w((lambda *s: torch.randn(*s, dtype=torch.bfloat16) * 0.8)(B, S, D)),
            "v": _w((lambda *s: torch.randn(*s, dtype=torch.bfloat16) * 0.8)(B, S, D)),
            "shift_k": _w((lambda *s: torch.randn(*s, dtype=torch.bfloat16) * 0.8)(D, ks) * 0.5),
            "ssm_k": _w((lambda *s: torch.randn(*s, dtype=torch.bfloat16) * 0.8)(D, S) * (1.0 / S ** 0.5)),
            "ssm_D": _w((lambda *s: torch.randn(*s, dtype=torch.bfloat16) * 0.8)(D)),
        }
    _A_in = _A_setup()

    def _B_setup():
        B, S, D, Dff = 1, 2048, 512, 1792
        return {
            "x": _w((lambda *s: torch.randn(*s, dtype=torch.bfloat16) * 0.05)(B, S, D)),
            "w1": _w((lambda *s: torch.randn(*s, dtype=torch.bfloat16) * 0.05)(D, Dff)),
            "w2": _w((lambda *s: torch.randn(*s, dtype=torch.bfloat16) * 0.05)(Dff, D)),
        }
    _B_in = _B_setup()

    return {
        "A_q": _A_in["q"],
        "A_k": _A_in["k"],
        "A_v": _A_in["v"],
        "A_shift_k": _A_in["shift_k"],
        "A_ssm_k": _A_in["ssm_k"],
        "A_ssm_D": _A_in["ssm_D"],
        "B_x": _B_in["x"],
        "B_w1": _B_in["w1"],
        "B_w2": _B_in["w2"],
        "gate_w": _w((lambda *s: torch.randn(*s, dtype=torch.bfloat16) * 0.05)(512) * 16.0),
    }

def reference(A_q, A_k, A_v, A_shift_k, A_ssm_k, A_ssm_D, B_x, B_w1, B_w2, gate_w):
    def _A_ref(q, k, v, shift_k, ssm_k, ssm_D):
        B, S, D = q.shape
        ks = shift_k.shape[-1]
        k_pad = _pad(k, ((0, 0), (ks - 1, 0), (0, 0)))
        k_shift = torch.zeros_like(k)
        for t in range(ks):
            k_shift = k_shift + k_pad[:, t:t + S, :] * shift_k[:, ks - 1 - t][None, None, :]
        kv = k_shift * v
        L = 2 * S
        kv_pad = _pad(kv, ((0, 0), (0, S), (0, 0)))
        kf_pad = _pad(ssm_k, ((0, 0), (0, S)))
        kv_f = (lambda x, axes=(-2,-1): torch.fft.rfft2(x.float(), dim=axes))(kv_pad[:, None, :, :], axes=(1, 2))
        kf_f = (lambda x, axes=(-2,-1): torch.fft.rfft2(x.float(), dim=axes))(kf_pad[:, None, :], axes=(1, 2))
        kf_f = (lambda x, *d: x.permute(*d))(kf_f, 1, 2, 0)
        y_f = kv_f * kf_f[None, :, :, :]
        y = (lambda x, s, axes=(-2,-1): torch.fft.irfft2(x, s=s, dim=axes).to(torch.bfloat16))(y_f, (1, L), axes=(1, 2))[:, 0, :S, :]
        y = y + kv * ssm_D[None, None, :]
        return q * y

    def _B_ref(x, w1, w2):
        h = torch.einsum("bsd,df->bsf", x, w1)
        zero = torch.zeros_like(h)
        h = torch.maximum(h, zero)
        return torch.einsum("bsf,fd->bsd", h, w2)

    x = A_q
    g = _sigmoid((x * gate_w).sum(-1, keepdims=True))
    a = _A_ref(x, A_k, A_v, A_shift_k, A_ssm_k, A_ssm_D)
    b = _B_ref(x, B_w1, B_w2)
    return g * a + (1 - g) * b
```

```python
import sys

KN = "gated_mix__ssm_conv_h3__dense_activation_relu__prompt"
WS_H = 0
WS_H_SIZE = 64*112*1024
WS_U = 0x800000
WS_G = 0xA00000
WS_Z = 0xB00000

class E:
    def __init__(self): self.l = []
    def __call__(self, s): self.l.append("    " + s)
    def lab(self, s): self.l.append(s + ":")
    def c(self, s): self.l.append("    ; " + s)
    def text(self): return "\n".join(self.l) + "\n"

def srd(e, sd, sp, size, off=0):
    if off:
        e(f"s_add_u32 s{sd}, s{sp}, {off:#x}")
        e(f"s_addc_u32 s{sd+1}, s{sp+1}, 0")
    else:
        e(f"s_mov_b32 s{sd}, s{sp}")
        e(f"s_mov_b32 s{sd+1}, s{sp+1}")
    e(f"s_mov_b32 s{sd+2}, {size:#x}")
    e(f"s_mov_b32 s{sd+3}, 0x00020000")

PB = 128
def prep_setup(e):
    P = PB
    e("s_lshr_b32 s60, s2, 3")
    e("s_and_b32 s61, s2, 7")
    srd(e, 64, 6, 2048*1024)
    srd(e, 68, 8, 2048*1024)
    srd(e, 72, 10, 512*8)
    srd(e, 76, 18, 512*4096, WS_U)
    srd(e, 80, 4, 2048*1024)
    srd(e, 84, 16, 1024)
    srd(e, 88, 18, 8192, WS_G)
    e(f"v_and_b32 v{P+1}, 31, v0")
    e(f"v_lshrrev_b32 v{P+2}, 5, v0")
    e("s_lshl_b32 s62, s20, 1")
    e(f"v_add_u32 v{P+2}, s62, v{P+2}")
    e("s_lshl_b32 s62, s60, 6")
    e(f"v_lshl_add_u32 v{P+3}, v{P+2}, 3, s62")
    e(f"v_lshlrev_b32 v{P+4}, 10, v{P+3}")
    e("s_lshl_b32 s63, s61, 7")
    e(f"v_lshl_add_u32 v{P+5}, v{P+1}, 2, s63")
    e(f"v_add_u32 v{P+4}, v{P+4}, v{P+5}")
    for i in range(11):
        e(f"v_add_u32 v{P+6}, {(i-3)*1024 & 0xffffffff:#x}, v{P+4}")
        e(f"buffer_load_dword v{P+16+i}, v{P+6}, s[64:67], 0 offen")
    for i in range(8):
        if i < 4:
            e(f"buffer_load_dword v{P+32+i}, v{P+4}, s[68:71], 0 offen offset:{i*1024}")
        else:
            if i == 4: e(f"v_add_u32 v{P+6}, 4096, v{P+4}")
            e(f"buffer_load_dword v{P+32+i}, v{P+6}, s[68:71], 0 offen offset:{(i-4)*1024}")
    e(f"v_lshlrev_b32 v{P+6}, 2, v{P+5}")
    e(f"buffer_load_dwordx4 v[{P+40}:{P+43}], v{P+6}, s[72:75], 0 offen")
    e("s_lshl_b32 s92, s2, 3")
    e("s_lshl_b32 s93, s20, 1")
    e("s_add_u32 s92, s92, s93")
    e("s_lshl_b32 s93, s92, 10")
    e(f"v_lshlrev_b32 v{P+7}, 4, v0")
    e(f"buffer_load_dwordx4 v[{P+44}:{P+47}], v{P+7}, s[80:83], s93 offen")
    e(f"buffer_load_dwordx4 v[{P+48}:{P+51}], v{P+7}, s[80:83], s93 offen offset:1024")
    e(f"buffer_load_dwordx4 v[{P+52}:{P+55}], v{P+7}, s[84:87], 0 offen")
    e("s_mov_b32 s94, 0xffff0000")
    e("s_mov_b32 s95, 0x05040100")
    e("s_mov_b32 s96, 0x07060302")
    e(f"v_lshlrev_b32 v{P+8}, 1, v{P+1}")
    e("s_lshl_b32 s93, s61, 6")
    e(f"v_add_u32 v{P+8}, s93, v{P+8}")
    e(f"v_lshlrev_b32 v{P+8}, 12, v{P+8}")
    e(f"v_sub_u32 v{P+9}, 2040, v{P+3}")
    e(f"v_lshl_add_u32 v{P+8}, v{P+9}, 1, v{P+8}")
    e(f"v_add_u32 v{P+9}, 4096, v{P+8}")
NPREP_LOADS = 11 + 8 + 1 + 3

def prep_compute():
    P = PB
    L = []
    e = L.append
    for j in range(4):
        for ch in range(2):
            src = P + 40 + 2*ch + (j >> 1)
            if j & 1: e(f"v_and_b32 v{P+56+2*j+ch}, s94, v{src}")
            else:     e(f"v_lshlrev_b32 v{P+56+2*j+ch}, 16, v{src}")
    for i in range(11):
        e(f"v_lshlrev_b32 v{P+64+2*i}, 16, v{P+16+i}")
        e(f"v_and_b32 v{P+65+2*i}, s94, v{P+16+i}")
    def rb(dst, src, tmp):
        e(f"v_cvt_pk_bf16_f32 v{tmp}, v{src}, v{src+1}")
        e(f"v_lshlrev_b32 v{dst}, 16, v{tmp}")
        e(f"v_and_b32 v{dst+1}, s94, v{tmp}")
    for r in range(8):
        S, Q, T = P+88, P+90, P+92
        e(f"v_pk_mul_f32 v[{S}:{S+1}], v[{P+64+2*r}:{P+65+2*r}], v[{P+62}:{P+63}]")
        rb(S, S, T)
        for j in (2, 1, 0):
            e(f"v_pk_mul_f32 v[{Q}:{Q+1}], v[{P+64+2*(r+3-j)}:{P+65+2*(r+3-j)}], v[{P+56+2*j}:{P+57+2*j}]")
            rb(Q, Q, T)
            e(f"v_pk_add_f32 v[{S}:{S+1}], v[{S}:{S+1}], v[{Q}:{Q+1}]")
            rb(S, S, T)
        e(f"v_lshlrev_b32 v{Q}, 16, v{P+32+r}")
        e(f"v_and_b32 v{Q+1}, s94, v{P+32+r}")
        e(f"v_pk_mul_f32 v[{S}:{S+1}], v[{S}:{S+1}], v[{Q}:{Q+1}]")
        e(f"v_cvt_pk_bf16_f32 v{P+96+r}, v{S}, v{S+1}")
    for m in range(4):
        e(f"v_perm_b32 v{P+104+m}, v{P+96+6-2*m}, v{P+96+7-2*m}, s95")
        e(f"v_perm_b32 v{P+108+m}, v{P+96+6-2*m}, v{P+96+7-2*m}, s96")
    e(f"buffer_store_dwordx4 v[{P+104}:{P+107}], v{P+8}, s[76:79], 0 offen")
    e(f"buffer_store_dwordx4 v[{P+108}:{P+111}], v{P+9}, s[76:79], 0 offen")
    return L

def prep_gate(e):
    P = PB
    def rb(dst, src, tmp):
        e(f"v_cvt_pk_bf16_f32 v{tmp}, v{src}, v{src+1}")
        e(f"v_lshlrev_b32 v{dst}, 16, v{tmp}")
        e(f"v_and_b32 v{dst+1}, s94, v{tmp}")
    G = P + 112
    A = P + 120
    X = P + 122; T = P + 124
    for i in range(4):
        e(f"v_lshlrev_b32 v{G+2*i}, 16, v{P+52+i}")
        e(f"v_and_b32 v{G+1+2*i}, s94, v{P+52+i}")
    for row in range(2):
        q = P + 44 + 4*row
        for i in range(4):
            e(f"v_lshlrev_b32 v{X}, 16, v{q+i}")
            e(f"v_and_b32 v{X+1}, s94, v{q+i}")
            e(f"v_pk_mul_f32 v[{X}:{X+1}], v[{X}:{X+1}], v[{G+2*i}:{G+1+2*i}]")
            rb(X, X, T)
            if i == 0: e(f"v_add_f32 v{A+row}, v{X}, v{X+1}")
            else:
                e(f"v_add_f32 v{A+row}, v{A+row}, v{X}")
                e(f"v_add_f32 v{A+row}, v{A+row}, v{X+1}")
    for sh in ("row_shr:1", "row_shr:2", "row_shr:4", "row_shr:8"):
        e("s_nop 1")
        for row in range(2):
            e(f"v_add_f32_dpp v{A+row}, v{A+row}, v{A+row} {sh} bound_ctrl:0")
    e("s_nop 1")
    for row in range(2):
        e(f"v_add_f32_dpp v{A+row}, v{A+row}, v{A+row} row_bcast:15 row_mask:0xa")
    e("s_nop 1")
    for row in range(2):
        e(f"v_add_f32_dpp v{A+row}, v{A+row}, v{A+row} row_bcast:31 row_mask:0xc")
    e("s_nop 1")
    e(f"v_readlane_b32 s98, v{A}, 63")
    e(f"v_readlane_b32 s99, v{A+1}, 63")
    e("s_nop 3")
    e(f"v_mov_b32 v{A}, s98")
    e(f"v_mov_b32 v{A+1}, s99")
    rb(A, A, T)
    e(f"v_mul_f32 v{A}, 0xbfb8aa3b, v{A}")
    e(f"v_mul_f32 v{A+1}, 0xbfb8aa3b, v{A+1}")
    e(f"v_exp_f32 v{A}, v{A}")
    e(f"v_exp_f32 v{A+1}, v{A+1}")
    e("s_nop 0")
    e(f"v_add_f32 v{A}, 1.0, v{A}")
    e(f"v_add_f32 v{A+1}, 1.0, v{A+1}")
    e(f"v_rcp_f32 v{A}, v{A}")
    e(f"v_rcp_f32 v{A+1}, v{A+1}")
    e("s_nop 0")
    rb(A, A, T)
    e("s_lshl_b32 s93, s92, 2")
    e(f"v_mov_b32 v{X}, s93")
    e("v_cmp_eq_u32 vcc, 0, v0")
    e("s_and_saveexec_b64 s[98:99], vcc")
    e(f"buffer_store_dwordx2 v[{A}:{A+1}], v{X}, s[88:91], 0 offen")
    e("s_mov_b64 exec, s[98:99]")

def gen_k1(e):
    NST = 4
    e.lab("k1_kernel")
    e("s_cmp_ge_u32 s2, 256")
    e("s_cbranch_scc1 K1_END")
    e("s_load_dwordx4 s[4:7], s[0:1], 0")
    e("s_load_dwordx4 s[8:11], s[0:1], 16")
    e("s_load_dwordx4 s[12:15], s[0:1], 48")
    e("s_load_dwordx2 s[16:17], s[0:1], 72")
    e("s_load_dwordx2 s[18:19], s[0:1], 96")
    e("v_lshrrev_b32 v1, 6, v0")
    e("v_and_b32 v0, 63, v0")
    e("s_nop 0")
    e("v_readfirstlane_b32 s20, v1")
    e("s_cmp_ge_u32 s2, 224")
    e("s_cbranch_scc1 K1_PREP")
    e("s_and_b32 s21, s2, 7")
    e("s_lshr_b32 s22, s2, 3")
    e("s_mul_i32 s23, s22, 37")
    e("s_lshr_b32 s23, s23, 8")
    e("s_mul_i32 s24, s23, 7")
    e("s_sub_u32 s24, s22, s24")
    e("s_lshr_b32 s25, s21, 1")
    e("s_lshl_b32 s25, s25, 2")
    e("s_add_u32 s25, s25, s23")
    e("s_and_b32 s26, s21, 1")
    e("s_mul_i32 s26, s26, 7")
    e("s_add_u32 s26, s26, s24")
    e("s_waitcnt lgkmcnt(0)")
    srd(e, 28, 4, 2048*1024)
    srd(e, 32, 14, 512*3584)
    srd(e, 36, 18, WS_H_SIZE, WS_H)
    e("v_lshrrev_b32 v2, 3, v0")
    e("s_lshl_b32 s27, s25, 7")
    e("s_lshl_b32 s40, s20, 5")
    e("s_add_u32 s27, s27, s40")
    e("v_add_u32 v2, s27, v2")
    e("v_lshlrev_b32 v2, 10, v2")
    e("v_and_b32 v3, 7, v0")
    e("v_lshrrev_b32 v4, 4, v0")
    e("v_xor_b32 v3, v3, v4")
    e("v_lshl_add_u32 v2, v3, 4, v2")
    e("v_xor_b32 v3, 64, v2")
    e("s_lshl_b32 s40, s20, 4")
    e("v_add_u32 v5, s40, v4")
    e("s_movk_i32 s41, 3584")
    e("v_mul_lo_u32 v5, v5, s41")
    e("v_and_b32 v6, 15, v0")
    e("v_lshlrev_b32 v7, 2, v4")
    e("v_xor_b32 v6, v6, v7")
    e("v_lshl_add_u32 v5, v6, 4, v5")
    e("s_lshl_b32 s40, s26, 8")
    e("v_add_u32 v5, s40, v5")
    e("s_lshl_b32 s42, s20, 12")
    def issue_chunk(c):
        st = c % NST
        for j in range(4):
            e(f"s_add_u32 m0, s42, {st*32768 + j*1024}")
            e(f"s_mov_b32 s43, {j*8192 + c*128}")
            e(f"buffer_load_dwordx4 v{2 + (j&1)}, s[28:31], s43 offen lds")
        for j in range(4):
            e(f"s_add_u32 m0, s42, {st*32768 + 16384 + j*1024}")
            e(f"s_mov_b32 s43, {(64*c + 4*j)*3584}")
            e(f"buffer_load_dwordx4 v5, s[32:35], s43 offen lds")
    issue_chunk(0)
    prep_setup(e)
    for c in range(1, NST):
        issue_chunk(c)
    e("s_and_b32 s44, s20, 1")
    e("s_lshr_b32 s45, s20, 1")
    e("v_and_b32 v6, 31, v0")
    e("v_lshrrev_b32 v7, 5, v0")
    e("v_bfe_u32 v8, v0, 1, 3")
    e("v_xor_b32 v8, v8, v7")
    e("v_lshlrev_b32 v8, 4, v8")
    e("v_lshl_add_u32 v8, v6, 7, v8")
    e("s_lshl_b32 s46, s44, 13")
    e("v_add_u32 v8, s46, v8")
    for k in range(4):
        e(f"v_xor_b32 v{10+k}, {32*k}, v8")
        e(f"v_add_u32 v{14+k}, 0x10000, v{10+k}")
    e("v_bfe_u32 v6, v0, 2, 2")
    e("v_lshrrev_b32 v7, 5, v0")
    e("v_lshl_add_u32 v7, v7, 3, v6")
    e("v_lshlrev_b32 v7, 8, v7")
    e("v_bfe_u32 v9, v0, 4, 1")
    e("v_lshl_add_u32 v7, v9, 5, v7")
    e("v_and_b32 v9, 3, v0")
    e("v_lshl_add_u32 v7, v9, 3, v7")
    e("v_add_u32 v7, 16384, v7")
    e("s_lshl_b32 s46, s45, 1")
    e("v_xor_b32 v9, s46, v6")
    e("v_lshl_add_u32 v18, v9, 6, v7")
    e("v_xor_b32 v19, 64, v18")
    e("v_add_u32 v20, 0x10000, v18")
    e("v_add_u32 v21, 0x10000, v19")
    ACC = 64
    for i in range(64):
        e(f"v_mov_b32 v{ACC+i}, 0")
    FR = [32, 48]
    filler = prep_compute()
    fpos = [0]
    def fill(n):
        for _ in range(n):
            if fpos[0] < len(filler):
                e(filler[fpos[0]]); fpos[0] += 1
    def read_frags(c, k, s):
        st = c % NST
        hi = st >= 2
        so = (st & 1) * 32768
        b = FR[s]
        for fi in range(2):
            a = (20 if hi else 18) + fi
            for h in range(2):
                e(f"ds_read_b64_tr_b16 v[{b+4*fi+2*h}:{b+4*fi+2*h+1}], v{a} offset:{so + k*4096 + h*1024}")
        for tj in range(2):
            a = (14 if hi else 10) + k
            e(f"ds_read_b128 v[{b+8+4*tj}:{b+8+4*tj+3}], v{a} offset:{so + tj*4096}")
    def mfmas(s, nf):
        b = FR[s]
        for fi in range(2):
            for tj in range(2):
                d = ACC + 16*(2*fi+tj)
                e(f"v_mfma_f32_32x32x16_bf16 v[{d}:{d+15}], v[{b+4*fi}:{b+4*fi+3}], v[{b+8+4*tj}:{b+8+4*tj+3}], v[{d}:{d+15}]")
                fill(nf)
    NC = 8
    e(f"s_waitcnt vmcnt({8*(NST-1)})")
    e("s_barrier")
    read_frags(0, 0, 0)
    prep_gate(e)
    nstores = 1
    for c in range(NC):
        for k in range(4):
            s = k & 1
            nf = 3 if c < 7 else 0
            if k < 3:
                read_frags(c, k+1, s ^ 1)
                e("s_waitcnt lgkmcnt(6)")
                mfmas(s, nf)
            else:
                if c + 1 < NC:
                    rem = min(NC-1, c+NST-1) - (c+1)
                    e(f"s_waitcnt vmcnt({8*rem}) lgkmcnt(0)")
                    e("s_barrier")
                    if c + NST < NC:
                        issue_chunk(c + NST)
                    read_frags(c+1, 0, s ^ 1)
                else:
                    e("s_waitcnt lgkmcnt(0)")
                mfmas(s, nf)
    fill(10000)
    e("s_nop 15")
    e("s_lshl_b32 s46, s25, 2")
    e("s_lshl_b32 s47, s44, 1")
    e("s_add_u32 s46, s46, s47")
    e("s_mul_i32 s46, s46, 112")
    e("s_lshl_b32 s47, s26, 3")
    e("s_add_u32 s46, s46, s47")
    e("s_lshl_b32 s47, s45, 2")
    e("s_add_u32 s46, s46, s47")
    e("s_lshl_b32 s46, s46, 10")
    e("v_lshlrev_b32 v2, 4, v0")
    e("v_add_u32 v2, s46, v2")
    e("v_add_u32 v3, 112*1024, v2")
    for fi in range(2):
        for tj in range(2):
            d = ACC + 16*(2*fi+tj)
            for kq in range(2):
                p = 32 + 4*((2*tj+kq) & 3)
                for x in range(4):
                    i0 = d + 8*kq + 2*x
                    e(f"v_max_f32 v{i0}, 0, v{i0}")
                    e(f"v_max_f32 v{i0+1}, 0, v{i0+1}")
                for x in range(4):
                    i0 = d + 8*kq + 2*x
                    e(f"v_cvt_pk_bf16_f32 v{p+x}, v{i0}, v{i0+1}")
                e("s_nop 1")
                e(f"v_permlane32_swap_b32 v{p}, v{p+2}")
                e(f"v_permlane32_swap_b32 v{p+1}, v{p+3}")
                e(f"buffer_store_dwordx4 v[{p}:{p+3}], v{2+tj}, s[36:39], 0 offen offset:{(2*fi+kq)*1024}")
    e("s_endpgm")
    e.lab("K1_PREP")
    e("s_waitcnt lgkmcnt(0)")
    prep_setup(e)
    e("s_waitcnt vmcnt(0)")
    for ins in prep_compute(): e(ins)
    prep_gate(e)
    e.lab("K1_END")
    e("s_endpgm")

def gen_conv(e):
    CH = 29440
    KC, UR, RED = 0, 16640, 21248
    e("s_lshr_b32 s24, s20, 1")
    e("s_and_b32 s25, s20, 1")
    e("s_lshl_b32 s26, s2, 1")
    e("s_add_u32 s26, s26, s24")
    e("s_lshl_b32 s27, s26, 12")
    e("s_mul_i32 s28, s24, %d" % CH)
    e("s_add_u32 s32, s4, s27"); e("s_addc_u32 s33, s5, 0"); e("s_mov_b32 s34, 4096"); e("s_mov_b32 s35, 0x00020000")
    srd(e, 36, 18, 512*4096, WS_U)
    srd(e, 40, 18, 512*4096, WS_Z)
    srd(e, 44, 6, 1024)
    srd(e, 48, 22, 256)
    e("v_lshlrev_b32 v1, 4, v0")
    e("s_lshl_b32 s29, s25, 11")
    e("s_add_u32 s30, s27, s29")
    e("s_add_u32 s31, s28, s29")
    e(f"s_add_u32 m0, s31, {UR}")
    e("s_nop 0")
    e("buffer_load_dwordx4 v1, s[36:39], s30 offen lds")
    e("buffer_load_dwordx4 v1, s[36:39], s30 offen offset:1024 lds")
    e("s_lshl_b32 s29, s26, 1")
    e("v_mov_b32 v2, s29")
    e("buffer_load_ushort v3, v2, s[44:47], 0 offen")
    e("s_lshl_b32 s29, s25, 10")
    e("v_add_u32 v4, s29, v1")
    for n in range(3):
        e(f"v_add_u32 v5, {(2048*n - 32) & 0xffffffff:#x}, v4")
        e(f"v_add_u32 v6, {(2048*n - 16) & 0xffffffff:#x}, v4")
        e(f"buffer_load_dwordx4 v[{16+8*n}:{19+8*n}], v5, s[32:35], 0 offen")
        e(f"buffer_load_dwordx4 v[{20+8*n}:{23+8*n}], v6, s[32:35], 0 offen")
    for i in range(4): e(f"v_mov_b32 v{8+i}, 0")
    e(f"v_add_u32 v7, s28, v1")
    e("v_cmp_gt_u32 vcc, 32, v0")
    e("s_and_saveexec_b64 s[52:53], vcc")
    e(f"ds_write_b128 v7, v[8:11] offset:{UR+4096}")
    e("s_mov_b64 exec, s[52:53]")
    e("v_add_u32 v7, s29, v7")
    for n in range(3):
        b = 16 + 8*n
        e(f"s_waitcnt vmcnt({4-2*n})")
        if n == 2:
            e("v_lshlrev_b32 v12, 6, v0")
            e("s_lshl_b32 s54, s25, 6")
            e("v_add_u32 v12, s54, v0")
            e("v_cmp_gt_u32 vcc, 4, v12")
            e("s_and_saveexec_b64 s[52:53], vcc")
            e("s_cbranch_execz CV_SKIPK")
        for i in range(5):
            e(f"v_alignbit_b32 v{48+i}, v{b+i+1}, v{b+i}, 16")
        for i in range(4):
            e(f"v_mov_b32 v{56+i}, v{49+i}")
            e(f"v_mov_b32 v{60+i}, v{b+1+i}")
        o = 2048*n
        e(f"ds_write_b128 v7, v[48:51] offset:{KC + 0*4160 + o}")
        e(f"ds_write_b128 v7, v[60:63] offset:{KC + 1*4160 + o}")
        e(f"ds_write_b128 v7, v[56:59] offset:{KC + 2*4160 + o}")
        e(f"ds_write_b128 v7, v[{b+2}:{b+5}] offset:{KC + 3*4160 + o}")
        if n == 2:
            e.lab("CV_SKIPK")
            e("s_mov_b64 exec, s[52:53]")
    e("v_and_b32 v4, 15, v0")
    e("v_lshrrev_b32 v5, 4, v0")
    e("v_and_b32 v6, 3, v0")
    e("s_movk_i32 s54, 4160")
    e("v_mul_lo_u32 v6, v6, s54")
    e("v_lshl_add_u32 v6, v5, 4, v6")
    e("v_and_b32 v8, 12, v0")
    e("v_lshl_add_u32 v6, v8, 1, v6")
    e("s_lshl_b32 s54, s25, 8")
    e("s_add_u32 s54, s54, s28")
    e("v_add_u32 v6, s54, v6")
    e("v_lshlrev_b32 v8, 5, v4")
    e("v_lshlrev_b32 v9, 4, v5")
    e("v_sub_u32 v8, v9, v8")
    e(f"s_add_u32 s54, s54, {UR + 4064 - 3584}")
    e("v_add_u32 v8, s54, v8")
    ACC = 224
    for i in range(32): e(f"v_mov_b32 v{ACC+i}, 0")
    e("s_waitcnt vmcnt(0) lgkmcnt(0)")
    e("s_barrier")
    SETS = [64, 128]
    def loads(rr):
        b = SETS[rr & 1]
        for a in range(8):
            for h in range(2):
                e(f"ds_read_b64 v[{b+4*a+2*h}:{b+4*a+2*h+1}], v6 offset:{64*rr + 512*a + 8*h}")
            e(f"ds_read_b128 v[{b+32+4*a}:{b+35+4*a}], v8 offset:{512*(7-a) + 64*rr}")
    loads(0)
    for rr in range(4):
        b = SETS[rr & 1]
        if rr < 3:
            e("s_waitcnt lgkmcnt(0)")
            loads(rr + 1)
        else:
            e("s_waitcnt lgkmcnt(0)")
        for s in range(8):
            for a in range(s + 1):
                bb = s - a
                d = ACC + 4*s
                e(f"v_mfma_f32_16x16x32_bf16 v[{d}:{d+3}], v[{b+4*a}:{b+4*a+3}], v[{b+32+4*bb}:{b+35+4*bb}], v[{d}:{d+3}]")
    e("s_nop 7")
    e(f"s_add_u32 s54, s28, {RED}")
    e("v_add_u32 v9, s54, v1")
    e("s_cmp_eq_u32 s25, 0")
    e("s_cbranch_scc1 CV_X0")
    for nt in range(4):
        e(f"ds_write_b128 v9, v[{ACC+4*nt}:{ACC+4*nt+3}] offset:{1024*nt}")
    e("s_waitcnt lgkmcnt(0)")
    e("s_barrier")
    for nt in range(4):
        e(f"ds_read_b128 v[{64+4*nt}:{67+4*nt}], v9 offset:{1024*(4+nt)}")
    e("s_waitcnt lgkmcnt(0)")
    for i in range(16):
        e(f"v_add_f32 v{64+i}, v{64+i}, v{ACC+16+i}")
    e("s_branch CV_FIN")
    e.lab("CV_X0")
    for nt in range(4):
        e(f"ds_write_b128 v9, v[{ACC+16+4*nt}:{ACC+16+4*nt+3}] offset:{1024*(4+nt)}")
    e("s_waitcnt lgkmcnt(0)")
    e("s_barrier")
    for nt in range(4):
        e(f"ds_read_b128 v[{64+4*nt}:{67+4*nt}], v9 offset:{1024*nt}")
    e("s_waitcnt lgkmcnt(0)")
    for i in range(16):
        e(f"v_add_f32 v{64+i}, v{64+i}, v{ACC+i}")
    e.lab("CV_FIN")
    e("v_lshlrev_b32 v10, 4, v4")
    e("v_lshl_add_u32 v10, v5, 2, v10")
    e("s_lshl_b32 s54, s25, 10")
    e("v_add_u32 v10, s54, v10")
    e(f"s_add_u32 s55, s28, {UR + 2*2044 - 512*3}")
    e("v_lshlrev_b32 v11, 1, v10")
    e("v_sub_u32 v11, s55, v11")
    for t in range(4):
        e(f"ds_read_b64 v[{80+2*t}:{81+2*t}], v11 offset:{512*(3-t)}")
    e("v_lshlrev_b32 v3, 16, v3")
    e("s_mov_b32 s56, 0xffff0000")
    e("v_lshlrev_b32 v12, 1, v10")
    e("v_add_u32 v12, s27, v12")
    e("s_waitcnt lgkmcnt(0)")
    for t in range(4):
        y = 64 + 4*t; kq = 80 + 2*t
        e(f"v_and_b32 v96, s56, v{kq+1}")
        e(f"v_lshlrev_b32 v97, 16, v{kq+1}")
        e(f"v_and_b32 v98, s56, v{kq}")
        e(f"v_lshlrev_b32 v99, 16, v{kq}")
        for i in range(4): e(f"v_mul_f32 v{96+i}, v{96+i}, v3")
        e("v_cvt_pk_bf16_f32 v100, v96, v97")
        e("v_cvt_pk_bf16_f32 v101, v98, v99")
        e(f"v_cvt_pk_bf16_f32 v102, v{y}, v{y+1}")
        e(f"v_cvt_pk_bf16_f32 v103, v{y+2}, v{y+3}")
        for i in range(2):
            e(f"v_lshlrev_b32 v{96+2*i}, 16, v{100+i}")
            e(f"v_and_b32 v{97+2*i}, s56, v{100+i}")
            e(f"v_lshlrev_b32 v{104+2*i}, 16, v{102+i}")
            e(f"v_and_b32 v{105+2*i}, s56, v{102+i}")
        for i in range(4): e(f"v_add_f32 v{96+i}, v{96+i}, v{104+i}")
        e(f"v_cvt_pk_bf16_f32 v{108+2*t}, v96, v97")
        e(f"v_cvt_pk_bf16_f32 v{109+2*t}, v98, v99")
        e(f"buffer_store_dwordx2 v[{108+2*t}:{109+2*t}], v12, s[40:43], 0 offen offset:{512*t} sc1")
    e("s_waitcnt vmcnt(0)")
    e("s_barrier")
    e("s_cmp_lg_u32 s20, 0")
    e("s_cbranch_scc1 K2_END")
    e("s_lshr_b32 s54, s2, 5")
    e("s_lshl_b32 s54, s54, 2")
    e("v_mov_b32 v1, s54")
    e("v_mov_b32 v2, 1")
    e("v_cmp_eq_u32 vcc, 0, v0")
    e("s_and_saveexec_b64 s[52:53], vcc")
    e("buffer_atomic_add v2, v1, s[48:51], 0 offen sc1")
    e("s_endpgm")

def gen_gemm2(e):
    S = 5
    e("s_sub_u32 s24, s2, 256")
    e("s_and_b32 s25, s24, 7")
    e("s_lshr_b32 s26, s24, 3")
    e("s_lshr_b32 s27, s26, 3")
    e("s_lshl_b32 s25, s25, 2")
    e("s_add_u32 s25, s25, s27")
    e("s_and_b32 s26, s26, 7")
    srd(e, 28, 8, 1792*1024)
    srd(e, 32, 18, WS_H_SIZE, WS_H)
    srd(e, 36, 18, 512*4096, WS_Z)
    srd(e, 40, 18, 8192, WS_G)
    srd(e, 44, 10, 2048*1024)
    srd(e, 48, 22, 256)
    srd(e, 52, 12, 2048*1024)
    e("v_lshrrev_b32 v2, 3, v0")
    e("s_mul_i32 s27, s20, 448")
    e("v_add_u32 v2, s27, v2")
    e("v_lshlrev_b32 v2, 10, v2")
    e("v_and_b32 v3, 7, v0")
    e("v_bfe_u32 v4, v0, 4, 1")
    e("v_lshlrev_b32 v4, 2, v4")
    e("v_xor_b32 v3, v3, v4")
    e("v_lshl_add_u32 v2, v3, 4, v2")
    e("s_lshl_b32 s27, s26, 7")
    e("v_add_u32 v2, s27, v2")
    e("s_mul_i32 s56, s20, %d" % (S*4096))
    e("v_lshlrev_b32 v3, 4, v0")
    e("s_lshl_b32 s57, s25, 1")
    e("s_mul_i32 s57, s57, 112")
    e("s_mul_i32 s58, s20, 28")
    e("s_add_u32 s57, s57, s58")
    e("s_lshl_b32 s57, s57, 10")
    e("s_add_u32 s58, s57, %d" % (112*1024))
    HB = 128
    def issue(ci):
        sl = ci % S
        for jj in range(4):
            e(f"s_add_u32 m0, s56, {sl*4096 + jj*1024}")
            e(f"s_mov_b32 s59, {(32*ci + 8*jj)*1024}")
            e(f"buffer_load_dwordx4 v2, s[28:31], s59 offen lds")
    def issue_h(ci):
        sl = ci % S
        e(f"s_add_u32 s59, s57, {ci*2048}")
        e(f"s_add_u32 s60, s58, {ci*2048}")
        for kl in range(2):
            for tj in range(2):
                r = HB + 16*sl + 8*kl + 4*tj
                e(f"buffer_load_dwordx4 v[{r}:{r+3}], v3, s[32:35], s{59+tj} offen offset:{kl*1024}")
    for ci in range(S):
        issue(ci); issue_h(ci)
    e("v_bfe_u32 v6, v0, 2, 2")
    e("v_lshrrev_b32 v7, 5, v0")
    e("v_lshl_add_u32 v7, v7, 3, v6")
    e("v_lshlrev_b32 v7, 7, v7")
    e("v_bfe_u32 v9, v0, 4, 1")
    e("v_lshl_add_u32 v7, v9, 5, v7")
    e("v_and_b32 v9, 3, v0")
    e("v_lshl_add_u32 v7, v9, 3, v7")
    e("v_lshrrev_b32 v9, 1, v6")
    e("v_lshl_add_u32 v8, v9, 6, v7")
    e("v_add_u32 v8, s56, v8")
    e("v_xor_b32 v9, 64, v8")
    ACC = 64
    for i in range(64): e(f"v_mov_b32 v{ACC+i}, 0")
    FR = [16, 32]
    def reads(ci):
        b = FR[ci & 1]; sl = ci % S
        for kl in range(2):
            for di in range(2):
                for h in range(2):
                    r = b + 8*kl + 4*di + 2*h
                    e(f"ds_read_b64_tr_b16 v[{r}:{r+1}], v{8+di} offset:{sl*4096 + kl*2048 + h*512}")
    NCH = 14
    e(f"s_waitcnt vmcnt({8*(S-1)})")
    reads(0)
    for ci in range(NCH):
        if ci + 1 < NCH:
            rem = min(NCH-1, ci+S-1) - (ci+1)
            e(f"s_waitcnt vmcnt({8*rem})")
            reads(ci + 1)
            e("s_waitcnt lgkmcnt(8)")
        else:
            e("s_waitcnt lgkmcnt(0)")
        if ci + S < NCH: issue(ci + S)
        b = FR[ci & 1]; sl = ci % S
        for kl in range(2):
            for di in range(2):
                for tj in range(2):
                    d = ACC + 16*(2*di+tj)
                    a = b + 8*kl + 4*di
                    hr = HB + 16*sl + 8*kl + 4*tj
                    e(f"v_mfma_f32_32x32x16_bf16 v[{d}:{d+15}], v[{a}:{a+3}], v[{hr}:{hr+3}], v[{d}:{d+15}]")
        if ci + S < NCH: issue_h(ci + S)
    e("v_and_b32 v10, 15, v0")
    e("v_lshrrev_b32 v11, 4, v0")
    e("s_lshl_b32 s59, s25, 6")
    e("s_lshl_b32 s60, s20, 4")
    e("s_add_u32 s59, s59, s60")
    e("v_add_u32 v12, s59, v10")
    e("v_lshlrev_b32 v13, 10, v12")
    e("v_lshl_add_u32 v13, v11, 4, v13")
    e("s_lshl_b32 s60, s26, 7")
    e("v_add_u32 v13, s60, v13")
    e("buffer_load_dwordx4 v[16:19], v13, s[44:47], 0 offen")
    e("buffer_load_dwordx4 v[20:23], v13, s[44:47], 0 offen offset:64")
    e("v_lshlrev_b32 v14, 2, v12")
    e("buffer_load_dword v24, v14, s[40:43], 0 offen")
    e("s_nop 7")
    e("s_nop 7")
    e("v_and_b32 v4, 31, v0")
    e("s_movk_i32 s60, 272")
    e("v_mul_lo_u32 v4, v4, s60")
    e("v_lshrrev_b32 v5, 5, v0")
    e("v_lshl_add_u32 v4, v5, 4, v4")
    e("v_add_u32 v4, s56, v4")
    for di in range(2):
        for tj in range(2):
            d = ACC + 16*(2*di+tj)
            for q in range(4):
                e(f"ds_write_b128 v4, v[{d+4*q}:{d+4*q+3}] offset:{tj*32*272 + di*128 + q*32}")
    e("s_waitcnt lgkmcnt(0)")
    e("s_barrier")
    e("s_lshl_b32 s60, s20, 4")
    e("v_add_u32 v5, s60, v10")
    e("s_movk_i32 s60, 272")
    e("v_mul_lo_u32 v5, v5, s60")
    e("v_lshl_add_u32 v5, v11, 5, v5")
    for pw in range(4):
        for p in range(2):
            for hh in range(2):
                r = 64 + 16*pw + 8*p + 4*hh
                e(f"ds_read_b128 v[{r}:{r+3}], v5 offset:{pw*S*4096 + p*128 + hh*16}")
    e("s_lshl_b32 s60, s26, 2")
    e("v_mov_b32 v6, s60")
    e.lab("G2_POLL")
    e("buffer_load_dword v7, v6, s[48:51], 0 offen sc1")
    e("s_waitcnt vmcnt(0)")
    e("v_readfirstlane_b32 s61, v7")
    e("s_cmp_ge_u32 s61, 32")
    e("s_cbranch_scc1 G2_GO")
    e("s_sleep 2")
    e("s_branch G2_POLL")
    e.lab("G2_GO")
    e("s_lshl_b32 s60, s26, 6")
    e("v_lshl_add_u32 v6, v11, 3, s60")
    e("v_lshlrev_b32 v6, 12, v6")
    e("v_lshl_add_u32 v6, v12, 1, v6")
    for p in range(2):
        for i in range(8):
            e(f"s_mov_b32 s60, {(32*p + i)*4096}")
            e(f"buffer_load_ushort v{32+8*p+i}, v6, s[36:39], s60 offen sc1")
    e("s_waitcnt lgkmcnt(0)")
    for i in range(16):
        e(f"v_add_f32 v{64+i}, v{64+i}, v{80+i}")
        e(f"v_add_f32 v{96+i}, v{96+i}, v{112+i}")
    for i in range(16):
        e(f"v_add_f32 v{64+i}, v{64+i}, v{96+i}")
    e("s_mov_b32 s62, 0xffff0000")
    def rb(a, t):
        e(f"v_cvt_pk_bf16_f32 v{t}, v{a}, v{a+1}")
        e(f"v_lshlrev_b32 v{a}, 16, v{t}")
        e(f"v_and_b32 v{a+1}, s62, v{t}")
    for i in range(8): rb(64+2*i, 25)
    e("v_sub_f32 v26, 1.0, v24")
    e("v_mov_b32 v27, v26")
    rb(26, 25)
    for i in range(16): e(f"v_mul_f32 v{64+i}, v{64+i}, v26")
    for i in range(8): rb(64+2*i, 25)
    e("s_waitcnt vmcnt(0)")
    for p in range(2):
        for i in range(4):
            qv = 16 + 4*p + i
            z0 = 32 + 8*p + 2*i
            e(f"v_lshlrev_b32 v96, 16, v{qv}")
            e(f"v_and_b32 v97, s62, v{qv}")
            e(f"v_lshlrev_b32 v98, 16, v{z0}")
            e(f"v_lshlrev_b32 v99, 16, v{z0+1}")
            e("v_mul_f32 v96, v96, v98")
            e("v_mul_f32 v97, v97, v99")
            rb(96, 25)
            e("v_mul_f32 v96, v96, v24")
            e("v_mul_f32 v97, v97, v24")
            rb(96, 25)
            o = 64 + 8*p + 2*i
            e(f"v_add_f32 v96, v96, v{o}")
            e(f"v_add_f32 v97, v97, v{o+1}")
            e(f"v_cvt_pk_bf16_f32 v{100+4*p+i}, v96, v97")
        e(f"buffer_store_dwordx4 v[{100+4*p}:{103+4*p}], v13, s[52:55], 0 offen offset:{64*p}")
    e("s_endpgm")

def gen_k2(e):
    e.lab("k2_kernel")
    e("s_cmp_ge_u32 s2, 512")
    e("s_cbranch_scc1 K2_END")
    e("s_load_dwordx4 s[4:7], s[0:1], 32")
    e("s_load_dwordx2 s[8:9], s[0:1], 64")
    e("s_load_dwordx2 s[10:11], s[0:1], 0")
    e("s_load_dwordx2 s[12:13], s[0:1], 80")
    e("s_load_dwordx2 s[22:23], s[0:1], 88")
    e("s_load_dwordx2 s[18:19], s[0:1], 96")
    e("v_lshrrev_b32 v1, 6, v0")
    e("v_and_b32 v0, 63, v0")
    e("s_nop 0")
    e("v_readfirstlane_b32 s20, v1")
    e("s_waitcnt lgkmcnt(0)")
    e("s_cmp_ge_u32 s2, 256")
    e("s_cbranch_scc1 K2_GEMM")
    gen_conv(e)
    e.lab("K2_GEMM")
    gen_gemm2(e)
    e.lab("K2_END")
    e("s_endpgm")

def kdesc(name, vgpr, sgpr=96):
    return f""".amdhsa_kernel {name}
  .amdhsa_next_free_vgpr {vgpr}
  .amdhsa_next_free_sgpr {sgpr}
  .amdhsa_accum_offset {(vgpr+3)//4*4}
  .amdhsa_group_segment_fixed_size 0
  .amdhsa_kernarg_size 104
  .amdhsa_user_sgpr_count 2
  .amdhsa_user_sgpr_kernarg_segment_ptr 1
  .amdhsa_system_sgpr_workgroup_id_x 1
.end_amdhsa_kernel
"""

def main(out):
    e = E()
    hdr = "; @launch kernel=k1_kernel grid=(256,1,1) block=(256,1,1) lds=131072\n"
    hdr += "; @launch kernel=k2_kernel grid=(512,1,1) block=(256,1,1) lds=81920\n"
    hdr += '.amdgcn_target "amdgcn-amd-amdhsa--gfx950"\n.text\n'
    body = ".globl k1_kernel\n.p2align 8\n.type k1_kernel,@function\n"
    gen_k1(e)
    body += e.text()
    e2 = E()
    gen_k2(e2)
    body += ".globl k2_kernel\n.p2align 8\n.type k2_kernel,@function\n" + e2.text()
    ro = '.section .rodata,"a"\n.p2align 6\n' + kdesc("k1_kernel", 256, 102) + ".p2align 6\n" + kdesc("k2_kernel", 256, 102)
    open(out, "w").write(hdr + body + ro)

if __name__ == "__main__":
    main(sys.argv[1] if len(sys.argv) > 1 else "k.s")
```

```python
import sys

KN = "gated_mix__ssm_conv_h3__dense_activation_relu__prompt"
WS_H = 0
WS_H_SIZE = 64*112*1024
WS_U = 0x800000
WS_G = 0xA00000
WS_Z = 0xB00000

class E:
    def __init__(self): self.l = []
    def __call__(self, s): self.l.append("    " + s)
    def lab(self, s): self.l.append(s + ":")
    def c(self, s): self.l.append("    ; " + s)
    def text(self): return "\n".join(self.l) + "\n"

import os
PROF = int(os.environ.get("PROF", "0"))
WS_P = 0xE00000
def stamp(e, idx, vr):
    if not PROF: return
    e("s_memrealtime s[100:101]")
    e("s_waitcnt lgkmcnt(0)")
    e(f"v_writelane_b32 v{vr}, s100, {idx}")
def stamp_store(e, vr, kidx, ws_lo):
    if not PROF: return
    e("s_getreg_b32 s100, hwreg(HW_REG_HW_ID)")
    e("s_getreg_b32 s101, hwreg(HW_REG_XCC_ID)")
    e(f"v_writelane_b32 v{vr}, s100, 14")
    e(f"v_writelane_b32 v{vr}, s101, 15")
    e(f"s_add_u32 s96, s{ws_lo}, {WS_P + kidx*0x40000:#x}")
    e(f"s_addc_u32 s97, s{ws_lo+1}, 0")
    e("s_mov_b32 s98, 0x40000")
    e("s_mov_b32 s99, 0x00020000")
    e("s_lshl_b32 s100, s2, 8")
    e("s_lshl_b32 s101, s20, 6")
    e("s_add_u32 s100, s100, s101")
    e("v_and_b32 v1, 15, v0")
    e("v_lshlrev_b32 v1, 2, v1")
    e("s_mov_b64 exec, 0xffff")
    e(f"buffer_store_dword v{vr}, v1, s[96:99], s100 offen")
    e("s_mov_b64 exec, -1")

def srd(e, sd, sp, size, off=0):
    if off:
        e(f"s_add_u32 s{sd}, s{sp}, {off:#x}")
        e(f"s_addc_u32 s{sd+1}, s{sp+1}, 0")
    else:
        e(f"s_mov_b32 s{sd}, s{sp}")
        e(f"s_mov_b32 s{sd+1}, s{sp+1}")
    e(f"s_mov_b32 s{sd+2}, {size:#x}")
    e(f"s_mov_b32 s{sd+3}, 0x00020000")

PB = 128
def prep_setup(e):
    P = PB
    e("s_lshr_b32 s60, s2, 3")
    e("s_and_b32 s61, s2, 7")
    srd(e, 64, 6, 2048*1024)
    srd(e, 68, 8, 2048*1024)
    srd(e, 72, 10, 512*8)
    srd(e, 76, 18, 512*4096, WS_U)
    srd(e, 80, 4, 2048*1024)
    srd(e, 84, 16, 1024)
    srd(e, 88, 18, 8192, WS_G)
    e(f"v_and_b32 v{P+1}, 31, v0")
    e(f"v_lshrrev_b32 v{P+2}, 5, v0")
    e("s_lshl_b32 s62, s20, 1")
    e(f"v_add_u32 v{P+2}, s62, v{P+2}")
    e("s_lshl_b32 s62, s60, 6")
    e(f"v_lshl_add_u32 v{P+3}, v{P+2}, 3, s62")
    e(f"v_lshlrev_b32 v{P+4}, 10, v{P+3}")
    e("s_lshl_b32 s63, s61, 7")
    e(f"v_lshl_add_u32 v{P+5}, v{P+1}, 2, s63")
    e(f"v_add_u32 v{P+4}, v{P+4}, v{P+5}")
    for i in range(11):
        e(f"v_add_u32 v{P+6}, {(i-3)*1024 & 0xffffffff:#x}, v{P+4}")
        e(f"buffer_load_dword v{P+16+i}, v{P+6}, s[64:67], 0 offen")
    for i in range(8):
        if i < 4:
            e(f"buffer_load_dword v{P+32+i}, v{P+4}, s[68:71], 0 offen offset:{i*1024}")
        else:
            if i == 4: e(f"v_add_u32 v{P+6}, 4096, v{P+4}")
            e(f"buffer_load_dword v{P+32+i}, v{P+6}, s[68:71], 0 offen offset:{(i-4)*1024}")
    e(f"v_lshlrev_b32 v{P+6}, 2, v{P+5}")
    e(f"buffer_load_dwordx4 v[{P+40}:{P+43}], v{P+6}, s[72:75], 0 offen")
    e("s_lshl_b32 s92, s2, 3")
    e("s_lshl_b32 s93, s20, 1")
    e("s_add_u32 s92, s92, s93")
    e("s_lshl_b32 s93, s92, 10")
    e(f"v_lshlrev_b32 v{P+7}, 4, v0")
    e(f"buffer_load_dwordx4 v[{P+44}:{P+47}], v{P+7}, s[80:83], s93 offen")
    e(f"buffer_load_dwordx4 v[{P+48}:{P+51}], v{P+7}, s[80:83], s93 offen offset:1024")
    e(f"buffer_load_dwordx4 v[{P+52}:{P+55}], v{P+7}, s[84:87], 0 offen")
    e("s_mov_b32 s94, 0xffff0000")
    e("s_mov_b32 s95, 0x05040100")
    e("s_mov_b32 s96, 0x07060302")
    e(f"v_lshlrev_b32 v{P+8}, 1, v{P+1}")
    e("s_lshl_b32 s93, s61, 6")
    e(f"v_add_u32 v{P+8}, s93, v{P+8}")
    e(f"v_lshlrev_b32 v{P+8}, 12, v{P+8}")
    e(f"v_sub_u32 v{P+9}, 2040, v{P+3}")
    e(f"v_lshl_add_u32 v{P+8}, v{P+9}, 1, v{P+8}")
    e(f"v_add_u32 v{P+9}, 4096, v{P+8}")
NPREP_LOADS = 11 + 8 + 1 + 3

def prep_compute():
    P = PB
    L = []
    e = L.append
    for j in range(4):
        for ch in range(2):
            src = P + 40 + 2*ch + (j >> 1)
            if j & 1: e(f"v_and_b32 v{P+56+2*j+ch}, s94, v{src}")
            else:     e(f"v_lshlrev_b32 v{P+56+2*j+ch}, 16, v{src}")
    for i in range(11):
        e(f"v_lshlrev_b32 v{P+64+2*i}, 16, v{P+16+i}")
        e(f"v_and_b32 v{P+65+2*i}, s94, v{P+16+i}")
    def rb(dst, src, tmp):
        e(f"v_cvt_pk_bf16_f32 v{tmp}, v{src}, v{src+1}")
        e(f"v_lshlrev_b32 v{dst}, 16, v{tmp}")
        e(f"v_and_b32 v{dst+1}, s94, v{tmp}")
    for r in range(8):
        S, Q, T = P+88, P+90, P+92
        e(f"v_pk_mul_f32 v[{S}:{S+1}], v[{P+64+2*r}:{P+65+2*r}], v[{P+62}:{P+63}]")
        rb(S, S, T)
        for j in (2, 1, 0):
            e(f"v_pk_mul_f32 v[{Q}:{Q+1}], v[{P+64+2*(r+3-j)}:{P+65+2*(r+3-j)}], v[{P+56+2*j}:{P+57+2*j}]")
            rb(Q, Q, T)
            e(f"v_pk_add_f32 v[{S}:{S+1}], v[{S}:{S+1}], v[{Q}:{Q+1}]")
            rb(S, S, T)
        e(f"v_lshlrev_b32 v{Q}, 16, v{P+32+r}")
        e(f"v_and_b32 v{Q+1}, s94, v{P+32+r}")
        e(f"v_pk_mul_f32 v[{S}:{S+1}], v[{S}:{S+1}], v[{Q}:{Q+1}]")
        e(f"v_cvt_pk_bf16_f32 v{P+96+r}, v{S}, v{S+1}")
    for m in range(4):
        e(f"v_perm_b32 v{P+104+m}, v{P+96+6-2*m}, v{P+96+7-2*m}, s95")
        e(f"v_perm_b32 v{P+108+m}, v{P+96+6-2*m}, v{P+96+7-2*m}, s96")
    e(f"buffer_store_dwordx4 v[{P+104}:{P+107}], v{P+8}, s[76:79], 0 offen sc1")
    e(f"buffer_store_dwordx4 v[{P+108}:{P+111}], v{P+9}, s[76:79], 0 offen sc1")
    return L

def prep_gate(e):
    P = PB
    def rb(dst, src, tmp):
        e(f"v_cvt_pk_bf16_f32 v{tmp}, v{src}, v{src+1}")
        e(f"v_lshlrev_b32 v{dst}, 16, v{tmp}")
        e(f"v_and_b32 v{dst+1}, s94, v{tmp}")
    G = P + 112
    A = P + 120
    X = P + 122; T = P + 124
    for i in range(4):
        e(f"v_lshlrev_b32 v{G+2*i}, 16, v{P+52+i}")
        e(f"v_and_b32 v{G+1+2*i}, s94, v{P+52+i}")
    for row in range(2):
        q = P + 44 + 4*row
        for i in range(4):
            e(f"v_lshlrev_b32 v{X}, 16, v{q+i}")
            e(f"v_and_b32 v{X+1}, s94, v{q+i}")
            e(f"v_pk_mul_f32 v[{X}:{X+1}], v[{X}:{X+1}], v[{G+2*i}:{G+1+2*i}]")
            rb(X, X, T)
            if i == 0: e(f"v_add_f32 v{A+row}, v{X}, v{X+1}")
            else:
                e(f"v_add_f32 v{A+row}, v{A+row}, v{X}")
                e(f"v_add_f32 v{A+row}, v{A+row}, v{X+1}")
    for sh in ("row_shr:1", "row_shr:2", "row_shr:4", "row_shr:8"):
        e("s_nop 1")
        for row in range(2):
            e(f"v_add_f32_dpp v{A+row}, v{A+row}, v{A+row} {sh} bound_ctrl:0")
    e("s_nop 1")
    for row in range(2):
        e(f"v_add_f32_dpp v{A+row}, v{A+row}, v{A+row} row_bcast:15 row_mask:0xa")
    e("s_nop 1")
    for row in range(2):
        e(f"v_add_f32_dpp v{A+row}, v{A+row}, v{A+row} row_bcast:31 row_mask:0xc")
    e("s_nop 1")
    e(f"v_readlane_b32 s98, v{A}, 63")
    e(f"v_readlane_b32 s99, v{A+1}, 63")
    e("s_nop 3")
    e(f"v_mov_b32 v{A}, s98")
    e(f"v_mov_b32 v{A+1}, s99")
    rb(A, A, T)
    e(f"v_mul_f32 v{A}, 0xbfb8aa3b, v{A}")
    e(f"v_mul_f32 v{A+1}, 0xbfb8aa3b, v{A+1}")
    e(f"v_exp_f32 v{A}, v{A}")
    e(f"v_exp_f32 v{A+1}, v{A+1}")
    e("s_nop 0")
    e(f"v_add_f32 v{A}, 1.0, v{A}")
    e(f"v_add_f32 v{A+1}, 1.0, v{A+1}")
    e(f"v_rcp_f32 v{A}, v{A}")
    e(f"v_rcp_f32 v{A+1}, v{A+1}")
    e("s_nop 0")
    rb(A, A, T)
    e("s_lshl_b32 s93, s92, 2")
    e(f"v_mov_b32 v{X}, s93")
    e("v_cmp_eq_u32 vcc, 0, v0")
    e("s_and_saveexec_b64 s[98:99], vcc")
    e(f"buffer_store_dwordx2 v[{A}:{A+1}], v{X}, s[88:91], 0 offen sc1")
    e("s_mov_b64 exec, s[98:99]")

class VM:
    def __init__(s): s.q = []
    def issue(s, tag): s.q.append(tag)
    def need(s, tags):
        idx = max([i for i, t in enumerate(s.q) if t in tags] + [-1])
        return len(s.q) - 1 - idx
    def clear(s): s.q = []

CNT_H, CNT_U, CNT_Z = 0, 32, 48
SWAP = int(os.environ.get('SWAP','0'))
PRIOA = int(os.environ.get('PRIOA','2'))
PRIOB = int(os.environ.get('PRIOB','0'))
PF = int(os.environ.get('PF','1'))
G1ONLY = int(os.environ.get('G1ONLY','0'))
NOTR = int(os.environ.get('NOTR','0'))
NOMF = int(os.environ.get('NOMF','0'))
NOLDS = int(os.environ.get('NOLDS','0'))
NOBAR = int(os.environ.get('NOBAR','0'))
ROT = int(os.environ.get('ROT','1'))
NOVM = int(os.environ.get('NOVM','0'))
NODMA = int(os.environ.get('NODMA','0'))
REP2 = int(os.environ.get('REP2','0'))
PSL = int(os.environ.get('PSL','8'))
SLEEP0 = int(os.environ.get('SLEEP0','1'))
WS_F = 0xF00000
F_H, F_U, F_Z = 0, 0x8000, 0x10000
SV = 15

def get_nonce(e, lab, dbg, vr, st):
    e.lab(lab)
    e(f"v_mov_b32 v{vr+1}, 0")
    e(f"buffer_load_dwordx2 v[{vr}:{vr+1}], v{vr+1}, s[{dbg}:{dbg+3}], 0 offen sc1")
    e("s_waitcnt vmcnt(0)")
    e(f"v_readfirstlane_b32 s{st}, v{vr}")
    e(f"s_cmp_lg_u32 s{st}, 0")
    e(f"s_cbranch_scc1 {lab}_OK")
    e("s_sleep 4")
    e(f"s_branch {lab}")
    e.lab(lab + "_OK")

def gen_typeA(e):
    e("s_load_dwordx2 s[4:5], s[0:1], 0")
    e("s_load_dwordx2 s[14:15], s[0:1], 56")
    e("s_load_dwordx2 s[18:19], s[0:1], 96")
    e("s_load_dwordx4 s[64:67], s[0:1], 64")
    e("s_load_dwordx4 s[68:71], s[0:1], 80")
    if PRIOA: e(f"s_setprio {PRIOA}")
    e("s_and_b32 s21, s2, 7")
    e("s_lshr_b32 s22, s2, 3")
    e("s_cmp_ge_u32 s22, 14")
    e("s_cselect_b32 s23, 1, 0")
    e("s_lshl_b32 s25, s21, 1")
    e("s_add_u32 s25, s25, s23")
    e("s_mul_i32 s23, s23, 14")
    e("s_sub_u32 s26, s22, s23")
    e("s_lshl_b32 s48, s21, 2")
    e("s_lshr_b32 s49, s22, 3")
    e("s_add_u32 s48, s48, s49")
    e("s_and_b32 s49, s22, 7")
    S = 5
    e("s_mul_i32 s56, s20, %d" % (S*4096))
    e("s_lshl_b32 s57, s48, 1")
    e("s_mul_i32 s57, s57, 112")
    e("s_mul_i32 s58, s20, 28")
    e("s_add_u32 s57, s57, s58")
    e("s_lshl_b32 s57, s57, 10")
    e("s_add_u32 s58, s57, %d" % (112*1024))
    e("s_waitcnt lgkmcnt(0)")
    stamp(e, 0, SV)
    srd(e, 28, 4, 2048*1024)
    srd(e, 32, 14, 512*3584)
    srd(e, 72, 64, 1792*1024)
    srd(e, 76, 18, WS_H_SIZE, WS_H)
    srd(e, 80, 18, 512*4096, WS_Z)
    srd(e, 84, 18, 8192, WS_G)
    srd(e, 88, 4, 2048*1024)
    srd(e, 92, 70, 256)
    srd(e, 96, 68, 2048*1024)
    srd(e, 52, 18, 0x18000, WS_F)
    e("v_mov_b32 v1, 0")
    e("s_or_b32 s46, s2, s20")
    e("s_cmp_lg_u32 s46, 0")
    e("s_cbranch_scc1 A_NOPUB")
    e("s_memrealtime s[46:47]")
    e("s_waitcnt lgkmcnt(0)")
    e("s_or_b32 s46, s46, 1")
    e("v_mov_b32 v2, s46")
    e("v_mov_b32 v3, s47")
    e("s_mov_b64 exec, 1")
    e("buffer_store_dwordx2 v[2:3], v1, s[92:95], 0 offen sc1")
    e("s_mov_b64 exec, -1")
    e.lab("A_NOPUB")
    e("v_mov_b32 v1, 0")
    e("buffer_load_dwordx2 v[22:23], v1, s[92:95], 0 offen sc1")
    if PF & 1:
        e("s_lshr_b32 s46, s2, 3")
        e("s_lshl_b32 s46, s46, 2")
        e("s_add_u32 s46, s46, s20")
        e("s_lshl_b32 s46, s46, 13")
        e("v_lshlrev_b32 v1, 7, v0")
        e("buffer_load_dword v24, v1, s[32:35], s46 offen")
    if PF & 4:
        e("s_lshr_b32 s46, s2, 3")
        e("s_cmp_ge_u32 s46, 8")
        e("s_cbranch_scc1 A_NOQPF")
        e("s_lshl_b32 s46, s46, 2")
        e("s_add_u32 s46, s46, s20")
        e("s_lshl_b32 s46, s46, 13")
        e("s_lshl_b32 s47, s21, 18")
        e("s_add_u32 s46, s46, s47")
        e("v_lshlrev_b32 v1, 7, v0")
        e("buffer_load_dword v24, v1, s[28:31], s46 offen")
        e.lab("A_NOQPF")
    e("s_cmp_ge_u32 s2, 224")
    e("s_cbranch_scc1 A_PRE")
    vm = VM()
    e("v_lshrrev_b32 v2, 3, v0")
    e("s_lshl_b32 s27, s25, 7")
    e("s_lshl_b32 s40, s20, 5")
    e("s_add_u32 s27, s27, s40")
    e("v_add_u32 v2, s27, v2")
    e("v_lshlrev_b32 v2, 10, v2")
    e("v_and_b32 v3, 7, v0")
    e("v_lshrrev_b32 v4, 4, v0")
    e("v_xor_b32 v3, v3, v4")
    e("v_lshl_add_u32 v2, v3, 4, v2")
    e("v_xor_b32 v3, 64, v2")
    e("s_lshl_b32 s40, s20, 3")
    e("v_add_u32 v5, s40, v4")
    e("s_movk_i32 s41, 3584")
    e("v_mul_lo_u32 v5, v5, s41")
    e("v_and_b32 v6, 15, v0")
    e("v_lshlrev_b32 v7, 2, v4")
    e("v_xor_b32 v6, v6, v7")
    e("v_lshl_add_u32 v5, v6, 4, v5")
    e("s_lshl_b32 s40, s26, 8")
    e("v_add_u32 v5, s40, v5")
    e("s_lshl_b32 s42, s20, 12")
    e("s_lshl_b32 s47, s20, 11")
    WB = 49152
    WR = 128
    NWR = 12
    NW = 3
    def dq(c, j):
        def f():
            e(f"s_add_u32 m0, s42, {(c%3)*16384 + j*1024}")
            if ROT:
                e(f"s_add_u32 s43, s50, {c*128}")
                e(f"s_and_b32 s43, s43, 1023")
                e(f"s_add_u32 s43, s43, {j*8192}")
            else:
                e(f"s_mov_b32 s43, {j*8192 + c*128}")
            e(f"buffer_load_dwordx4 v{2 + (j&1)}, s[28:31], s43 offen lds")
            vm.issue(("Q", c))
        return f
    def lw1(hc, j):
        def f():
            r = WR + 8*(hc % NWR) + 4*j
            if ROT:
                e(f"s_add_u32 s43, s51, {hc}")
                e(f"s_and_b32 s43, s43, 15")
                e(f"s_mul_i32 s43, s43, {32*3584}")
                e(f"s_add_u32 s43, s43, {4*j*3584}")
            else:
                e(f"s_mov_b32 s43, {(32*hc + 4*j)*3584}")
            e(f"buffer_load_dwordx4 v[{r}:{r+3}], v5, s[32:35], s43 offen")
            vm.issue(("W", hc))
        return f
    def lw(hc):
        for j in range(2): lw1(hc, j)()
    e("s_and_b32 s51, s26, 7")
    e("s_lshl_b32 s50, s51, 7")
    e("s_lshl_b32 s51, s51, 1")
    for c in range(3):
        for j in range(4): dq(c, j)()
        lw(2*c); lw(2*c+1)
    for hc in range(6, NWR): lw(hc)
    e("s_and_b32 s44, s20, 1")
    e("s_lshr_b32 s45, s20, 1")
    e("v_and_b32 v6, 31, v0")
    e("v_lshrrev_b32 v7, 5, v0")
    e("v_bfe_u32 v8, v0, 1, 3")
    e("v_xor_b32 v8, v8, v7")
    e("v_lshlrev_b32 v8, 4, v8")
    e("v_lshl_add_u32 v8, v6, 7, v8")
    e("s_lshl_b32 s46, s44, 13")
    e("v_add_u32 v8, s46, v8")
    for k in range(4):
        e(f"v_xor_b32 v{10+k}, {32*k}, v8")
    e("v_bfe_u32 v6, v0, 2, 2")
    e("v_lshrrev_b32 v7, 5, v0")
    e("v_lshl_add_u32 v7, v7, 3, v6")
    e("v_lshlrev_b32 v7, 8, v7")
    e("v_bfe_u32 v9, v0, 4, 1")
    e("v_lshl_add_u32 v7, v9, 5, v7")
    e("v_and_b32 v9, 3, v0")
    e("v_lshl_add_u32 v7, v9, 3, v7")
    e(f"v_add_u32 v7, {WB}, v7")
    e("s_lshl_b32 s46, s45, 1")
    e("v_xor_b32 v9, s46, v6")
    e("v_lshl_add_u32 v18, v9, 6, v7")
    e("v_xor_b32 v19, 64, v18")
    e("v_lshlrev_b32 v20, 4, v0")
    e("v_add_u32 v20, s47, v20")
    e(f"v_add_u32 v20, {WB}, v20")
    ACC = 64
    for i in range(64):
        e(f"v_mov_b32 v{ACC+i}, 0")
    FR = [32, 48, 224]
    lg = VM()
    def ww_l(hc):
        L = []
        for j in range(2):
            def f(j=j):
                r = WR + 8*(hc % NWR) + 4*j
                e(f"ds_write_b128 v20, v[{r}:{r+3}] offset:{(hc%NW)*8192 + j*1024}")
                lg.issue(("w", hc))
            L.append(f)
        return L
    def ww(hc):
        for f in ww_l(hc): f()
    def rf_l(step):
        if NOLDS: return []
        c, k, hc, kk = step >> 2, step & 3, step >> 1, step & 1
        b = FR[step % 3]
        L = []
        for tj in range(2):
            def f(tj=tj):
                e(f"ds_read_b128 v[{b+8+4*tj}:{b+8+4*tj+3}], v{10+k} offset:{(c%3)*16384 + tj*4096}")
                lg.issue(("r", step))
            L.append(f)
        for fi in range(2):
            for h in range(2):
                def f(fi=fi, h=h):
                    e(f"ds_read_b64_tr_b16 v[{b+4*fi+2*h}:{b+4*fi+2*h+1}], v{18+fi} offset:{(hc%NW)*8192 + kk*4096 + h*1024}")
                    lg.issue(("r", step))
                L.append(f)
        return L
    def read_frags(step):
        for f in rf_l(step): f()
    pend = []
    def mfmas(step, ldsops):
        b = FR[step % 3]
        n = 0
        per = (len(ldsops) + 3) // 4
        for fi in range(2):
            for tj in range(2):
                d = ACC + 16*(2*fi+tj)
                if not NOMF: e(f"v_mfma_f32_32x32x16_bf16 v[{d}:{d+15}], v[{b+4*fi}:{b+4*fi+3}], v[{b+8+4*tj}:{b+8+4*tj+3}], v[{d}:{d+15}]")
                for _ in range(per):
                    if ldsops: ldsops.pop(0)()
                if pend:
                    f = pend.pop(0)
                    if not NODMA: f()
    stamp(e, 1, SV)
    e(f"s_waitcnt vmcnt({vm.need([('Q',0),('W',0),('W',1)])})")
    ww(0); ww(1)
    e("s_waitcnt lgkmcnt(0)")
    lg.clear()
    if REP2:
        e("s_mov_b32 s55, 0")
        e.lab("A_REP")
    stamp(e, 2, SV)
    if G1ONLY:
        e("s_memtime s[100:101]"); e("s_waitcnt lgkmcnt(0)"); e(f"v_writelane_b32 v{SV}, s100, 10")
    e("s_barrier")
    read_frags(0); read_frags(1)
    NS = 32
    for step in range(NS):
        hc, c = step >> 1, step >> 2
        e(f"s_waitcnt lgkmcnt({lg.need([('r', step)])})")
        ops = []
        if step & 1 == 0:
            tags = []
            if hc >= 1:
                if hc & 1 and (hc+1) >> 1 < 8: tags.append(("Q", (hc+1) >> 1))
            if hc + 2 < 16: tags.append(("W", hc+2))
            if hc == 0: tags.append(("Q", 0))
            if tags and not NOVM: e(f"s_waitcnt vmcnt({min(63, vm.need(tags))})")
            if hc >= 1:
                if not NOBAR: e("s_barrier")
                if hc in (4, 8, 12):
                    stamp(e, 2 + hc//4, SV); lg.clear()
            if hc + 2 < 16: ops += ww_l(hc + 2)
            if hc + NWR - 0 < 16 and hc >= 0:
                for j in range(2): pend.append(lw1(hc + NWR, j))
            if hc >= 2 and hc & 1 == 0 and (hc - 2)//2 + 3 < 8:
                for j in range(4): pend.append(dq((hc-2)//2 + 3, j))
        if step + 2 < NS: ops = ops + rf_l(step + 2)
        mfmas(step, ops)
    e("s_barrier")
    assert not pend
    stamp(e, 6, SV)
    if G1ONLY:
        e("s_memtime s[100:101]"); e("s_waitcnt lgkmcnt(0)"); e(f"v_writelane_b32 v{SV}, s100, 11")
    if REP2:
        e("s_add_u32 s55, s55, 1")
        e("s_cmp_lt_u32 s55, 2")
        e("s_cbranch_scc1 A_REP")
    e("v_lshlrev_b32 v209, 4, v0")
    e("s_lshl_b32 s46, s25, 2")
    e("s_lshl_b32 s47, s44, 1")
    e("s_add_u32 s46, s46, s47")
    e("s_mul_i32 s46, s46, 112")
    e("s_lshl_b32 s47, s26, 3")
    e("s_add_u32 s46, s46, s47")
    e("s_lshl_b32 s47, s45, 2")
    e("s_add_u32 s46, s46, s47")
    e("s_lshl_b32 s46, s46, 10")
    e("v_add_u32 v2, s46, v209")
    e("v_add_u32 v3, 112*1024, v2")
    for fi in range(2):
        for tj in range(2):
            d = ACC + 16*(2*fi+tj)
            for kq in range(2):
                p = 32 + 4*((2*tj+kq) & 3)
                for x in range(4):
                    i0 = d + 8*kq + 2*x
                    e(f"v_max_f32 v{i0}, 0, v{i0}")
                    e(f"v_max_f32 v{i0+1}, 0, v{i0+1}")
                for x in range(4):
                    i0 = d + 8*kq + 2*x
                    e(f"v_cvt_pk_bf16_f32 v{p+x}, v{i0}, v{i0+1}")
                e("s_nop 1")
                e(f"v_permlane32_swap_b32 v{p}, v{p+2}")
                e(f"v_permlane32_swap_b32 v{p+1}, v{p+3}")
                e(f"buffer_store_dwordx4 v[{p}:{p+3}], v{2+tj}, s[76:79], 0 offen offset:{(2*fi+kq)*1024} sc1")
    stamp(e, 7, SV)
    e("s_waitcnt vmcnt(0)")
    e("s_barrier")
    stamp(e, 8, SV)
    e("s_cmp_lg_u32 s20, 0")
    e("s_cbranch_scc1 A_PRE")
    e("v_mov_b32 v220, v22")
    e("v_mov_b32 v221, v23")
    e("v_readfirstlane_b32 s46, v22")
    e("s_cmp_lg_u32 s46, 0")
    e("s_cbranch_scc1 A_N1_OK")
    get_nonce(e, "A_N1", 92, 220, 46)
    e("s_lshl_b32 s46, s25, 4")
    e("s_add_u32 s46, s46, s26")
    e("s_lshl_b32 s46, s46, 7")
    e("v_mov_b32 v1, s46")
    e("s_mov_b64 exec, 1")
    e(f"buffer_store_dwordx2 v[220:221], v1, s[52:55], 0 offen offset:{F_H} sc1")
    e("s_mov_b64 exec, -1")
    e.lab("A_PRE")
    e("v_lshrrev_b32 v2, 3, v0")
    e("s_mul_i32 s27, s20, 448")
    e("v_add_u32 v2, s27, v2")
    e("v_lshlrev_b32 v2, 10, v2")
    e("v_and_b32 v3, 7, v0")
    e("v_bfe_u32 v4, v0, 4, 1")
    e("v_lshlrev_b32 v4, 2, v4")
    e("v_xor_b32 v3, v3, v4")
    e("v_lshl_add_u32 v2, v3, 4, v2")
    e("s_lshl_b32 s27, s49, 7")
    e("v_add_u32 v208, s27, v2")
    e("v_lshlrev_b32 v209, 4, v0")
    def issue(ci):
        sl = ci % S
        for jj in range(4):
            e(f"s_add_u32 m0, s56, {sl*4096 + jj*1024}")
            e(f"s_mov_b32 s59, {(32*ci + 8*jj)*1024}")
            e(f"buffer_load_dwordx4 v208, s[72:75], s59 offen lds")
            vm.issue(("w2", ci))
    for ci in range(S): issue(ci)
    e.lab("A_POLL")
    if G1ONLY:
        stamp_store(e, SV, 0, 18)
        e("s_endpgm")
    vm.clear()
    HB = 128
    def issue_h(ci):
        sl = ci % S
        e(f"s_add_u32 s59, s57, {ci*2048}")
        e(f"s_add_u32 s60, s58, {ci*2048}")
        for kl in range(2):
            for tj in range(2):
                r = HB + 16*sl + 8*kl + 4*tj
                e(f"buffer_load_dwordx4 v[{r}:{r+3}], v209, s[76:79], s{59+tj} offen offset:{kl*1024}")
                vm.issue(("h", ci))
    e("v_bfe_u32 v6, v0, 2, 2")
    e("v_lshrrev_b32 v7, 5, v0")
    e("v_lshl_add_u32 v7, v7, 3, v6")
    e("v_lshlrev_b32 v7, 7, v7")
    e("v_bfe_u32 v9, v0, 4, 1")
    e("v_lshl_add_u32 v7, v9, 5, v7")
    e("v_and_b32 v9, 3, v0")
    e("v_lshl_add_u32 v7, v9, 3, v7")
    e("v_lshrrev_b32 v9, 1, v6")
    e("v_lshl_add_u32 v8, v9, 6, v7")
    e("v_add_u32 v8, s56, v8")
    e("v_xor_b32 v9, 64, v8")
    e("v_and_b32 v10, 15, v0")
    e("v_lshrrev_b32 v11, 4, v0")
    e("s_lshl_b32 s59, s48, 6")
    e("s_lshl_b32 s60, s20, 4")
    e("s_add_u32 s59, s59, s60")
    e("v_add_u32 v12, s59, v10")
    e("v_lshlrev_b32 v13, 10, v12")
    e("v_lshl_add_u32 v13, v11, 4, v13")
    e("s_lshl_b32 s60, s49, 7")
    e("v_add_u32 v13, s60, v13")
    e("buffer_load_dwordx4 v[212:215], v13, s[88:91], 0 offen")
    e("buffer_load_dwordx4 v[216:219], v13, s[88:91], 0 offen offset:64")
    e("v_lshlrev_b32 v14, 2, v12")
    ACC = 64
    e("s_lshr_b32 s60, s48, 1")
    e("s_lshl_b32 s60, s60, 4")
    e("v_min_u32 v6, 13, v0")
    e("v_add_u32 v6, s60, v6")
    e("v_lshlrev_b32 v6, 7, v6")
    e("s_cmp_lg_u32 s20, 0")
    e("s_cbranch_scc1 A_HG")
    e("s_cmp_lt_u32 s2, 224")
    e("s_cbranch_scc1 A_HP")
    for _ in range(SLEEP0): e("s_sleep 64")
    get_nonce(e, "A_N2", 92, 220, 46)
    e.lab("A_HP")
    e(f"buffer_load_dwordx2 v[222:223], v6, s[52:55], 0 offen offset:{F_H} sc1")
    e("s_waitcnt vmcnt(0)")
    e("v_cmp_ne_u32 vcc, v222, v220")
    e("v_cmp_ne_u32 s[60:61], v223, v221")
    e("s_nop 1")
    e("s_or_b64 vcc, vcc, s[60:61]")
    e("s_cmp_eq_u64 vcc, 0")
    e("s_cbranch_scc1 A_HG")
    e(f"s_sleep {PSL}")
    e("s_branch A_HP")
    e.lab("A_HG")
    e("s_waitcnt vmcnt(0)")
    e("s_barrier")
    e("v_mov_b32 v1, 0")
    e("buffer_load_dwordx2 v[220:221], v1, s[92:95], 0 offen sc1")
    vm.issue(("nonce", 0))
    for ci in range(S): issue_h(ci)
    stamp(e, 9, SV)
    for i in range(64): e(f"v_mov_b32 v{ACC+i}, 0")
    e("s_lshl_b32 s60, s49, 5")
    e("v_add_u32 v6, s60, v0")
    e("v_lshlrev_b32 v6, 7, v6")
    e(f"v_add_u32 v6, {F_Z}, v6")
    e("v_and_b32 v7, 7, v0")
    e("s_lshl_b32 s60, s48, 3")
    e("v_add_u32 v7, s60, v7")
    e("v_lshlrev_b32 v7, 7, v7")
    e(f"v_add_u32 v7, {F_U}, v7")
    e("v_cmp_gt_u32 vcc, 32, v0")
    e("v_cndmask_b32 v6, v7, v6, vcc")
    FR = [16, 32]
    def reads_l(ci):
        b = FR[ci & 1]; sl = ci % S
        L = []
        for kl in range(2):
            for di in range(2):
                for h in range(2):
                    r = b + 8*kl + 4*di + 2*h
                    L.append(f"ds_read_b64_tr_b16 v[{r}:{r+1}], v{8+di} offset:{sl*4096 + kl*2048 + h*512}")
        return L
    def issue_l(ci):
        L = []
        sl = ci % S
        for jj in range(4):
            def f(jj=jj):
                e(f"s_add_u32 m0, s56, {sl*4096 + jj*1024}")
                e(f"s_mov_b32 s59, {(32*ci + 8*jj)*1024}")
                e(f"buffer_load_dwordx4 v208, s[72:75], s59 offen lds")
                vm.issue(("w2", ci))
            L.append(f)
        return L
    def issue_h_l(ci):
        L = []
        sl = ci % S
        for kl in range(2):
            for tj in range(2):
                def f(kl=kl, tj=tj):
                    r = HB + 16*sl + 8*kl + 4*tj
                    e(f"s_add_u32 s60, s{57+tj}, {ci*2048}")
                    e(f"buffer_load_dwordx4 v[{r}:{r+3}], v209, s[76:79], s60 offen offset:{kl*1024}")
                    vm.issue(("h", ci))
                L.append(f)
        return L
    NCH = 14
    for x in reads_l(0): e(x)
    hq = []
    for ci in range(NCH):
        tags = [("h", ci)] + ([("w2", ci+1)] if ci + 1 < NCH else [])
        e(f"s_waitcnt vmcnt({vm.need(tags)}) lgkmcnt(0)")
        rl = reads_l(ci + 1) if ci + 1 < NCH else []
        dl = issue_l(ci + S) if ci + S < NCH else []
        dl = hq + dl
        hq = issue_h_l(ci + S) if ci + S < NCH else []
        if ci == 10:
            e("buffer_load_dwordx2 v[222:223], v6, s[52:55], 0 offen sc1"); vm.issue(("zf",0))
        b = FR[ci & 1]; sl = ci % S
        for kl in range(2):
            for di in range(2):
                for tj in range(2):
                    d = ACC + 16*(2*di+tj)
                    a = b + 8*kl + 4*di
                    hr = HB + 16*sl + 8*kl + 4*tj
                    e(f"v_mfma_f32_32x32x16_bf16 v[{d}:{d+15}], v[{a}:{a+3}], v[{hr}:{hr+3}], v[{d}:{d+15}]")
                    if rl: e(rl.pop(0))
                    if rl: e(rl.pop(0))
                    if dl: dl.pop(0)()
        assert not rl and not dl
    assert not hq
    stamp(e, 10, SV)
    e("s_waitcnt vmcnt(0)")
    e("s_branch G2_CHK")
    e.lab("G2_POLL")
    e(f"s_sleep {PSL}")
    e("buffer_load_dwordx2 v[222:223], v6, s[52:55], 0 offen sc1")
    e("s_waitcnt vmcnt(0)")
    e.lab("G2_CHK")
    e("v_cmp_ne_u32 vcc, v222, v220")
    e("v_cmp_ne_u32 s[60:61], v223, v221")
    e("s_nop 1")
    e("s_or_b64 vcc, vcc, s[60:61]")
    e("s_cmp_eq_u64 vcc, 0")
    e("s_cbranch_scc0 G2_POLL")
    e.lab("G2_GO")
    stamp(e, 11, SV)
    e("s_lshl_b32 s60, s49, 6")
    e("v_lshl_add_u32 v6, v11, 3, s60")
    e("v_lshlrev_b32 v6, 12, v6")
    e("v_lshl_add_u32 v6, v12, 1, v6")
    for p in range(2):
        for i in range(8):
            e(f"s_mov_b32 s60, {(32*p + i)*4096}")
            e(f"buffer_load_ushort v{32+8*p+i}, v6, s[80:83], s60 offen sc1")
    e("buffer_load_dword v24, v14, s[84:87], 0 offen sc1")
    e("v_and_b32 v4, 31, v0")
    e("s_movk_i32 s60, 272")
    e("v_mul_lo_u32 v4, v4, s60")
    e("v_lshrrev_b32 v5, 5, v0")
    e("v_lshl_add_u32 v4, v5, 4, v4")
    e("v_add_u32 v4, s56, v4")
    for di in range(2):
        for tj in range(2):
            d = ACC + 16*(2*di+tj)
            for q in range(4):
                e(f"ds_write_b128 v4, v[{d+4*q}:{d+4*q+3}] offset:{tj*32*272 + di*128 + q*32}")
    e("s_waitcnt lgkmcnt(0)")
    e("s_barrier")
    e("s_lshl_b32 s60, s20, 4")
    e("v_add_u32 v5, s60, v10")
    e("s_movk_i32 s60, 272")
    e("v_mul_lo_u32 v5, v5, s60")
    e("v_lshl_add_u32 v5, v11, 5, v5")
    for pw in range(4):
        for p in range(2):
            for hh in range(2):
                r = 64 + 16*pw + 8*p + 4*hh
                e(f"ds_read_b128 v[{r}:{r+3}], v5 offset:{pw*S*4096 + p*128 + hh*16}")
    e("s_waitcnt lgkmcnt(0)")
    for i in range(16):
        e(f"v_add_f32 v{64+i}, v{64+i}, v{80+i}")
        e(f"v_add_f32 v{96+i}, v{96+i}, v{112+i}")
    for i in range(16):
        e(f"v_add_f32 v{64+i}, v{64+i}, v{96+i}")
    e("s_mov_b32 s62, 0xffff0000")
    def rb(a, t):
        e(f"v_cvt_pk_bf16_f32 v{t}, v{a}, v{a+1}")
        e(f"v_lshlrev_b32 v{a}, 16, v{t}")
        e(f"v_and_b32 v{a+1}, s62, v{t}")
    for i in range(8): rb(64+2*i, 25)
    e("s_waitcnt vmcnt(0)")
    e("v_sub_f32 v26, 1.0, v24")
    e("v_mov_b32 v27, v26")
    rb(26, 25)
    for i in range(16): e(f"v_mul_f32 v{64+i}, v{64+i}, v26")
    for i in range(8): rb(64+2*i, 25)
    for p in range(2):
        for i in range(4):
            qv = 212 + 4*p + i
            z0 = 32 + 8*p + 2*i
            e(f"v_lshlrev_b32 v96, 16, v{qv}")
            e(f"v_and_b32 v97, s62, v{qv}")
            e(f"v_lshlrev_b32 v98, 16, v{z0}")
            e(f"v_lshlrev_b32 v99, 16, v{z0+1}")
            e("v_mul_f32 v96, v96, v98")
            e("v_mul_f32 v97, v97, v99")
            rb(96, 25)
            e("v_mul_f32 v96, v96, v24")
            e("v_mul_f32 v97, v97, v24")
            rb(96, 25)
            o = 64 + 8*p + 2*i
            e(f"v_add_f32 v96, v96, v{o}")
            e(f"v_add_f32 v97, v97, v{o+1}")
            e(f"v_cvt_pk_bf16_f32 v{100+4*p+i}, v96, v97")
        e(f"buffer_store_dwordx4 v[{100+4*p}:{103+4*p}], v13, s[96:99], 0 offen offset:{64*p}")
    stamp(e, 12, SV)
    if PROF: e("s_waitcnt vmcnt(0)")
    stamp(e, 13, SV)
    stamp_store(e, SV, 0, 18)
    e("s_endpgm")

def gen_typeB(e):
    CH = 29440
    KC, UR, RED = 0, 16640, 21248
    e("s_sub_u32 s2, s2, 256")
    if G1ONLY: e("s_endpgm")
    e("s_load_dwordx4 s[4:7], s[0:1], 0")
    e("s_load_dwordx4 s[8:11], s[0:1], 16")
    e("s_load_dwordx4 s[12:15], s[0:1], 32")
    e("s_load_dwordx2 s[16:17], s[0:1], 72")
    e("s_load_dwordx2 s[22:23], s[0:1], 88")
    e("s_load_dwordx2 s[18:19], s[0:1], 96")
    e("s_load_dwordx4 s[56:59], s[0:1], 56")
    if PRIOB: e(f"s_setprio {PRIOB}")
    e("s_lshr_b32 s24, s20, 1")
    e("s_and_b32 s25, s20, 1")
    e("s_and_b32 s26, s2, 7")
    e("s_lshl_b32 s26, s26, 6")
    e("s_lshr_b32 s27, s2, 3")
    e("s_lshl_b32 s27, s27, 1")
    e("s_add_u32 s26, s26, s27")
    e("s_add_u32 s26, s26, s24")
    e("s_lshl_b32 s27, s26, 12")
    e("s_mul_i32 s28, s24, %d" % CH)
    e("v_lshlrev_b32 v1, 4, v0")
    e("s_waitcnt lgkmcnt(0)")
    stamp(e, 0, 13)
    prep_setup(e)
    e("s_lshr_b32 s29, s2, 3")
    e("s_lshl_b32 s29, s29, 2")
    e("s_add_u32 s29, s29, s20")
    e("s_lshl_b32 s21, s29, 13")
    if PF & 1:
        srd(e, 52, 56, 512*3584)
        e("s_lshr_b32 s29, s2, 3")
        e("s_lshl_b32 s29, s29, 2")
        e("s_add_u32 s29, s29, s20")
        e("s_lshl_b32 s21, s29, 13")
        e("s_add_u32 s29, s21, %d" % (128*8192))
        e("v_lshlrev_b32 v2, 7, v0")
        e("buffer_load_dword v12, v2, s[52:55], s29 offen")
        e("s_and_b32 s30, s2, 7")
        e("s_lshl_b32 s30, s30, 18")
        e("s_add_u32 s30, s30, s21")
        e("s_sub_u32 s30, s30, %d" % (96*8192))
        e("s_cmp_lt_u32 s21, %d" % (96*8192))
        e("s_cbranch_scc1 B_NOQ")
        e("buffer_load_dword v12, v2, s[80:83], s30 offen")
        e.lab("B_NOQ")
    e("s_add_u32 s32, s12, s27"); e("s_addc_u32 s33, s13, 0"); e("s_mov_b32 s34, 4096"); e("s_mov_b32 s35, 0x00020000")
    srd(e, 36, 18, 512*4096, WS_U)
    srd(e, 40, 18, 512*4096, WS_Z)
    srd(e, 44, 14, 1024)
    srd(e, 48, 22, 256)
    srd(e, 60, 18, 0x18000, WS_F)
    e("s_lshl_b32 s29, s26, 1")
    e("v_mov_b32 v2, s29")
    e("buffer_load_ushort v3, v2, s[44:47], 0 offen")
    e("s_lshl_b32 s29, s25, 10")
    e("v_add_u32 v4, s29, v1")
    for n in range(3):
        e(f"v_add_u32 v5, {(2048*n - 32) & 0xffffffff:#x}, v4")
        e(f"v_add_u32 v6, {(2048*n - 16) & 0xffffffff:#x}, v4")
        e(f"buffer_load_dwordx4 v[{16+8*n}:{19+8*n}], v5, s[32:35], 0 offen")
        e(f"buffer_load_dwordx4 v[{20+8*n}:{23+8*n}], v6, s[32:35], 0 offen")
    if PRIOB: e(f"s_setprio {int(os.environ.get('PRIOB2','0'))}")
    e("s_waitcnt vmcnt(7)")
    stamp(e, 1, 13)
    if PF & 2:
        srd(e, 52, 58, 1792*1024)
        e("v_lshlrev_b32 v2, 7, v0")
        e("buffer_load_dword v12, v2, s[52:55], s21 offen")
        e("s_add_u32 s21, s21, %d" % (128*8192))
        e("buffer_load_dword v12, v2, s[52:55], s21 offen")
    for ins in prep_compute(): e(ins)
    prep_gate(e)
    stamp(e, 2, 13)
    for i in range(4): e(f"v_mov_b32 v{8+i}, 0")
    e(f"v_add_u32 v7, s28, v1")
    e("v_cmp_gt_u32 vcc, 32, v0")
    e("s_and_saveexec_b64 s[52:53], vcc")
    e(f"ds_write_b128 v7, v[8:11] offset:{UR+4096}")
    e("s_mov_b64 exec, s[52:53]")
    e("v_add_u32 v7, s29, v7")
    e("s_waitcnt vmcnt(0)")
    e("s_barrier")
    e("s_cmp_lg_u32 s20, 0")
    e("s_cbranch_scc1 B_NOSIG")
    get_nonce(e, "B_N1", 48, 14, 54)
    e("s_lshl_b32 s54, s2, 7")
    e(f"s_add_u32 s54, s54, {F_U}")
    e("v_mov_b32 v8, s54")
    e("s_mov_b64 exec, 1")
    e(f"buffer_store_dwordx2 v[14:15], v8, s[60:63], 0 offen sc1")
    e("s_mov_b64 exec, -1")
    e.lab("B_NOSIG")
    stamp(e, 3, 13)
    for n in range(3):
        b = 16 + 8*n
        if n == 2:
            e("s_lshl_b32 s54, s25, 6")
            e("v_add_u32 v12, s54, v0")
            e("v_cmp_gt_u32 vcc, 4, v12")
            e("s_and_saveexec_b64 s[52:53], vcc")
            e("s_cbranch_execz CV_SKIPK")
        for i in range(5):
            e(f"v_alignbit_b32 v{48+i}, v{b+i+1}, v{b+i}, 16")
        for i in range(4):
            e(f"v_mov_b32 v{56+i}, v{49+i}")
            e(f"v_mov_b32 v{60+i}, v{b+1+i}")
        o = 2048*n
        e(f"ds_write_b128 v7, v[48:51] offset:{KC + 0*4160 + o}")
        e(f"ds_write_b128 v7, v[60:63] offset:{KC + 1*4160 + o}")
        e(f"ds_write_b128 v7, v[56:59] offset:{KC + 2*4160 + o}")
        e(f"ds_write_b128 v7, v[{b+2}:{b+5}] offset:{KC + 3*4160 + o}")
        if n == 2:
            e.lab("CV_SKIPK")
            e("s_mov_b64 exec, s[52:53]")
    e("v_and_b32 v4, 15, v0")
    e("v_lshrrev_b32 v5, 4, v0")
    e("v_and_b32 v6, 3, v0")
    e("s_movk_i32 s54, 4160")
    e("v_mul_lo_u32 v6, v6, s54")
    e("v_lshl_add_u32 v6, v5, 4, v6")
    e("v_and_b32 v8, 12, v0")
    e("v_lshl_add_u32 v6, v8, 1, v6")
    e("s_lshl_b32 s54, s25, 8")
    e("s_add_u32 s54, s54, s28")
    e("v_add_u32 v6, s54, v6")
    e("v_lshlrev_b32 v8, 5, v4")
    e("v_lshlrev_b32 v9, 4, v5")
    e("v_sub_u32 v8, v9, v8")
    e(f"s_add_u32 s54, s54, {UR + 4064 - 3584}")
    e("v_add_u32 v8, s54, v8")
    ACC = 224
    for i in range(32): e(f"v_mov_b32 v{ACC+i}, 0")
    e("v_and_b32 v10, 31, v0")
    e("v_lshlrev_b32 v10, 3, v10")
    e("s_and_b32 s54, s2, 7")
    e("v_add_u32 v10, s54, v10")
    e("v_lshlrev_b32 v10, 7, v10")
    e(f"v_add_u32 v10, {F_U}, v10")
    e("s_cmp_lg_u32 s20, 0")
    e("s_cbranch_scc1 B_UG")
    e.lab("B_UP")
    e(f"buffer_load_dwordx2 v[48:49], v10, s[60:63], 0 offen sc1")
    e("s_waitcnt vmcnt(0)")
    e("v_cmp_ne_u32 vcc, v48, v14")
    e("v_cmp_ne_u32 s[54:55], v49, v15")
    e("s_nop 1")
    e("s_or_b64 vcc, vcc, s[54:55]")
    e("s_cmp_eq_u64 vcc, 0")
    e("s_cbranch_scc1 B_UG")
    e(f"s_sleep {PSL}")
    e("s_branch B_UP")
    e.lab("B_UG")
    e("s_barrier")
    stamp(e, 4, 13)
    e("s_lshl_b32 s29, s25, 11")
    e("s_add_u32 s30, s27, s29")
    e("s_add_u32 s31, s28, s29")
    e(f"s_add_u32 m0, s31, {UR}")
    e("s_nop 0")
    e("buffer_load_dwordx4 v1, s[36:39], s30 offen sc1 lds")
    e("buffer_load_dwordx4 v1, s[36:39], s30 offen offset:1024 sc1 lds")
    e("s_waitcnt vmcnt(0) lgkmcnt(0)")
    e("s_barrier")
    stamp(e, 5, 13)
    SETS = [64, 128]
    def loads_l(rr):
        b = SETS[rr & 1]
        L = []
        for a in range(8):
            L.append(f"ds_read_b128 v[{b+32+4*a}:{b+35+4*a}], v8 offset:{512*(7-a) + 64*rr}")
            for h in range(2):
                L.append(f"ds_read_b64 v[{b+4*a+2*h}:{b+4*a+2*h+1}], v6 offset:{64*rr + 512*a + 8*h}")
        return L
    for x in loads_l(0): e(x)
    for rr in range(4):
        b = SETS[rr & 1]
        e("s_waitcnt lgkmcnt(0)")
        nxt = loads_l(rr + 1) if rr < 3 else []
        n = 0
        for s in range(8):
            for a in range(s + 1):
                bb = s - a
                d = ACC + 4*s
                e(f"v_mfma_f32_16x16x32_bf16 v[{d}:{d+3}], v[{b+4*a}:{b+4*a+3}], v[{b+32+4*bb}:{b+35+4*bb}], v[{d}:{d+3}]")
                if nxt: e(nxt.pop(0))
        assert not nxt
    e("s_nop 7")
    stamp(e, 6, 13)
    e(f"s_add_u32 s54, s28, {RED}")
    e("v_add_u32 v9, s54, v1")
    e("s_cmp_eq_u32 s25, 0")
    e("s_cbranch_scc1 CV_X0")
    for nt in range(4):
        e(f"ds_write_b128 v9, v[{ACC+4*nt}:{ACC+4*nt+3}] offset:{1024*nt}")
    e("s_waitcnt lgkmcnt(0)")
    e("s_barrier")
    for nt in range(4):
        e(f"ds_read_b128 v[{64+4*nt}:{67+4*nt}], v9 offset:{1024*(4+nt)}")
    e("s_waitcnt lgkmcnt(0)")
    for i in range(16):
        e(f"v_add_f32 v{64+i}, v{64+i}, v{ACC+16+i}")
    e("s_branch CV_FIN")
    e.lab("CV_X0")
    for nt in range(4):
        e(f"ds_write_b128 v9, v[{ACC+16+4*nt}:{ACC+16+4*nt+3}] offset:{1024*(4+nt)}")
    e("s_waitcnt lgkmcnt(0)")
    e("s_barrier")
    for nt in range(4):
        e(f"ds_read_b128 v[{64+4*nt}:{67+4*nt}], v9 offset:{1024*nt}")
    e("s_waitcnt lgkmcnt(0)")
    for i in range(16):
        e(f"v_add_f32 v{64+i}, v{64+i}, v{ACC+i}")
    e.lab("CV_FIN")
    e("v_lshlrev_b32 v10, 4, v4")
    e("v_lshl_add_u32 v10, v5, 2, v10")
    e("s_lshl_b32 s54, s25, 10")
    e("v_add_u32 v10, s54, v10")
    e(f"s_add_u32 s55, s28, {UR + 2*2044 - 512*3}")
    e("v_lshlrev_b32 v11, 1, v10")
    e("v_sub_u32 v11, s55, v11")
    for t in range(4):
        e(f"ds_read_b64 v[{80+2*t}:{81+2*t}], v11 offset:{512*(3-t)}")
    e("v_lshlrev_b32 v3, 16, v3")
    e("s_mov_b32 s56, 0xffff0000")
    e("v_lshlrev_b32 v12, 1, v10")
    e("v_add_u32 v12, s27, v12")
    e("s_waitcnt lgkmcnt(0)")
    for t in range(4):
        y = 64 + 4*t; kq = 80 + 2*t
        e(f"v_and_b32 v96, s56, v{kq+1}")
        e(f"v_lshlrev_b32 v97, 16, v{kq+1}")
        e(f"v_and_b32 v98, s56, v{kq}")
        e(f"v_lshlrev_b32 v99, 16, v{kq}")
        for i in range(4): e(f"v_mul_f32 v{96+i}, v{96+i}, v3")
        e("v_cvt_pk_bf16_f32 v100, v96, v97")
        e("v_cvt_pk_bf16_f32 v101, v98, v99")
        e(f"v_cvt_pk_bf16_f32 v102, v{y}, v{y+1}")
        e(f"v_cvt_pk_bf16_f32 v103, v{y+2}, v{y+3}")
        for i in range(2):
            e(f"v_lshlrev_b32 v{96+2*i}, 16, v{100+i}")
            e(f"v_and_b32 v{97+2*i}, s56, v{100+i}")
            e(f"v_lshlrev_b32 v{104+2*i}, 16, v{102+i}")
            e(f"v_and_b32 v{105+2*i}, s56, v{102+i}")
        for i in range(4): e(f"v_add_f32 v{96+i}, v{96+i}, v{104+i}")
        e(f"v_cvt_pk_bf16_f32 v{108+2*t}, v96, v97")
        e(f"v_cvt_pk_bf16_f32 v{109+2*t}, v98, v99")
        e(f"buffer_store_dwordx2 v[{108+2*t}:{109+2*t}], v12, s[40:43], 0 offen offset:{512*t} sc1")
    stamp(e, 7, 13)
    e("s_waitcnt vmcnt(0)")
    stamp(e, 8, 13)
    stamp_store(e, 13, 1, 18)
    e("s_barrier")
    e("s_cmp_lg_u32 s20, 0")
    e("s_cbranch_scc1 F_END")
    e("s_and_b32 s54, s2, 7")
    e("s_lshl_b32 s54, s54, 5")
    e("s_lshr_b32 s55, s2, 3")
    e("s_add_u32 s54, s54, s55")
    e("s_lshl_b32 s54, s54, 7")
    e(f"s_add_u32 s54, s54, {F_Z}")
    e("v_mov_b32 v1, s54")
    e("s_mov_b64 exec, 1")
    e("buffer_store_dwordx2 v[14:15], v1, s[60:63], 0 offen sc1")
    e("s_endpgm")


def gen_fused(e):
    e.lab("fused_kernel")
    e("s_cmp_ge_u32 s2, 512")
    e("s_cbranch_scc1 F_END")
    e("v_lshrrev_b32 v1, 6, v0")
    e("v_and_b32 v0, 63, v0")
    e("s_nop 0")
    e("v_readfirstlane_b32 s20, v1")
    if SWAP: e("s_xor_b32 s2, s2, 256")
    e("s_cmp_ge_u32 s2, 256")
    e("s_cbranch_scc1 F_B")
    gen_typeA(e)
    e.lab("F_B")
    gen_typeB(e)
    e.lab("F_END")
    e("s_endpgm")

def kdesc(name, vgpr, sgpr=96):
    return f""".amdhsa_kernel {name}
  .amdhsa_next_free_vgpr {vgpr}
  .amdhsa_next_free_sgpr {sgpr}
  .amdhsa_accum_offset {(vgpr+3)//4*4}
  .amdhsa_group_segment_fixed_size 0
  .amdhsa_kernarg_size 104
  .amdhsa_user_sgpr_count 2
  .amdhsa_user_sgpr_kernarg_segment_ptr 1
  .amdhsa_system_sgpr_workgroup_id_x 1
.end_amdhsa_kernel
"""

def main(out):
    e = E()
    hdr = "; @launch kernel=fused_kernel grid=(512,1,1) block=(256,1,1) lds=81920\n"
    hdr += '.amdgcn_target "amdgcn-amd-amdhsa--gfx950"\n.text\n'
    body = ".globl fused_kernel\n.p2align 8\n.type fused_kernel,@function\n"
    gen_fused(e)
    body += e.text()
    ro = '.section .rodata,"a"\n.p2align 6\n' + kdesc("fused_kernel", 256, 102)
    open(out, "w").write(hdr + body + ro)

if __name__ == "__main__":
    main(sys.argv[1] if len(sys.argv) > 1 else "k.s")
```

```python
import sys

KN = "gated_mix__ssm_conv_h3__dense_activation_relu__prompt"
WS_H = 0
WS_H_SIZE = 64*112*1024
WS_U = 0x800000
WS_G = 0xA00000
WS_Z = 0xB00000

class E:
    def __init__(self): self.l = []
    def __call__(self, s): self.l.append("    " + s)
    def lab(self, s): self.l.append(s + ":")
    def c(self, s): self.l.append("    ; " + s)
    def text(self): return "\n".join(self.l) + "\n"

import os
PROF = int(os.environ.get("PROF", "0"))
WS_P = 0xE00000
def stamp(e, idx, vr):
    if not PROF: return
    e("s_memrealtime s[100:101]")
    e("s_waitcnt lgkmcnt(0)")
    e(f"v_writelane_b32 v{vr}, s100, {idx}")
def stamp_store(e, vr, kidx, ws_lo):
    if not PROF: return
    e("s_getreg_b32 s100, hwreg(HW_REG_HW_ID)")
    e("s_getreg_b32 s101, hwreg(HW_REG_XCC_ID)")
    e(f"v_writelane_b32 v{vr}, s100, 14")
    e(f"v_writelane_b32 v{vr}, s101, 15")
    e(f"s_add_u32 s96, s{ws_lo}, {WS_P + kidx*0x40000:#x}")
    e(f"s_addc_u32 s97, s{ws_lo+1}, 0")
    e("s_mov_b32 s98, 0x40000")
    e("s_mov_b32 s99, 0x00020000")
    e("s_lshl_b32 s100, s2, 8")
    e("s_lshl_b32 s101, s20, 6")
    e("s_add_u32 s100, s100, s101")
    e("v_and_b32 v1, 15, v0")
    e("v_lshlrev_b32 v1, 2, v1")
    e("s_mov_b64 exec, 0xffff")
    e(f"buffer_store_dword v{vr}, v1, s[96:99], s100 offen")
    e("s_mov_b64 exec, -1")

def srd(e, sd, sp, size, off=0):
    if off:
        e(f"s_add_u32 s{sd}, s{sp}, {off:#x}")
        e(f"s_addc_u32 s{sd+1}, s{sp+1}, 0")
    else:
        e(f"s_mov_b32 s{sd}, s{sp}")
        e(f"s_mov_b32 s{sd+1}, s{sp+1}")
    e(f"s_mov_b32 s{sd+2}, {size:#x}")
    e(f"s_mov_b32 s{sd+3}, 0x00020000")

PB = 128
def prep_setup(e):
    P = PB
    e("s_lshr_b32 s60, s2, 3")
    e("s_and_b32 s61, s2, 7")
    srd(e, 64, 6, 2048*1024)
    srd(e, 68, 8, 2048*1024)
    srd(e, 72, 10, 512*8)
    srd(e, 76, 18, 512*4096, WS_U)
    srd(e, 80, 4, 2048*1024)
    srd(e, 84, 16, 1024)
    srd(e, 88, 18, 8192, WS_G)
    e(f"v_and_b32 v{P+1}, 31, v0")
    e(f"v_lshrrev_b32 v{P+2}, 5, v0")
    e("s_lshl_b32 s62, s20, 1")
    e(f"v_add_u32 v{P+2}, s62, v{P+2}")
    e("s_lshl_b32 s62, s60, 6")
    e(f"v_lshl_add_u32 v{P+3}, v{P+2}, 3, s62")
    e(f"v_lshlrev_b32 v{P+4}, 10, v{P+3}")
    e("s_lshl_b32 s63, s61, 7")
    e(f"v_lshl_add_u32 v{P+5}, v{P+1}, 2, s63")
    e(f"v_add_u32 v{P+4}, v{P+4}, v{P+5}")
    for i in range(11):
        e(f"v_add_u32 v{P+6}, {(i-3)*1024 & 0xffffffff:#x}, v{P+4}")
        e(f"buffer_load_dword v{P+16+i}, v{P+6}, s[64:67], 0 offen")
    for i in range(8):
        if i < 4:
            e(f"buffer_load_dword v{P+32+i}, v{P+4}, s[68:71], 0 offen offset:{i*1024}")
        else:
            if i == 4: e(f"v_add_u32 v{P+6}, 4096, v{P+4}")
            e(f"buffer_load_dword v{P+32+i}, v{P+6}, s[68:71], 0 offen offset:{(i-4)*1024}")
    e(f"v_lshlrev_b32 v{P+6}, 2, v{P+5}")
    e(f"buffer_load_dwordx4 v[{P+40}:{P+43}], v{P+6}, s[72:75], 0 offen")
    e("s_lshl_b32 s92, s2, 3")
    e("s_lshl_b32 s93, s20, 1")
    e("s_add_u32 s92, s92, s93")
    e("s_lshl_b32 s93, s92, 10")
    e(f"v_lshlrev_b32 v{P+7}, 4, v0")
    e(f"buffer_load_dwordx4 v[{P+44}:{P+47}], v{P+7}, s[80:83], s93 offen")
    e(f"buffer_load_dwordx4 v[{P+48}:{P+51}], v{P+7}, s[80:83], s93 offen offset:1024")
    e(f"buffer_load_dwordx4 v[{P+52}:{P+55}], v{P+7}, s[84:87], 0 offen")
    e("s_mov_b32 s94, 0xffff0000")
    e("s_mov_b32 s95, 0x05040100")
    e("s_mov_b32 s96, 0x07060302")
    e(f"v_lshlrev_b32 v{P+8}, 1, v{P+1}")
    e("s_lshl_b32 s93, s61, 6")
    e(f"v_add_u32 v{P+8}, s93, v{P+8}")
    e(f"v_lshlrev_b32 v{P+8}, 12, v{P+8}")
    e(f"v_sub_u32 v{P+9}, 2040, v{P+3}")
    e(f"v_lshl_add_u32 v{P+8}, v{P+9}, 1, v{P+8}")
    e(f"v_add_u32 v{P+9}, 4096, v{P+8}")
NPREP_LOADS = 11 + 8 + 1 + 3

def prep_compute():
    P = PB
    L = []
    e = L.append
    for j in range(4):
        for ch in range(2):
            src = P + 40 + 2*ch + (j >> 1)
            if j & 1: e(f"v_and_b32 v{P+56+2*j+ch}, s94, v{src}")
            else:     e(f"v_lshlrev_b32 v{P+56+2*j+ch}, 16, v{src}")
    for i in range(11):
        e(f"v_lshlrev_b32 v{P+64+2*i}, 16, v{P+16+i}")
        e(f"v_and_b32 v{P+65+2*i}, s94, v{P+16+i}")
    def rb(dst, src, tmp):
        e(f"v_cvt_pk_bf16_f32 v{tmp}, v{src}, v{src+1}")
        e(f"v_lshlrev_b32 v{dst}, 16, v{tmp}")
        e(f"v_and_b32 v{dst+1}, s94, v{tmp}")
    for r in range(8):
        S, Q, T = P+88, P+90, P+92
        e(f"v_pk_mul_f32 v[{S}:{S+1}], v[{P+64+2*r}:{P+65+2*r}], v[{P+62}:{P+63}]")
        rb(S, S, T)
        for j in (2, 1, 0):
            e(f"v_pk_mul_f32 v[{Q}:{Q+1}], v[{P+64+2*(r+3-j)}:{P+65+2*(r+3-j)}], v[{P+56+2*j}:{P+57+2*j}]")
            rb(Q, Q, T)
            e(f"v_pk_add_f32 v[{S}:{S+1}], v[{S}:{S+1}], v[{Q}:{Q+1}]")
            rb(S, S, T)
        e(f"v_lshlrev_b32 v{Q}, 16, v{P+32+r}")
        e(f"v_and_b32 v{Q+1}, s94, v{P+32+r}")
        e(f"v_pk_mul_f32 v[{S}:{S+1}], v[{S}:{S+1}], v[{Q}:{Q+1}]")
        e(f"v_cvt_pk_bf16_f32 v{P+96+r}, v{S}, v{S+1}")
    for m in range(4):
        e(f"v_perm_b32 v{P+104+m}, v{P+96+6-2*m}, v{P+96+7-2*m}, s95")
        e(f"v_perm_b32 v{P+108+m}, v{P+96+6-2*m}, v{P+96+7-2*m}, s96")
    e(f"buffer_store_dwordx4 v[{P+104}:{P+107}], v{P+8}, s[76:79], 0 offen sc1")
    e(f"buffer_store_dwordx4 v[{P+108}:{P+111}], v{P+9}, s[76:79], 0 offen sc1")
    return L

def prep_gate(e):
    P = PB
    def rb(dst, src, tmp):
        e(f"v_cvt_pk_bf16_f32 v{tmp}, v{src}, v{src+1}")
        e(f"v_lshlrev_b32 v{dst}, 16, v{tmp}")
        e(f"v_and_b32 v{dst+1}, s94, v{tmp}")
    G = P + 112
    A = P + 120
    X = P + 122; T = P + 124
    for i in range(4):
        e(f"v_lshlrev_b32 v{G+2*i}, 16, v{P+52+i}")
        e(f"v_and_b32 v{G+1+2*i}, s94, v{P+52+i}")
    for row in range(2):
        q = P + 44 + 4*row
        for i in range(4):
            e(f"v_lshlrev_b32 v{X}, 16, v{q+i}")
            e(f"v_and_b32 v{X+1}, s94, v{q+i}")
            e(f"v_pk_mul_f32 v[{X}:{X+1}], v[{X}:{X+1}], v[{G+2*i}:{G+1+2*i}]")
            rb(X, X, T)
            if i == 0: e(f"v_add_f32 v{A+row}, v{X}, v{X+1}")
            else:
                e(f"v_add_f32 v{A+row}, v{A+row}, v{X}")
                e(f"v_add_f32 v{A+row}, v{A+row}, v{X+1}")
    for sh in ("row_shr:1", "row_shr:2", "row_shr:4", "row_shr:8"):
        e("s_nop 1")
        for row in range(2):
            e(f"v_add_f32_dpp v{A+row}, v{A+row}, v{A+row} {sh} bound_ctrl:0")
    e("s_nop 1")
    for row in range(2):
        e(f"v_add_f32_dpp v{A+row}, v{A+row}, v{A+row} row_bcast:15 row_mask:0xa")
    e("s_nop 1")
    for row in range(2):
        e(f"v_add_f32_dpp v{A+row}, v{A+row}, v{A+row} row_bcast:31 row_mask:0xc")
    e("s_nop 1")
    e(f"v_readlane_b32 s98, v{A}, 63")
    e(f"v_readlane_b32 s99, v{A+1}, 63")
    e("s_nop 3")
    e(f"v_mov_b32 v{A}, s98")
    e(f"v_mov_b32 v{A+1}, s99")
    rb(A, A, T)
    e(f"v_mul_f32 v{A}, 0xbfb8aa3b, v{A}")
    e(f"v_mul_f32 v{A+1}, 0xbfb8aa3b, v{A+1}")
    e(f"v_exp_f32 v{A}, v{A}")
    e(f"v_exp_f32 v{A+1}, v{A+1}")
    e("s_nop 0")
    e(f"v_add_f32 v{A}, 1.0, v{A}")
    e(f"v_add_f32 v{A+1}, 1.0, v{A+1}")
    e(f"v_rcp_f32 v{A}, v{A}")
    e(f"v_rcp_f32 v{A+1}, v{A+1}")
    e("s_nop 0")
    rb(A, A, T)
    e("s_lshl_b32 s93, s92, 2")
    e(f"v_mov_b32 v{X}, s93")
    e("v_cmp_eq_u32 vcc, 0, v0")
    e("s_and_saveexec_b64 s[98:99], vcc")
    e(f"buffer_store_dwordx2 v[{A}:{A+1}], v{X}, s[88:91], 0 offen sc1")
    e("s_mov_b64 exec, s[98:99]")

class VM:
    def __init__(s): s.q = []
    def issue(s, tag): s.q.append(tag)
    def need(s, tags):
        idx = max([i for i, t in enumerate(s.q) if t in tags] + [-1])
        return len(s.q) - 1 - idx
    def clear(s): s.q = []

CNT_H, CNT_U, CNT_Z = 0, 32, 48
SWAP = int(os.environ.get('SWAP','0'))
PRIOA = int(os.environ.get('PRIOA','2'))
PRIOB = int(os.environ.get('PRIOB','0'))
PF = int(os.environ.get('PF','1'))
G1ONLY = int(os.environ.get('G1ONLY','0'))
NOTR = int(os.environ.get('NOTR','0'))
NOMF = int(os.environ.get('NOMF','0'))
NOLDS = int(os.environ.get('NOLDS','0'))
NOBAR = int(os.environ.get('NOBAR','0'))
ROT = int(os.environ.get('ROT','1'))
NOVM = int(os.environ.get('NOVM','0'))
NODMA = int(os.environ.get('NODMA','0'))
REP2 = int(os.environ.get('REP2','0'))
G2W = int(os.environ.get('G2W','6'))
EARLYW = int(os.environ.get('EARLYW','1'))
PP = int(os.environ.get('PP','0'))
KLATE = int(os.environ.get('KLATE','0'))
PFSL = int(os.environ.get('PFSL','1'))
MAP2 = int(os.environ.get('MAP2','0'))
BSTOP = int(os.environ.get('BSTOP','0'))
PSL = int(os.environ.get('PSL','8'))
SLEEP0 = int(os.environ.get('SLEEP0','1'))
WS_F = 0xF00000
F_H, F_U, F_Z = 0, 0x8000, 0x10000
SV = 15

def get_nonce(e, lab, dbg, vr, st):
    e.lab(lab)
    e(f"v_mov_b32 v{vr+1}, 0")
    e(f"buffer_load_dwordx2 v[{vr}:{vr+1}], v{vr+1}, s[{dbg}:{dbg+3}], 0 offen sc1")
    e("s_waitcnt vmcnt(0)")
    e(f"v_readfirstlane_b32 s{st}, v{vr}")
    e(f"s_cmp_lg_u32 s{st}, 0")
    e(f"s_cbranch_scc1 {lab}_OK")
    e("s_sleep 4")
    e(f"s_branch {lab}")
    e.lab(lab + "_OK")

def gen_typeA(e):
    e("s_load_dwordx2 s[4:5], s[0:1], 0")
    e("s_load_dwordx2 s[14:15], s[0:1], 56")
    e("s_load_dwordx2 s[18:19], s[0:1], 96")
    e("s_load_dwordx4 s[64:67], s[0:1], 64")
    e("s_load_dwordx4 s[68:71], s[0:1], 80")
    if PRIOA: e(f"s_setprio {PRIOA}")
    e("s_and_b32 s21, s2, 7")
    e("s_lshr_b32 s22, s2, 3")
    if MAP2:
        e("s_mul_i32 s23, s22, 37")
        e("s_lshr_b32 s23, s23, 8")
        e("s_lshr_b32 s25, s21, 1")
        e("s_lshl_b32 s25, s25, 2")
        e("s_add_u32 s25, s25, s23")
        e("s_mul_i32 s23, s23, 7")
        e("s_sub_u32 s26, s22, s23")
        e("s_and_b32 s23, s21, 1")
        e("s_mul_i32 s23, s23, 7")
        e("s_add_u32 s26, s26, s23")
    else:
        e("s_cmp_ge_u32 s22, 14")
        e("s_cselect_b32 s23, 1, 0")
        e("s_lshl_b32 s25, s21, 1")
        e("s_add_u32 s25, s25, s23")
        e("s_mul_i32 s23, s23, 14")
        e("s_sub_u32 s26, s22, s23")
    e("s_lshl_b32 s48, s21, 2")
    e("s_lshr_b32 s49, s22, 3")
    e("s_add_u32 s48, s48, s49")
    e("s_and_b32 s49, s22, 7")
    S = 5
    e("s_mul_i32 s56, s20, %d" % (S*4096))
    e("s_lshl_b32 s57, s48, 1")
    e("s_mul_i32 s57, s57, 112")
    e("s_mul_i32 s58, s20, 28")
    e("s_add_u32 s57, s57, s58")
    e("s_lshl_b32 s57, s57, 10")
    e("s_add_u32 s58, s57, %d" % (112*1024))
    e("s_waitcnt lgkmcnt(0)")
    stamp(e, 0, SV)
    srd(e, 28, 4, 2048*1024)
    srd(e, 32, 14, 512*3584)
    srd(e, 72, 64, 1792*1024)
    srd(e, 76, 18, WS_H_SIZE, WS_H)
    srd(e, 80, 18, 512*4096, WS_Z)
    srd(e, 84, 18, 8192, WS_G)
    srd(e, 88, 4, 2048*1024)
    srd(e, 92, 70, 256)
    srd(e, 96, 68, 2048*1024)
    srd(e, 52, 18, 0x18000, WS_F)
    e("v_mov_b32 v1, 0")
    e("s_or_b32 s46, s2, s20")
    e("s_cmp_lg_u32 s46, 0")
    e("s_cbranch_scc1 A_NOPUB")
    e("s_memrealtime s[46:47]")
    e("s_waitcnt lgkmcnt(0)")
    e("s_or_b32 s46, s46, 1")
    e("v_mov_b32 v2, s46")
    e("v_mov_b32 v3, s47")
    e("s_mov_b64 exec, 1")
    e("buffer_store_dwordx2 v[2:3], v1, s[92:95], 0 offen sc1")
    e("s_mov_b64 exec, -1")
    e.lab("A_NOPUB")
    e("v_mov_b32 v1, 0")
    e("buffer_load_dwordx2 v[22:23], v1, s[92:95], 0 offen sc1")
    if PF & 1:
        e("s_lshr_b32 s46, s2, 3")
        e("s_lshl_b32 s46, s46, 2")
        e("s_add_u32 s46, s46, s20")
        e("s_lshl_b32 s46, s46, 13")
        e("v_lshlrev_b32 v1, 7, v0")
        e("buffer_load_dword v24, v1, s[32:35], s46 offen")
    if PF & 32:
        srd(e, 60, 18, 16 << 20)
        e("v_lshlrev_b32 v1, 20, v0")
        e("buffer_load_dword v24, v1, s[60:63], 0 offen")
        e("buffer_load_dword v24, v1, s[72:75], 0 offen")
        e("buffer_load_dword v24, v1, s[96:99], 0 offen")
    if PF & 4:
        e("s_lshr_b32 s46, s2, 3")
        e("s_cmp_ge_u32 s46, 8")
        e("s_cbranch_scc1 A_NOQPF")
        e("s_lshl_b32 s46, s46, 2")
        e("s_add_u32 s46, s46, s20")
        e("s_lshl_b32 s46, s46, 13")
        e("s_lshl_b32 s47, s21, 18")
        e("s_add_u32 s46, s46, s47")
        e("v_lshlrev_b32 v1, 7, v0")
        e("buffer_load_dword v24, v1, s[28:31], s46 offen")
        e.lab("A_NOQPF")
    e("s_cmp_ge_u32 s2, 224")
    if PF & 8:
        e("s_cbranch_scc0 A_G1")
        for _ in range(PFSL): e("s_sleep 64")
        e("s_sub_u32 s46, s2, 224")
        e("s_lshr_b32 s46, s46, 3")
        e("s_mul_i32 s46, s46, %d" % (3584*128))
        e("s_lshl_b32 s47, s20, 13")
        e("s_add_u32 s46, s46, s47")
        e("v_lshlrev_b32 v1, 7, v0")
        for it in range(14):
            e("buffer_load_dword v24, v1, s[72:75], s46 offen")
            if it < 13: e("s_add_u32 s46, s46, %d" % (256*128))
        e("s_branch A_PRE")
        e.lab("A_G1")
    else:
        e("s_cbranch_scc1 A_PRE")
    vm = VM()
    e("v_lshrrev_b32 v2, 3, v0")
    e("s_lshl_b32 s27, s25, 7")
    e("s_lshl_b32 s40, s20, 5")
    e("s_add_u32 s27, s27, s40")
    e("v_add_u32 v2, s27, v2")
    e("v_lshlrev_b32 v2, 10, v2")
    e("v_and_b32 v3, 7, v0")
    e("v_lshrrev_b32 v4, 4, v0")
    e("v_xor_b32 v3, v3, v4")
    e("v_lshl_add_u32 v2, v3, 4, v2")
    e("v_xor_b32 v3, 64, v2")
    e("s_lshl_b32 s40, s20, 3")
    e("v_add_u32 v5, s40, v4")
    e("s_movk_i32 s41, 3584")
    e("v_mul_lo_u32 v5, v5, s41")
    e("v_and_b32 v6, 15, v0")
    e("v_lshlrev_b32 v7, 2, v4")
    e("v_xor_b32 v6, v6, v7")
    e("v_lshl_add_u32 v5, v6, 4, v5")
    e("s_lshl_b32 s40, s26, 8")
    e("v_add_u32 v5, s40, v5")
    e("s_lshl_b32 s42, s20, 12")
    e("s_lshl_b32 s47, s20, 11")
    WB = 49152
    WR = 128
    NWR = 12
    NW = 3
    def dq(c, j):
        def f():
            e(f"s_add_u32 m0, s42, {(c%3)*16384 + j*1024}")
            if ROT:
                e(f"s_add_u32 s43, s50, {c*128}")
                e(f"s_and_b32 s43, s43, 1023")
                e(f"s_add_u32 s43, s43, {j*8192}")
            else:
                e(f"s_mov_b32 s43, {j*8192 + c*128}")
            e(f"buffer_load_dwordx4 v{2 + (j&1)}, s[28:31], s43 offen lds")
            vm.issue(("Q", c))
        return f
    def lw1(hc, j):
        def f():
            r = WR + 8*(hc % NWR) + 4*j
            if ROT:
                e(f"s_add_u32 s43, s51, {hc}")
                e(f"s_and_b32 s43, s43, 15")
                e(f"s_mul_i32 s43, s43, {32*3584}")
                e(f"s_add_u32 s43, s43, {4*j*3584}")
            else:
                e(f"s_mov_b32 s43, {(32*hc + 4*j)*3584}")
            e(f"buffer_load_dwordx4 v[{r}:{r+3}], v5, s[32:35], s43 offen")
            vm.issue(("W", hc))
        return f
    def lw(hc):
        for j in range(2): lw1(hc, j)()
    e("s_and_b32 s51, s26, 7")
    e("s_lshl_b32 s50, s51, 7")
    e("s_lshl_b32 s51, s51, 1")
    for c in range(3):
        for j in range(4): dq(c, j)()
        lw(2*c); lw(2*c+1)
    for hc in range(6, NWR): lw(hc)
    e("s_and_b32 s44, s20, 1")
    e("s_lshr_b32 s45, s20, 1")
    e("v_and_b32 v6, 31, v0")
    e("v_lshrrev_b32 v7, 5, v0")
    e("v_bfe_u32 v8, v0, 1, 3")
    e("v_xor_b32 v8, v8, v7")
    e("v_lshlrev_b32 v8, 4, v8")
    e("v_lshl_add_u32 v8, v6, 7, v8")
    e("s_lshl_b32 s46, s44, 13")
    e("v_add_u32 v8, s46, v8")
    for k in range(4):
        e(f"v_xor_b32 v{10+k}, {32*k}, v8")
    e("v_bfe_u32 v6, v0, 2, 2")
    e("v_lshrrev_b32 v7, 5, v0")
    e("v_lshl_add_u32 v7, v7, 3, v6")
    e("v_lshlrev_b32 v7, 8, v7")
    e("v_bfe_u32 v9, v0, 4, 1")
    e("v_lshl_add_u32 v7, v9, 5, v7")
    e("v_and_b32 v9, 3, v0")
    e("v_lshl_add_u32 v7, v9, 3, v7")
    e(f"v_add_u32 v7, {WB}, v7")
    e("s_lshl_b32 s46, s45, 1")
    e("v_xor_b32 v9, s46, v6")
    e("v_lshl_add_u32 v18, v9, 6, v7")
    e("v_xor_b32 v19, 64, v18")
    e("v_lshlrev_b32 v20, 4, v0")
    e("v_add_u32 v20, s47, v20")
    e(f"v_add_u32 v20, {WB}, v20")
    ACC = 64
    for i in range(64):
        e(f"v_mov_b32 v{ACC+i}, 0")
    FR = [32, 48, 224]
    lg = VM()
    def ww_l(hc):
        L = []
        for j in range(2):
            def f(j=j):
                r = WR + 8*(hc % NWR) + 4*j
                e(f"ds_write_b128 v20, v[{r}:{r+3}] offset:{(hc%NW)*8192 + j*1024}")
                lg.issue(("w", hc))
            L.append(f)
        return L
    def ww(hc):
        for f in ww_l(hc): f()
    def rf_l(step):
        if NOLDS: return []
        c, k, hc, kk = step >> 2, step & 3, step >> 1, step & 1
        b = FR[step % 3]
        L = []
        for tj in range(2):
            def f(tj=tj):
                e(f"ds_read_b128 v[{b+8+4*tj}:{b+8+4*tj+3}], v{10+k} offset:{(c%3)*16384 + tj*4096}")
                lg.issue(("r", step))
            L.append(f)
        for fi in range(2):
            for h in range(2):
                def f(fi=fi, h=h):
                    e(f"ds_read_b64_tr_b16 v[{b+4*fi+2*h}:{b+4*fi+2*h+1}], v{18+fi} offset:{(hc%NW)*8192 + kk*4096 + h*1024}")
                    lg.issue(("r", step))
                L.append(f)
        return L
    def read_frags(step):
        for f in rf_l(step): f()
    pend = []
    def mfmas(step, ldsops):
        b = FR[step % 3]
        n = 0
        per = (len(ldsops) + 3) // 4
        for fi in range(2):
            for tj in range(2):
                d = ACC + 16*(2*fi+tj)
                if not NOMF: e(f"v_mfma_f32_32x32x16_bf16 v[{d}:{d+15}], v[{b+4*fi}:{b+4*fi+3}], v[{b+8+4*tj}:{b+8+4*tj+3}], v[{d}:{d+15}]")
                for _ in range(per):
                    if ldsops: ldsops.pop(0)()
                if pend:
                    f = pend.pop(0)
                    if not NODMA: f()
    stamp(e, 1, SV)
    e(f"s_waitcnt vmcnt({vm.need([('Q',0),('W',0),('W',1)])})")
    ww(0); ww(1)
    e("s_waitcnt lgkmcnt(0)")
    lg.clear()
    if REP2:
        e("s_mov_b32 s46, 0")
        e.lab("A_REP")
    stamp(e, 2, SV)
    if G1ONLY:
        e("s_memtime s[100:101]"); e("s_waitcnt lgkmcnt(0)"); e(f"v_writelane_b32 v{SV}, s100, 10")
    e("s_barrier")
    read_frags(0); read_frags(1)
    NS = 32
    for step in range(NS):
        hc, c = step >> 1, step >> 2
        e(f"s_waitcnt lgkmcnt({lg.need([('r', step)])})")
        ops = []
        if step & 1 == 0:
            tags = []
            if hc >= 1:
                if hc & 1 and (hc+1) >> 1 < 8: tags.append(("Q", (hc+1) >> 1))
            if hc + 2 < 16: tags.append(("W", hc+2))
            if hc == 0: tags.append(("Q", 0))
            if tags and not NOVM: e(f"s_waitcnt vmcnt({min(63, vm.need(tags))})")
            if hc >= 1:
                if not NOBAR: e("s_barrier")
                if hc in (4, 8, 12):
                    stamp(e, 2 + hc//4, SV); lg.clear()
            if hc + 2 < 16: ops += ww_l(hc + 2)
            if hc + NWR - 0 < 16 and hc >= 0:
                for j in range(2): pend.append(lw1(hc + NWR, j))
            if hc >= 2 and hc & 1 == 0 and (hc - 2)//2 + 3 < 8:
                for j in range(4): pend.append(dq((hc-2)//2 + 3, j))
        if step + 2 < NS: ops = ops + rf_l(step + 2)
        mfmas(step, ops)
    e("s_barrier")
    assert not pend
    stamp(e, 6, SV)
    if G1ONLY:
        e("s_memtime s[100:101]"); e("s_waitcnt lgkmcnt(0)"); e(f"v_writelane_b32 v{SV}, s100, 11")
    if REP2:
        e("s_add_u32 s46, s46, 1")
        e("s_cmp_lt_u32 s46, 2")
        e("s_cbranch_scc1 A_REP")
    def issue(ci):
        sl = ci % S
        for jj in range(4):
            e(f"s_add_u32 m0, s56, {sl*4096 + jj*1024}")
            e(f"s_mov_b32 s59, {(32*ci + 8*jj)*1024}")
            e(f"buffer_load_dwordx4 v208, s[72:75], s59 offen lds")
            vm.issue(("w2", ci))
    def pre_issue():
        e("v_lshrrev_b32 v2, 3, v0")
        e("s_mul_i32 s46, s20, 448")
        e("v_add_u32 v2, s46, v2")
        e("v_lshlrev_b32 v2, 10, v2")
        e("v_and_b32 v3, 7, v0")
        e("v_bfe_u32 v4, v0, 4, 1")
        e("v_lshlrev_b32 v4, 2, v4")
        e("v_xor_b32 v3, v3, v4")
        e("v_lshl_add_u32 v2, v3, 4, v2")
        e("s_lshl_b32 s46, s49, 7")
        e("v_add_u32 v208, s46, v2")
        e("v_lshlrev_b32 v209, 4, v0")
        for ci in range(S): issue(ci)
    if EARLYW: pre_issue()
    e("v_lshlrev_b32 v209, 4, v0")
    e("s_lshl_b32 s46, s25, 2")
    e("s_lshl_b32 s47, s44, 1")
    e("s_add_u32 s46, s46, s47")
    e("s_mul_i32 s46, s46, 112")
    e("s_lshl_b32 s47, s26, 3")
    e("s_add_u32 s46, s46, s47")
    e("s_lshl_b32 s47, s45, 2")
    e("s_add_u32 s46, s46, s47")
    e("s_lshl_b32 s46, s46, 10")
    e("v_add_u32 v2, s46, v209")
    e("v_add_u32 v3, 112*1024, v2")
    for fi in range(2):
        for tj in range(2):
            d = ACC + 16*(2*fi+tj)
            for kq in range(2):
                p = 32 + 4*((2*tj+kq) & 3)
                for x in range(4):
                    i0 = d + 8*kq + 2*x
                    e(f"v_max_f32 v{i0}, 0, v{i0}")
                    e(f"v_max_f32 v{i0+1}, 0, v{i0+1}")
                for x in range(4):
                    i0 = d + 8*kq + 2*x
                    e(f"v_cvt_pk_bf16_f32 v{p+x}, v{i0}, v{i0+1}")
                e("s_nop 1")
                e(f"v_permlane32_swap_b32 v{p}, v{p+2}")
                e(f"v_permlane32_swap_b32 v{p+1}, v{p+3}")
                e(f"buffer_store_dwordx4 v[{p}:{p+3}], v{2+tj}, s[76:79], 0 offen offset:{(2*fi+kq)*1024} sc1")
    stamp(e, 7, SV)
    e("s_waitcnt vmcnt(0)")
    e("s_barrier")
    stamp(e, 8, SV)
    e("s_cmp_lg_u32 s20, 0")
    e("s_cbranch_scc1 A_PRE")
    e("v_mov_b32 v220, v22")
    e("v_mov_b32 v221, v23")
    e("v_readfirstlane_b32 s46, v22")
    e("s_cmp_lg_u32 s46, 0")
    e("s_cbranch_scc1 A_N1_OK")
    get_nonce(e, "A_N1", 92, 220, 46)
    e("s_lshl_b32 s46, s25, 4")
    e("s_add_u32 s46, s46, s26")
    e("s_lshl_b32 s46, s46, 7")
    e("v_mov_b32 v1, s46")
    e("s_mov_b64 exec, 1")
    e(f"buffer_store_dwordx2 v[220:221], v1, s[52:55], 0 offen offset:{F_H} sc1")
    e("s_mov_b64 exec, -1")
    if EARLYW: e("s_branch A_PRE2")
    e.lab("A_PRE")
    pre_issue()
    e.lab("A_PRE2")
    e.lab("A_POLL")
    if G1ONLY:
        stamp_store(e, SV, 0, 18)
        e("s_endpgm")
    HB = 128
    BLK = [16, 32, 48, 128, 144, 160, 176, 192, 224, 240]
    def issue_h(ci):
        sl = ci % S
        e(f"s_add_u32 s59, s57, {ci*2048}")
        e(f"s_add_u32 s60, s58, {ci*2048}")
        for kl in range(2):
            for tj in range(2):
                r = HB + 16*sl + 8*kl + 4*tj
                e(f"buffer_load_dwordx4 v[{r}:{r+3}], v209, s[76:79], s{59+tj} offen offset:{kl*1024}")
                vm.issue(("h", ci))
    e("v_bfe_u32 v6, v0, 2, 2")
    e("v_lshrrev_b32 v7, 5, v0")
    e("v_lshl_add_u32 v7, v7, 3, v6")
    e("v_lshlrev_b32 v7, 7, v7")
    e("v_bfe_u32 v9, v0, 4, 1")
    e("v_lshl_add_u32 v7, v9, 5, v7")
    e("v_and_b32 v9, 3, v0")
    e("v_lshl_add_u32 v7, v9, 3, v7")
    e("v_lshrrev_b32 v9, 1, v6")
    e("v_lshl_add_u32 v8, v9, 6, v7")
    e("v_add_u32 v8, s56, v8")
    e("v_xor_b32 v9, 64, v8")
    e("v_and_b32 v10, 15, v0")
    e("v_lshrrev_b32 v11, 4, v0")
    e("s_lshl_b32 s59, s48, 6")
    e("s_lshl_b32 s60, s20, 4")
    e("s_add_u32 s59, s59, s60")
    e("v_add_u32 v12, s59, v10")
    e("v_lshlrev_b32 v13, 10, v12")
    e("v_lshl_add_u32 v13, v11, 4, v13")
    e("s_lshl_b32 s60, s49, 7")
    e("v_add_u32 v13, s60, v13")
    e("buffer_load_dwordx4 v[212:215], v13, s[88:91], 0 offen"); vm.issue(("q", 0))
    e("buffer_load_dwordx4 v[216:219], v13, s[88:91], 0 offen offset:64"); vm.issue(("q", 1))
    e("v_lshlrev_b32 v14, 2, v12")
    ACC = 64
    def treads(ci, b):
        sl = ci % S
        L = []
        for kl in range(2):
            for di in range(2):
                for h in range(2):
                    r = b + 8*kl + 4*di + 2*h
                    L.append(f"ds_read_b64_tr_b16 v[{r}:{r+1}], v{8+di} offset:{sl*4096 + kl*2048 + h*512}")
        return L
    for ci in range(G2W):
        e(f"s_waitcnt vmcnt({vm.need([('w2', ci)])})")
        for x in treads(ci, BLK[ci]): e(x)
        e("s_waitcnt lgkmcnt(0)")
        issue(ci + S)
    e("s_lshr_b32 s60, s48, 1")
    e("s_lshl_b32 s60, s60, 4")
    e("v_min_u32 v6, 13, v0")
    e("v_add_u32 v6, s60, v6")
    e("v_lshlrev_b32 v6, 7, v6")
    e("s_cmp_lg_u32 s20, 0")
    e("s_cbranch_scc1 A_HG")
    e("s_cmp_lt_u32 s2, 224")
    e("s_cbranch_scc1 A_HP")
    for _ in range(SLEEP0): e("s_sleep 64")
    get_nonce(e, "A_N2", 92, 220, 46)
    e.lab("A_HP")
    if PP:
        R = [222, 210, 2, 4]
        for k in range(3):
            e(f"buffer_load_dwordx2 v[{R[k]}:{R[k]+1}], v6, s[52:55], 0 offen offset:{F_H} sc1")
            e(f"s_sleep {PP}")
        e.lab("A_HPL")
        for k in range(4):
            n = R[(k + 3) % 4]; o = R[k]
            e(f"buffer_load_dwordx2 v[{n}:{n+1}], v6, s[52:55], 0 offen offset:{F_H} sc1")
            e("s_waitcnt vmcnt(3)")
            e(f"v_cmp_ne_u32 vcc, v{o}, v220")
            e(f"v_cmp_ne_u32 s[60:61], v{o+1}, v221")
            e("s_nop 1")
            e("s_or_b64 vcc, vcc, s[60:61]")
            e("s_cmp_eq_u64 vcc, 0")
            e("s_cbranch_scc1 A_HG2")
            e(f"s_sleep {PP}")
        e("s_branch A_HPL")
    else:
        e(f"buffer_load_dwordx2 v[222:223], v6, s[52:55], 0 offen offset:{F_H} sc1")
        e("s_waitcnt vmcnt(0)")
        e("v_cmp_ne_u32 vcc, v222, v220")
        e("v_cmp_ne_u32 s[60:61], v223, v221")
        e("s_nop 1")
        e("s_or_b64 vcc, vcc, s[60:61]")
        e("s_cmp_eq_u64 vcc, 0")
        e("s_cbranch_scc1 A_HG")
        e(f"s_sleep {PSL}")
        e("s_branch A_HP")
    e.lab("A_HG")
    e("s_waitcnt vmcnt(0)")
    e.lab("A_HG2")
    e("s_barrier")
    vm.clear()
    e("v_mov_b32 v1, 0")
    e("buffer_load_dwordx2 v[220:221], v1, s[92:95], 0 offen sc1")
    vm.issue(("nonce", 0))
    def issue_hb_l(ci, b):
        L = []
        for kl in range(2):
            for tj in range(2):
                def f(kl=kl, tj=tj):
                    r = b + 8*kl + 4*tj
                    e(f"s_add_u32 s60, s{57+tj}, {ci*2048}")
                    e(f"buffer_load_dwordx4 v[{r}:{r+3}], v209, s[76:79], s60 offen offset:{kl*1024}")
                    vm.issue(("h", ci))
                L.append(f)
        return L
    if G2W:
        Wb = {c: BLK[c] for c in range(G2W)}
        Hb = {}
        free = BLK[G2W:]
        nh = 0
        while free:
            Hb[nh] = free.pop(0)
            for f in issue_hb_l(nh, Hb[nh]): f()
            nh += 1
    else:
        for ci in range(S): issue_h(ci)
    stamp(e, 9, SV)
    for i in range(64): e(f"v_mov_b32 v{ACC+i}, 0")
    e("s_lshl_b32 s60, s49, 5")
    e("v_add_u32 v6, s60, v0")
    e("v_lshlrev_b32 v6, 7, v6")
    e(f"v_add_u32 v6, {F_Z}, v6")
    e("v_and_b32 v7, 7, v0")
    e("s_lshl_b32 s60, s48, 3")
    e("v_add_u32 v7, s60, v7")
    e("v_lshlrev_b32 v7, 7, v7")
    e(f"v_add_u32 v7, {F_U}, v7")
    e("v_cmp_gt_u32 vcc, 32, v0")
    e("v_cndmask_b32 v6, v7, v6, vcc")
    FR = [16, 32]
    def reads_l(ci):
        b = FR[ci & 1]; sl = ci % S
        L = []
        for kl in range(2):
            for di in range(2):
                for h in range(2):
                    r = b + 8*kl + 4*di + 2*h
                    L.append(f"ds_read_b64_tr_b16 v[{r}:{r+1}], v{8+di} offset:{sl*4096 + kl*2048 + h*512}")
        return L
    def issue_l(ci):
        L = []
        sl = ci % S
        for jj in range(4):
            def f(jj=jj):
                e(f"s_add_u32 m0, s56, {sl*4096 + jj*1024}")
                e(f"s_mov_b32 s59, {(32*ci + 8*jj)*1024}")
                e(f"buffer_load_dwordx4 v208, s[72:75], s59 offen lds")
                vm.issue(("w2", ci))
            L.append(f)
        return L
    def issue_h_l(ci):
        L = []
        sl = ci % S
        for kl in range(2):
            for tj in range(2):
                def f(kl=kl, tj=tj):
                    r = HB + 16*sl + 8*kl + 4*tj
                    e(f"s_add_u32 s60, s{57+tj}, {ci*2048}")
                    e(f"buffer_load_dwordx4 v[{r}:{r+3}], v209, s[76:79], s60 offen offset:{kl*1024}")
                    vm.issue(("h", ci))
                L.append(f)
        return L
    NCH = 14
    if G2W:
        for ci in range(NCH):
            tags = [("h", ci)] + ([("w2", ci+1)] if (ci + 1 < NCH and ci + 1 >= G2W + S) else [])
            e(f"s_waitcnt vmcnt({vm.need(tags)}) lgkmcnt(0)")
            rl = []; dl = []
            if ci + 1 < NCH and ci + 1 >= G2W:
                Wb[ci+1] = free.pop(0)
                rl = treads(ci + 1, Wb[ci+1])
            while free and nh < NCH:
                Hb[nh] = free.pop(0)
                dl += issue_hb_l(nh, Hb[nh]); nh += 1
            if ci >= G2W and ci + S < NCH: dl += issue_l(ci + S)
            if ci == 10:
                e("buffer_load_dwordx2 v[222:223], v6, s[52:55], 0 offen sc1"); vm.issue(("zf",0))
            for kl in range(2):
                for di in range(2):
                    for tj in range(2):
                        d = ACC + 16*(2*di+tj)
                        a = Wb[ci] + 8*kl + 4*di
                        hr = Hb[ci] + 8*kl + 4*tj
                        e(f"v_mfma_f32_32x32x16_bf16 v[{d}:{d+15}], v[{a}:{a+3}], v[{hr}:{hr+3}], v[{d}:{d+15}]")
                        for _ in range(2):
                            if rl: e(rl.pop(0))
                        for _ in range(2):
                            if dl: dl.pop(0)()
            assert not rl and not dl
            free += [Wb[ci], Hb[ci]]
        assert nh == NCH
    else:
      for x in reads_l(0): e(x)
    hq = []
    for ci in range(0 if G2W else NCH):
        tags = [("h", ci)] + ([("w2", ci+1)] if ci + 1 < NCH else [])
        e(f"s_waitcnt vmcnt({vm.need(tags)}) lgkmcnt(0)")
        rl = reads_l(ci + 1) if ci + 1 < NCH else []
        dl = issue_l(ci + S) if ci + S < NCH else []
        dl = hq + dl
        hq = issue_h_l(ci + S) if ci + S < NCH else []
        if ci == 10:
            e("buffer_load_dwordx2 v[222:223], v6, s[52:55], 0 offen sc1"); vm.issue(("zf",0))
        b = FR[ci & 1]; sl = ci % S
        for kl in range(2):
            for di in range(2):
                for tj in range(2):
                    d = ACC + 16*(2*di+tj)
                    a = b + 8*kl + 4*di
                    hr = HB + 16*sl + 8*kl + 4*tj
                    e(f"v_mfma_f32_32x32x16_bf16 v[{d}:{d+15}], v[{a}:{a+3}], v[{hr}:{hr+3}], v[{d}:{d+15}]")
                    if rl: e(rl.pop(0))
                    if rl: e(rl.pop(0))
                    if dl: dl.pop(0)()
        assert not rl and not dl
    assert not hq
    stamp(e, 10, SV)
    e("s_waitcnt vmcnt(0)")
    e("s_branch G2_CHK")
    e.lab("G2_POLL")
    e(f"s_sleep {PSL}")
    e("buffer_load_dwordx2 v[222:223], v6, s[52:55], 0 offen sc1")
    e("s_waitcnt vmcnt(0)")
    e.lab("G2_CHK")
    e("v_cmp_ne_u32 vcc, v222, v220")
    e("v_cmp_ne_u32 s[60:61], v223, v221")
    e("s_nop 1")
    e("s_or_b64 vcc, vcc, s[60:61]")
    e("s_cmp_eq_u64 vcc, 0")
    e("s_cbranch_scc0 G2_POLL")
    e.lab("G2_GO")
    stamp(e, 11, SV)
    e("s_lshl_b32 s60, s49, 6")
    e("v_lshl_add_u32 v6, v11, 3, s60")
    e("v_lshlrev_b32 v6, 12, v6")
    e("v_lshl_add_u32 v6, v12, 1, v6")
    for p in range(2):
        for i in range(8):
            e(f"s_mov_b32 s60, {(32*p + i)*4096}")
            e(f"buffer_load_ushort v{32+8*p+i}, v6, s[80:83], s60 offen sc1")
    e("buffer_load_dword v24, v14, s[84:87], 0 offen sc1")
    e("v_and_b32 v4, 31, v0")
    e("s_movk_i32 s60, 272")
    e("v_mul_lo_u32 v4, v4, s60")
    e("v_lshrrev_b32 v5, 5, v0")
    e("v_lshl_add_u32 v4, v5, 4, v4")
    e("v_add_u32 v4, s56, v4")
    for di in range(2):
        for tj in range(2):
            d = ACC + 16*(2*di+tj)
            for q in range(4):
                e(f"ds_write_b128 v4, v[{d+4*q}:{d+4*q+3}] offset:{tj*32*272 + di*128 + q*32}")
    e("s_waitcnt lgkmcnt(0)")
    e("s_barrier")
    e("s_lshl_b32 s60, s20, 4")
    e("v_add_u32 v5, s60, v10")
    e("s_movk_i32 s60, 272")
    e("v_mul_lo_u32 v5, v5, s60")
    e("v_lshl_add_u32 v5, v11, 5, v5")
    for pw in range(4):
        for p in range(2):
            for hh in range(2):
                r = 64 + 16*pw + 8*p + 4*hh
                e(f"ds_read_b128 v[{r}:{r+3}], v5 offset:{pw*S*4096 + p*128 + hh*16}")
    e("s_waitcnt lgkmcnt(0)")
    for i in range(16):
        e(f"v_add_f32 v{64+i}, v{64+i}, v{80+i}")
        e(f"v_add_f32 v{96+i}, v{96+i}, v{112+i}")
    for i in range(16):
        e(f"v_add_f32 v{64+i}, v{64+i}, v{96+i}")
    e("s_mov_b32 s62, 0xffff0000")
    def rb(a, t):
        e(f"v_cvt_pk_bf16_f32 v{t}, v{a}, v{a+1}")
        e(f"v_lshlrev_b32 v{a}, 16, v{t}")
        e(f"v_and_b32 v{a+1}, s62, v{t}")
    for i in range(8): rb(64+2*i, 25)
    e("s_waitcnt vmcnt(0)")
    e("v_sub_f32 v26, 1.0, v24")
    e("v_mov_b32 v27, v26")
    rb(26, 25)
    for i in range(16): e(f"v_mul_f32 v{64+i}, v{64+i}, v26")
    for i in range(8): rb(64+2*i, 25)
    for p in range(2):
        for i in range(4):
            qv = 212 + 4*p + i
            z0 = 32 + 8*p + 2*i
            e(f"v_lshlrev_b32 v96, 16, v{qv}")
            e(f"v_and_b32 v97, s62, v{qv}")
            e(f"v_lshlrev_b32 v98, 16, v{z0}")
            e(f"v_lshlrev_b32 v99, 16, v{z0+1}")
            e("v_mul_f32 v96, v96, v98")
            e("v_mul_f32 v97, v97, v99")
            rb(96, 25)
            e("v_mul_f32 v96, v96, v24")
            e("v_mul_f32 v97, v97, v24")
            rb(96, 25)
            o = 64 + 8*p + 2*i
            e(f"v_add_f32 v96, v96, v{o}")
            e(f"v_add_f32 v97, v97, v{o+1}")
            e(f"v_cvt_pk_bf16_f32 v{100+4*p+i}, v96, v97")
        e(f"buffer_store_dwordx4 v[{100+4*p}:{103+4*p}], v13, s[96:99], 0 offen offset:{64*p}")
    stamp(e, 12, SV)
    if PROF: e("s_waitcnt vmcnt(0)")
    stamp(e, 13, SV)
    stamp_store(e, SV, 0, 18)
    e("s_endpgm")

def gen_typeB(e):
    CH = 29440
    KC, UR, RED = 0, 16640, 21248
    e("s_sub_u32 s2, s2, 256")
    if G1ONLY and not BSTOP: e("s_endpgm")
    e("s_load_dwordx4 s[4:7], s[0:1], 0")
    e("s_load_dwordx4 s[8:11], s[0:1], 16")
    e("s_load_dwordx4 s[12:15], s[0:1], 32")
    e("s_load_dwordx2 s[16:17], s[0:1], 72")
    e("s_load_dwordx2 s[22:23], s[0:1], 88")
    e("s_load_dwordx2 s[18:19], s[0:1], 96")
    e("s_load_dwordx4 s[56:59], s[0:1], 56")
    if PRIOB: e(f"s_setprio {PRIOB}")
    e("s_lshr_b32 s24, s20, 1")
    e("s_and_b32 s25, s20, 1")
    e("s_and_b32 s26, s2, 7")
    e("s_lshl_b32 s26, s26, 6")
    e("s_lshr_b32 s27, s2, 3")
    e("s_lshl_b32 s27, s27, 1")
    e("s_add_u32 s26, s26, s27")
    e("s_add_u32 s26, s26, s24")
    e("s_lshl_b32 s27, s26, 12")
    e("s_mul_i32 s28, s24, %d" % CH)
    e("v_lshlrev_b32 v1, 4, v0")
    e("s_waitcnt lgkmcnt(0)")
    stamp(e, 0, 13)
    prep_setup(e)
    e("s_lshr_b32 s29, s2, 3")
    e("s_lshl_b32 s29, s29, 2")
    e("s_add_u32 s29, s29, s20")
    e("s_lshl_b32 s21, s29, 13")
    if PF & 1:
        srd(e, 52, 56, 512*3584)
        e("s_lshr_b32 s29, s2, 3")
        e("s_lshl_b32 s29, s29, 2")
        e("s_add_u32 s29, s29, s20")
        e("s_lshl_b32 s21, s29, 13")
        e("s_add_u32 s29, s21, %d" % (128*8192))
        e("v_lshlrev_b32 v2, 7, v0")
        e("buffer_load_dword v12, v2, s[52:55], s29 offen")
        e("s_and_b32 s30, s2, 7")
        e("s_lshl_b32 s30, s30, 18")
        e("s_add_u32 s30, s30, s21")
        e("s_sub_u32 s30, s30, %d" % (96*8192))
        e("s_cmp_lt_u32 s21, %d" % (96*8192))
        e("s_cbranch_scc1 B_NOQ")
        e("buffer_load_dword v12, v2, s[80:83], s30 offen")
        e.lab("B_NOQ")
    e("s_add_u32 s32, s12, s27"); e("s_addc_u32 s33, s13, 0"); e("s_mov_b32 s34, 4096"); e("s_mov_b32 s35, 0x00020000")
    srd(e, 36, 18, 512*4096, WS_U)
    srd(e, 40, 18, 512*4096, WS_Z)
    srd(e, 44, 14, 1024)
    srd(e, 48, 22, 256)
    srd(e, 60, 18, 0x18000, WS_F)
    def kloads():
        e("s_lshl_b32 s29, s26, 1")
        e("v_mov_b32 v2, s29")
        e("buffer_load_ushort v3, v2, s[44:47], 0 offen")
        e("s_lshl_b32 s29, s25, 10")
        e("v_add_u32 v4, s29, v1")
        for n in range(3):
            e(f"v_add_u32 v5, {(2048*n - 32) & 0xffffffff:#x}, v4")
            e(f"v_add_u32 v6, {(2048*n - 16) & 0xffffffff:#x}, v4")
            e(f"buffer_load_dwordx4 v[{16+8*n}:{19+8*n}], v5, s[32:35], 0 offen")
            e(f"buffer_load_dwordx4 v[{20+8*n}:{23+8*n}], v6, s[32:35], 0 offen")
    if not KLATE: kloads()
    if PRIOB: e(f"s_setprio {int(os.environ.get('PRIOB2','0'))}")
    e("s_waitcnt vmcnt(%d)" % (0 if KLATE else 7))
    stamp(e, 1, 13)
    if KLATE: kloads()
    if BSTOP == 1: e('s_waitcnt vmcnt(0) lgkmcnt(0)'); e('s_endpgm')
    if PF & 2:
        srd(e, 52, 58, 1792*1024)
        e("v_lshlrev_b32 v2, 7, v0")
        e("buffer_load_dword v12, v2, s[52:55], s21 offen")
        e("s_add_u32 s21, s21, %d" % (128*8192))
        e("buffer_load_dword v12, v2, s[52:55], s21 offen")
    pc = prep_compute()
    stamp(e, 9, 13)
    for ins in pc[:-2]: e(ins)
    stamp(e, 10, 13)
    for ins in pc[-2:]: e(ins)
    stamp(e, 11, 13)
    prep_gate(e)
    stamp(e, 2, 13)
    if BSTOP == 2: e('s_waitcnt vmcnt(0) lgkmcnt(0)'); e('s_endpgm')
    for i in range(4): e(f"v_mov_b32 v{8+i}, 0")
    e(f"v_add_u32 v7, s28, v1")
    e("v_cmp_gt_u32 vcc, 32, v0")
    e("s_and_saveexec_b64 s[52:53], vcc")
    e(f"ds_write_b128 v7, v[8:11] offset:{UR+4096}")
    e("s_mov_b64 exec, s[52:53]")
    e("v_add_u32 v7, s29, v7")
    e("s_waitcnt vmcnt(0)")
    e("s_barrier")
    e("s_cmp_lg_u32 s20, 0")
    e("s_cbranch_scc1 B_NOSIG")
    get_nonce(e, "B_N1", 48, 14, 54)
    e("s_lshl_b32 s54, s2, 7")
    e(f"s_add_u32 s54, s54, {F_U}")
    e("v_mov_b32 v8, s54")
    e("s_mov_b64 exec, 1")
    e(f"buffer_store_dwordx2 v[14:15], v8, s[60:63], 0 offen sc1")
    e("s_mov_b64 exec, -1")
    e.lab("B_NOSIG")
    if PF & 16:
        srd(e, 52, 58, 1792*1024)
        e("v_lshlrev_b32 v2, 7, v0")
        e("buffer_load_dword v200, v2, s[52:55], s21 offen")
        e("s_add_u32 s21, s21, %d" % (128*8192))
        e("buffer_load_dword v200, v2, s[52:55], s21 offen")
    stamp(e, 3, 13)
    if BSTOP == 3: e('s_waitcnt vmcnt(0) lgkmcnt(0)'); e('s_endpgm')
    for n in range(3):
        b = 16 + 8*n
        if n == 2:
            e("s_lshl_b32 s54, s25, 6")
            e("v_add_u32 v12, s54, v0")
            e("v_cmp_gt_u32 vcc, 4, v12")
            e("s_and_saveexec_b64 s[52:53], vcc")
            e("s_cbranch_execz CV_SKIPK")
        for i in range(5):
            e(f"v_alignbit_b32 v{48+i}, v{b+i+1}, v{b+i}, 16")
        for i in range(4):
            e(f"v_mov_b32 v{56+i}, v{49+i}")
            e(f"v_mov_b32 v{60+i}, v{b+1+i}")
        o = 2048*n
        e(f"ds_write_b128 v7, v[48:51] offset:{KC + 0*4160 + o}")
        e(f"ds_write_b128 v7, v[60:63] offset:{KC + 1*4160 + o}")
        e(f"ds_write_b128 v7, v[56:59] offset:{KC + 2*4160 + o}")
        e(f"ds_write_b128 v7, v[{b+2}:{b+5}] offset:{KC + 3*4160 + o}")
        if n == 2:
            e.lab("CV_SKIPK")
            e("s_mov_b64 exec, s[52:53]")
    e("v_and_b32 v4, 15, v0")
    e("v_lshrrev_b32 v5, 4, v0")
    e("v_and_b32 v6, 3, v0")
    e("s_movk_i32 s54, 4160")
    e("v_mul_lo_u32 v6, v6, s54")
    e("v_lshl_add_u32 v6, v5, 4, v6")
    e("v_and_b32 v8, 12, v0")
    e("v_lshl_add_u32 v6, v8, 1, v6")
    e("s_lshl_b32 s54, s25, 8")
    e("s_add_u32 s54, s54, s28")
    e("v_add_u32 v6, s54, v6")
    e("v_lshlrev_b32 v8, 5, v4")
    e("v_lshlrev_b32 v9, 4, v5")
    e("v_sub_u32 v8, v9, v8")
    e(f"s_add_u32 s54, s54, {UR + 4064 - 3584}")
    e("v_add_u32 v8, s54, v8")
    ACC = 224
    for i in range(32): e(f"v_mov_b32 v{ACC+i}, 0")
    e("v_and_b32 v10, 31, v0")
    e("v_lshlrev_b32 v10, 3, v10")
    e("s_and_b32 s54, s2, 7")
    e("v_add_u32 v10, s54, v10")
    e("v_lshlrev_b32 v10, 7, v10")
    e(f"v_add_u32 v10, {F_U}, v10")
    e("s_cmp_lg_u32 s20, 0")
    e("s_cbranch_scc1 B_UG")
    e.lab("B_UP")
    e(f"buffer_load_dwordx2 v[48:49], v10, s[60:63], 0 offen sc1")
    e("s_waitcnt vmcnt(0)")
    e("v_cmp_ne_u32 vcc, v48, v14")
    e("v_cmp_ne_u32 s[54:55], v49, v15")
    e("s_nop 1")
    e("s_or_b64 vcc, vcc, s[54:55]")
    e("s_cmp_eq_u64 vcc, 0")
    e("s_cbranch_scc1 B_UG")
    e(f"s_sleep {PSL}")
    e("s_branch B_UP")
    e.lab("B_UG")
    e("s_barrier")
    stamp(e, 4, 13)
    if BSTOP == 4: e('s_waitcnt vmcnt(0) lgkmcnt(0)'); e('s_endpgm')
    e("s_lshl_b32 s29, s25, 11")
    e("s_add_u32 s30, s27, s29")
    e("s_add_u32 s31, s28, s29")
    e(f"s_add_u32 m0, s31, {UR}")
    e("s_nop 0")
    e("buffer_load_dwordx4 v1, s[36:39], s30 offen sc1 lds")
    e("buffer_load_dwordx4 v1, s[36:39], s30 offen offset:1024 sc1 lds")
    e("s_waitcnt vmcnt(0) lgkmcnt(0)")
    e("s_barrier")
    stamp(e, 5, 13)
    if BSTOP == 5: e('s_waitcnt vmcnt(0) lgkmcnt(0)'); e('s_endpgm')
    SETS = [64, 128]
    def loads_l(rr):
        b = SETS[rr & 1]
        L = []
        for a in range(8):
            L.append(f"ds_read_b128 v[{b+32+4*a}:{b+35+4*a}], v8 offset:{512*(7-a) + 64*rr}")
            for h in range(2):
                L.append(f"ds_read_b64 v[{b+4*a+2*h}:{b+4*a+2*h+1}], v6 offset:{64*rr + 512*a + 8*h}")
        return L
    for x in loads_l(0): e(x)
    for rr in range(4):
        b = SETS[rr & 1]
        e("s_waitcnt lgkmcnt(0)")
        nxt = loads_l(rr + 1) if rr < 3 else []
        n = 0
        for s in range(8):
            for a in range(s + 1):
                bb = s - a
                d = ACC + 4*s
                e(f"v_mfma_f32_16x16x32_bf16 v[{d}:{d+3}], v[{b+4*a}:{b+4*a+3}], v[{b+32+4*bb}:{b+35+4*bb}], v[{d}:{d+3}]")
                if nxt: e(nxt.pop(0))
        assert not nxt
    e("s_nop 7")
    stamp(e, 6, 13)
    if BSTOP == 6: e('s_waitcnt vmcnt(0) lgkmcnt(0)'); e('s_endpgm')
    e(f"s_add_u32 s54, s28, {RED}")
    e("v_add_u32 v9, s54, v1")
    e("s_cmp_eq_u32 s25, 0")
    e("s_cbranch_scc1 CV_X0")
    for nt in range(4):
        e(f"ds_write_b128 v9, v[{ACC+4*nt}:{ACC+4*nt+3}] offset:{1024*nt}")
    e("s_waitcnt lgkmcnt(0)")
    e("s_barrier")
    for nt in range(4):
        e(f"ds_read_b128 v[{64+4*nt}:{67+4*nt}], v9 offset:{1024*(4+nt)}")
    e("s_waitcnt lgkmcnt(0)")
    for i in range(16):
        e(f"v_add_f32 v{64+i}, v{64+i}, v{ACC+16+i}")
    e("s_branch CV_FIN")
    e.lab("CV_X0")
    for nt in range(4):
        e(f"ds_write_b128 v9, v[{ACC+16+4*nt}:{ACC+16+4*nt+3}] offset:{1024*(4+nt)}")
    e("s_waitcnt lgkmcnt(0)")
    e("s_barrier")
    for nt in range(4):
        e(f"ds_read_b128 v[{64+4*nt}:{67+4*nt}], v9 offset:{1024*nt}")
    e("s_waitcnt lgkmcnt(0)")
    for i in range(16):
        e(f"v_add_f32 v{64+i}, v{64+i}, v{ACC+i}")
    e.lab("CV_FIN")
    e("v_lshlrev_b32 v10, 4, v4")
    e("v_lshl_add_u32 v10, v5, 2, v10")
    e("s_lshl_b32 s54, s25, 10")
    e("v_add_u32 v10, s54, v10")
    e(f"s_add_u32 s55, s28, {UR + 2*2044 - 512*3}")
    e("v_lshlrev_b32 v11, 1, v10")
    e("v_sub_u32 v11, s55, v11")
    for t in range(4):
        e(f"ds_read_b64 v[{80+2*t}:{81+2*t}], v11 offset:{512*(3-t)}")
    e("v_lshlrev_b32 v3, 16, v3")
    e("s_mov_b32 s56, 0xffff0000")
    e("v_lshlrev_b32 v12, 1, v10")
    e("v_add_u32 v12, s27, v12")
    e("s_waitcnt lgkmcnt(0)")
    for t in range(4):
        y = 64 + 4*t; kq = 80 + 2*t
        e(f"v_and_b32 v96, s56, v{kq+1}")
        e(f"v_lshlrev_b32 v97, 16, v{kq+1}")
        e(f"v_and_b32 v98, s56, v{kq}")
        e(f"v_lshlrev_b32 v99, 16, v{kq}")
        for i in range(4): e(f"v_mul_f32 v{96+i}, v{96+i}, v3")
        e("v_cvt_pk_bf16_f32 v100, v96, v97")
        e("v_cvt_pk_bf16_f32 v101, v98, v99")
        e(f"v_cvt_pk_bf16_f32 v102, v{y}, v{y+1}")
        e(f"v_cvt_pk_bf16_f32 v103, v{y+2}, v{y+3}")
        for i in range(2):
            e(f"v_lshlrev_b32 v{96+2*i}, 16, v{100+i}")
            e(f"v_and_b32 v{97+2*i}, s56, v{100+i}")
            e(f"v_lshlrev_b32 v{104+2*i}, 16, v{102+i}")
            e(f"v_and_b32 v{105+2*i}, s56, v{102+i}")
        for i in range(4): e(f"v_add_f32 v{96+i}, v{96+i}, v{104+i}")
        e(f"v_cvt_pk_bf16_f32 v{108+2*t}, v96, v97")
        e(f"v_cvt_pk_bf16_f32 v{109+2*t}, v98, v99")
        e(f"buffer_store_dwordx2 v[{108+2*t}:{109+2*t}], v12, s[40:43], 0 offen offset:{512*t} sc1")
    stamp(e, 7, 13)
    if BSTOP == 7: e('s_waitcnt vmcnt(0) lgkmcnt(0)'); e('s_endpgm')
    e("s_waitcnt vmcnt(0)")
    stamp(e, 8, 13)
    if BSTOP == 8: e('s_waitcnt vmcnt(0) lgkmcnt(0)'); e('s_endpgm')
    stamp_store(e, 13, 1, 18)
    e("s_barrier")
    e("s_cmp_lg_u32 s20, 0")
    e("s_cbranch_scc1 F_END")
    e("s_and_b32 s54, s2, 7")
    e("s_lshl_b32 s54, s54, 5")
    e("s_lshr_b32 s55, s2, 3")
    e("s_add_u32 s54, s54, s55")
    e("s_lshl_b32 s54, s54, 7")
    e(f"s_add_u32 s54, s54, {F_Z}")
    e("v_mov_b32 v1, s54")
    e("s_mov_b64 exec, 1")
    e("buffer_store_dwordx2 v[14:15], v1, s[60:63], 0 offen sc1")
    e("s_endpgm")


def gen_fused(e):
    e.lab("fused_kernel")
    e("s_cmp_ge_u32 s2, 512")
    e("s_cbranch_scc1 F_END")
    e("v_lshrrev_b32 v1, 6, v0")
    e("v_and_b32 v0, 63, v0")
    e("s_nop 0")
    e("v_readfirstlane_b32 s20, v1")
    if SWAP: e("s_xor_b32 s2, s2, 256")
    e("s_cmp_ge_u32 s2, 256")
    e("s_cbranch_scc1 F_B")
    gen_typeA(e)
    e.lab("F_B")
    gen_typeB(e)
    e.lab("F_END")
    e("s_endpgm")

def kdesc(name, vgpr, sgpr=96):
    return f""".amdhsa_kernel {name}
  .amdhsa_next_free_vgpr {vgpr}
  .amdhsa_next_free_sgpr {sgpr}
  .amdhsa_accum_offset {(vgpr+3)//4*4}
  .amdhsa_group_segment_fixed_size 0
  .amdhsa_kernarg_size 104
  .amdhsa_user_sgpr_count 2
  .amdhsa_user_sgpr_kernarg_segment_ptr 1
  .amdhsa_system_sgpr_workgroup_id_x 1
.end_amdhsa_kernel
"""

def main(out):
    e = E()
    hdr = "; @launch kernel=fused_kernel grid=(512,1,1) block=(256,1,1) lds=81920\n"
    hdr += '.amdgcn_target "amdgcn-amd-amdhsa--gfx950"\n.text\n'
    body = ".globl fused_kernel\n.p2align 8\n.type fused_kernel,@function\n"
    gen_fused(e)
    body += e.text()
    ro = '.section .rodata,"a"\n.p2align 6\n' + kdesc("fused_kernel", 256, 102)
    open(out, "w").write(hdr + body + ro)

if __name__ == "__main__":
    main(sys.argv[1] if len(sys.argv) > 1 else "k.s")
```

```python
import sys

KN = "gated_mix__ssm_conv_h3__dense_activation_relu__prompt"
WS_H = 0
WS_H_SIZE = 64*112*1024
WS_U = 0x800000
WS_G = 0xA00000
WS_Z = 0xB00000

class E:
    def __init__(self): self.l = []
    def __call__(self, s): self.l.append("    " + s)
    def lab(self, s): self.l.append(s + ":")
    def c(self, s): self.l.append("    ; " + s)
    def text(self): return "\n".join(self.l) + "\n"

import os
PROF = int(os.environ.get("PROF", "0"))
WS_P = 0xE00000
def stamp(e, idx, vr):
    if not PROF: return
    e("s_memrealtime s[100:101]")
    e("s_waitcnt lgkmcnt(0)")
    e(f"v_writelane_b32 v{vr}, s100, {idx}")
def stamp_store(e, vr, kidx, ws_lo):
    if not PROF: return
    e("s_getreg_b32 s100, hwreg(HW_REG_HW_ID)")
    e("s_getreg_b32 s101, hwreg(HW_REG_XCC_ID)")
    e(f"v_writelane_b32 v{vr}, s100, 14")
    e(f"v_writelane_b32 v{vr}, s101, 15")
    e(f"s_add_u32 s96, s{ws_lo}, {WS_P + kidx*0x40000:#x}")
    e(f"s_addc_u32 s97, s{ws_lo+1}, 0")
    e("s_mov_b32 s98, 0x40000")
    e("s_mov_b32 s99, 0x00020000")
    e("s_lshl_b32 s100, s2, 8")
    e("s_lshl_b32 s101, s20, 6")
    e("s_add_u32 s100, s100, s101")
    e("v_and_b32 v1, 15, v0")
    e("v_lshlrev_b32 v1, 2, v1")
    e("s_mov_b64 exec, 0xffff")
    e(f"buffer_store_dword v{vr}, v1, s[96:99], s100 offen")
    e("s_mov_b64 exec, -1")

def srd(e, sd, sp, size, off=0):
    if off:
        e(f"s_add_u32 s{sd}, s{sp}, {off:#x}")
        e(f"s_addc_u32 s{sd+1}, s{sp+1}, 0")
    else:
        e(f"s_mov_b32 s{sd}, s{sp}")
        e(f"s_mov_b32 s{sd+1}, s{sp+1}")
    e(f"s_mov_b32 s{sd+2}, {size:#x}")
    e(f"s_mov_b32 s{sd+3}, 0x00020000")

PB = 128
def prep_setup(e):
    P = PB
    e("s_lshr_b32 s60, s2, 3")
    e("s_and_b32 s61, s2, 7")
    srd(e, 64, 6, 2048*1024)
    srd(e, 68, 8, 2048*1024)
    srd(e, 72, 10, 512*8)
    srd(e, 76, 18, 512*4096, WS_U)
    srd(e, 80, 4, 2048*1024)
    srd(e, 84, 16, 1024)
    srd(e, 88, 18, 8192, WS_G)
    e(f"v_and_b32 v{P+1}, 31, v0")
    e(f"v_lshrrev_b32 v{P+2}, 5, v0")
    e("s_lshl_b32 s62, s20, 1")
    e(f"v_add_u32 v{P+2}, s62, v{P+2}")
    e("s_lshl_b32 s62, s60, 6")
    e(f"v_lshl_add_u32 v{P+3}, v{P+2}, 3, s62")
    e(f"v_lshlrev_b32 v{P+4}, 10, v{P+3}")
    e("s_lshl_b32 s63, s61, 7")
    e(f"v_lshl_add_u32 v{P+5}, v{P+1}, 2, s63")
    e(f"v_add_u32 v{P+4}, v{P+4}, v{P+5}")
    for i in range(11):
        e(f"v_add_u32 v{P+6}, {(i-3)*1024 & 0xffffffff:#x}, v{P+4}")
        e(f"buffer_load_dword v{P+16+i}, v{P+6}, s[64:67], 0 offen")
    for i in range(8):
        if i < 4:
            e(f"buffer_load_dword v{P+32+i}, v{P+4}, s[68:71], 0 offen offset:{i*1024}")
        else:
            if i == 4: e(f"v_add_u32 v{P+6}, 4096, v{P+4}")
            e(f"buffer_load_dword v{P+32+i}, v{P+6}, s[68:71], 0 offen offset:{(i-4)*1024}")
    e(f"v_lshlrev_b32 v{P+6}, 2, v{P+5}")
    e(f"buffer_load_dwordx4 v[{P+40}:{P+43}], v{P+6}, s[72:75], 0 offen")
    e("s_lshl_b32 s92, s2, 3")
    e("s_lshl_b32 s93, s20, 1")
    e("s_add_u32 s92, s92, s93")
    e("s_lshl_b32 s93, s92, 10")
    e(f"v_lshlrev_b32 v{P+7}, 4, v0")
    e(f"buffer_load_dwordx4 v[{P+44}:{P+47}], v{P+7}, s[80:83], s93 offen")
    e(f"buffer_load_dwordx4 v[{P+48}:{P+51}], v{P+7}, s[80:83], s93 offen offset:1024")
    e(f"buffer_load_dwordx4 v[{P+52}:{P+55}], v{P+7}, s[84:87], 0 offen")
    e("s_mov_b32 s94, 0xffff0000")
    e("s_mov_b32 s95, 0x05040100")
    e("s_mov_b32 s96, 0x07060302")
    e(f"v_lshlrev_b32 v{P+8}, 1, v{P+1}")
    e("s_lshl_b32 s93, s61, 6")
    e(f"v_add_u32 v{P+8}, s93, v{P+8}")
    e(f"v_lshlrev_b32 v{P+8}, 12, v{P+8}")
    e(f"v_sub_u32 v{P+9}, 2040, v{P+3}")
    e(f"v_lshl_add_u32 v{P+8}, v{P+9}, 1, v{P+8}")
    e(f"v_add_u32 v{P+9}, 4096, v{P+8}")
NPREP_LOADS = 11 + 8 + 1 + 3

def prep_compute():
    P = PB
    L = []
    e = L.append
    for j in range(4):
        for ch in range(2):
            src = P + 40 + 2*ch + (j >> 1)
            if j & 1: e(f"v_and_b32 v{P+56+2*j+ch}, s94, v{src}")
            else:     e(f"v_lshlrev_b32 v{P+56+2*j+ch}, 16, v{src}")
    for i in range(11):
        e(f"v_lshlrev_b32 v{P+64+2*i}, 16, v{P+16+i}")
        e(f"v_and_b32 v{P+65+2*i}, s94, v{P+16+i}")
    def rb(dst, src, tmp):
        e(f"v_cvt_pk_bf16_f32 v{tmp}, v{src}, v{src+1}")
        e(f"v_lshlrev_b32 v{dst}, 16, v{tmp}")
        e(f"v_and_b32 v{dst+1}, s94, v{tmp}")
    for r in range(8):
        S, Q, T = P+88, P+90, P+92
        e(f"v_pk_mul_f32 v[{S}:{S+1}], v[{P+64+2*r}:{P+65+2*r}], v[{P+62}:{P+63}]")
        rb(S, S, T)
        for j in (2, 1, 0):
            e(f"v_pk_mul_f32 v[{Q}:{Q+1}], v[{P+64+2*(r+3-j)}:{P+65+2*(r+3-j)}], v[{P+56+2*j}:{P+57+2*j}]")
            rb(Q, Q, T)
            e(f"v_pk_add_f32 v[{S}:{S+1}], v[{S}:{S+1}], v[{Q}:{Q+1}]")
            rb(S, S, T)
        e(f"v_lshlrev_b32 v{Q}, 16, v{P+32+r}")
        e(f"v_and_b32 v{Q+1}, s94, v{P+32+r}")
        e(f"v_pk_mul_f32 v[{S}:{S+1}], v[{S}:{S+1}], v[{Q}:{Q+1}]")
        e(f"v_cvt_pk_bf16_f32 v{P+96+r}, v{S}, v{S+1}")
    for m in range(4):
        e(f"v_perm_b32 v{P+104+m}, v{P+96+6-2*m}, v{P+96+7-2*m}, s95")
        e(f"v_perm_b32 v{P+108+m}, v{P+96+6-2*m}, v{P+96+7-2*m}, s96")
    e(f"buffer_store_dwordx4 v[{P+104}:{P+107}], v{P+8}, s[76:79], 0 offen sc1")
    e(f"buffer_store_dwordx4 v[{P+108}:{P+111}], v{P+9}, s[76:79], 0 offen sc1")
    return L

def prep_gate(e):
    P = PB
    def rb(dst, src, tmp):
        e(f"v_cvt_pk_bf16_f32 v{tmp}, v{src}, v{src+1}")
        e(f"v_lshlrev_b32 v{dst}, 16, v{tmp}")
        e(f"v_and_b32 v{dst+1}, s94, v{tmp}")
    G = P + 112
    A = P + 120
    X = P + 122; T = P + 124
    for i in range(4):
        e(f"v_lshlrev_b32 v{G+2*i}, 16, v{P+52+i}")
        e(f"v_and_b32 v{G+1+2*i}, s94, v{P+52+i}")
    for row in range(2):
        q = P + 44 + 4*row
        for i in range(4):
            e(f"v_lshlrev_b32 v{X}, 16, v{q+i}")
            e(f"v_and_b32 v{X+1}, s94, v{q+i}")
            e(f"v_pk_mul_f32 v[{X}:{X+1}], v[{X}:{X+1}], v[{G+2*i}:{G+1+2*i}]")
            rb(X, X, T)
            if i == 0: e(f"v_add_f32 v{A+row}, v{X}, v{X+1}")
            else:
                e(f"v_add_f32 v{A+row}, v{A+row}, v{X}")
                e(f"v_add_f32 v{A+row}, v{A+row}, v{X+1}")
    for sh in ("row_shr:1", "row_shr:2", "row_shr:4", "row_shr:8"):
        e("s_nop 1")
        for row in range(2):
            e(f"v_add_f32_dpp v{A+row}, v{A+row}, v{A+row} {sh} bound_ctrl:0")
    e("s_nop 1")
    for row in range(2):
        e(f"v_add_f32_dpp v{A+row}, v{A+row}, v{A+row} row_bcast:15 row_mask:0xa")
    e("s_nop 1")
    for row in range(2):
        e(f"v_add_f32_dpp v{A+row}, v{A+row}, v{A+row} row_bcast:31 row_mask:0xc")
    e("s_nop 1")
    e(f"v_readlane_b32 s98, v{A}, 63")
    e(f"v_readlane_b32 s99, v{A+1}, 63")
    e("s_nop 3")
    e(f"v_mov_b32 v{A}, s98")
    e(f"v_mov_b32 v{A+1}, s99")
    rb(A, A, T)
    e(f"v_mul_f32 v{A}, 0xbfb8aa3b, v{A}")
    e(f"v_mul_f32 v{A+1}, 0xbfb8aa3b, v{A+1}")
    e(f"v_exp_f32 v{A}, v{A}")
    e(f"v_exp_f32 v{A+1}, v{A+1}")
    e("s_nop 0")
    e(f"v_add_f32 v{A}, 1.0, v{A}")
    e(f"v_add_f32 v{A+1}, 1.0, v{A+1}")
    e(f"v_rcp_f32 v{A}, v{A}")
    e(f"v_rcp_f32 v{A+1}, v{A+1}")
    e("s_nop 0")
    rb(A, A, T)
    e("s_lshl_b32 s93, s92, 2")
    e(f"v_mov_b32 v{X}, s93")
    e("v_cmp_eq_u32 vcc, 0, v0")
    e("s_and_saveexec_b64 s[98:99], vcc")
    e(f"buffer_store_dwordx2 v[{A}:{A+1}], v{X}, s[88:91], 0 offen sc1")
    e("s_mov_b64 exec, s[98:99]")

class VM:
    def __init__(s): s.q = []
    def issue(s, tag): s.q.append(tag)
    def need(s, tags):
        idx = max([i for i, t in enumerate(s.q) if t in tags] + [-1])
        return len(s.q) - 1 - idx
    def clear(s): s.q = []

CNT_H, CNT_U, CNT_Z = 0, 32, 48
SWAP = int(os.environ.get('SWAP','0'))
PRIOA = int(os.environ.get('PRIOA','2'))
PRIOB = int(os.environ.get('PRIOB','0'))
PF = int(os.environ.get('PF','1'))
G1ONLY = int(os.environ.get('G1ONLY','0'))
NOTR = int(os.environ.get('NOTR','0'))
NOMF = int(os.environ.get('NOMF','0'))
NOLDS = int(os.environ.get('NOLDS','0'))
NOBAR = int(os.environ.get('NOBAR','0'))
ROT = int(os.environ.get('ROT','1'))
NOVM = int(os.environ.get('NOVM','0'))
NODMA = int(os.environ.get('NODMA','0'))
REP2 = int(os.environ.get('REP2','0'))
G2W = int(os.environ.get('G2W','6'))
EARLYW = int(os.environ.get('EARLYW','1'))
PP = int(os.environ.get('PP','0'))
KLATE = int(os.environ.get('KLATE','0'))
ZE = int(os.environ.get('ZE','1'))
FST = int(os.environ.get('FST','0'))
NQ = int(os.environ.get('NQ','3'))
PFSL = int(os.environ.get('PFSL','1'))
MAP2 = int(os.environ.get('MAP2','0'))
BSTOP = int(os.environ.get('BSTOP','0'))
PSL = int(os.environ.get('PSL','8'))
SLEEP0 = int(os.environ.get('SLEEP0','1'))
WS_F = 0xF00000
F_H, F_U, F_Z = 0, 0x8000, 0x10000
SV = 15

def get_nonce(e, lab, dbg, vr, st):
    e.lab(lab)
    e(f"v_mov_b32 v{vr+1}, 0")
    e(f"buffer_load_dwordx2 v[{vr}:{vr+1}], v{vr+1}, s[{dbg}:{dbg+3}], 0 offen sc1")
    e("s_waitcnt vmcnt(0)")
    e(f"v_readfirstlane_b32 s{st}, v{vr}")
    e(f"s_cmp_lg_u32 s{st}, 0")
    e(f"s_cbranch_scc1 {lab}_OK")
    e("s_sleep 4")
    e(f"s_branch {lab}")
    e.lab(lab + "_OK")

def gen_typeA(e):
    e("s_load_dwordx2 s[4:5], s[0:1], 0")
    e("s_load_dwordx2 s[14:15], s[0:1], 56")
    e("s_load_dwordx2 s[18:19], s[0:1], 96")
    e("s_load_dwordx4 s[64:67], s[0:1], 64")
    e("s_load_dwordx4 s[68:71], s[0:1], 80")
    if PRIOA: e(f"s_setprio {PRIOA}")
    e("s_and_b32 s21, s2, 7")
    e("s_lshr_b32 s22, s2, 3")
    if MAP2:
        e("s_mul_i32 s23, s22, 37")
        e("s_lshr_b32 s23, s23, 8")
        e("s_lshr_b32 s25, s21, 1")
        e("s_lshl_b32 s25, s25, 2")
        e("s_add_u32 s25, s25, s23")
        e("s_mul_i32 s23, s23, 7")
        e("s_sub_u32 s26, s22, s23")
        e("s_and_b32 s23, s21, 1")
        e("s_mul_i32 s23, s23, 7")
        e("s_add_u32 s26, s26, s23")
    else:
        e("s_cmp_ge_u32 s22, 14")
        e("s_cselect_b32 s23, 1, 0")
        e("s_lshl_b32 s25, s21, 1")
        e("s_add_u32 s25, s25, s23")
        e("s_mul_i32 s23, s23, 14")
        e("s_sub_u32 s26, s22, s23")
    e("s_lshl_b32 s48, s21, 2")
    e("s_lshr_b32 s49, s22, 3")
    e("s_add_u32 s48, s48, s49")
    e("s_and_b32 s49, s22, 7")
    S = 5
    e("s_mul_i32 s56, s20, %d" % (S*4096))
    e("s_lshl_b32 s57, s48, 1")
    e("s_mul_i32 s57, s57, 112")
    e("s_mul_i32 s58, s20, 28")
    e("s_add_u32 s57, s57, s58")
    e("s_lshl_b32 s57, s57, 10")
    e("s_add_u32 s58, s57, %d" % (112*1024))
    e("s_waitcnt lgkmcnt(0)")
    stamp(e, 0, SV)
    srd(e, 28, 4, 2048*1024)
    srd(e, 32, 14, 512*3584)
    srd(e, 72, 64, 1792*1024)
    srd(e, 76, 18, WS_H_SIZE, WS_H)
    srd(e, 80, 18, 512*4096, WS_Z)
    srd(e, 84, 18, 8192, WS_G)
    srd(e, 88, 4, 2048*1024)
    srd(e, 92, 70, 256)
    srd(e, 96, 68, 2048*1024)
    srd(e, 52, 18, 0x18000, WS_F)
    e("v_mov_b32 v1, 0")
    e("s_or_b32 s46, s2, s20")
    e("s_cmp_lg_u32 s46, 0")
    e("s_cbranch_scc1 A_NOPUB")
    e("s_memrealtime s[46:47]")
    e("s_waitcnt lgkmcnt(0)")
    e("s_or_b32 s46, s46, 1")
    e("v_mov_b32 v2, s46")
    e("v_mov_b32 v3, s47")
    e("s_mov_b64 exec, 1")
    e("buffer_store_dwordx2 v[2:3], v1, s[92:95], 0 offen sc1")
    e("s_mov_b64 exec, -1")
    e.lab("A_NOPUB")
    e("v_mov_b32 v1, 0")
    e("buffer_load_dwordx2 v[22:23], v1, s[92:95], 0 offen sc1")
    if PF & 1:
        e("s_lshr_b32 s46, s2, 3")
        e("s_lshl_b32 s46, s46, 2")
        e("s_add_u32 s46, s46, s20")
        e("s_lshl_b32 s46, s46, 13")
        e("v_lshlrev_b32 v1, 7, v0")
        e("buffer_load_dword v24, v1, s[32:35], s46 offen")
    if PF & 32:
        srd(e, 60, 18, 16 << 20)
        e("v_lshlrev_b32 v1, 20, v0")
        e("buffer_load_dword v24, v1, s[60:63], 0 offen")
        e("buffer_load_dword v24, v1, s[72:75], 0 offen")
        e("buffer_load_dword v24, v1, s[96:99], 0 offen")
    if PF & 4:
        e("s_lshr_b32 s46, s2, 3")
        e("s_cmp_ge_u32 s46, 8")
        e("s_cbranch_scc1 A_NOQPF")
        e("s_lshl_b32 s46, s46, 2")
        e("s_add_u32 s46, s46, s20")
        e("s_lshl_b32 s46, s46, 13")
        e("s_lshl_b32 s47, s21, 18")
        e("s_add_u32 s46, s46, s47")
        e("v_lshlrev_b32 v1, 7, v0")
        e("buffer_load_dword v24, v1, s[28:31], s46 offen")
        e.lab("A_NOQPF")
    e("s_cmp_ge_u32 s2, 224")
    if PF & 8:
        e("s_cbranch_scc0 A_G1")
        for _ in range(PFSL): e("s_sleep 64")
        e("s_sub_u32 s46, s2, 224")
        e("s_lshr_b32 s46, s46, 3")
        e("s_mul_i32 s46, s46, %d" % (3584*128))
        e("s_lshl_b32 s47, s20, 13")
        e("s_add_u32 s46, s46, s47")
        e("v_lshlrev_b32 v1, 7, v0")
        for it in range(14):
            e("buffer_load_dword v24, v1, s[72:75], s46 offen")
            if it < 13: e("s_add_u32 s46, s46, %d" % (256*128))
        e("s_branch A_PRE")
        e.lab("A_G1")
    else:
        e("s_cbranch_scc1 A_PRE")
    vm = VM()
    e("v_lshrrev_b32 v2, 3, v0")
    e("s_lshl_b32 s27, s25, 7")
    e("s_lshl_b32 s40, s20, 5")
    e("s_add_u32 s27, s27, s40")
    e("v_add_u32 v2, s27, v2")
    e("v_lshlrev_b32 v2, 10, v2")
    e("v_and_b32 v3, 7, v0")
    e("v_lshrrev_b32 v4, 4, v0")
    e("v_xor_b32 v3, v3, v4")
    e("v_lshl_add_u32 v2, v3, 4, v2")
    e("v_xor_b32 v3, 64, v2")
    e("s_lshl_b32 s40, s20, 3")
    e("v_add_u32 v5, s40, v4")
    e("s_movk_i32 s41, 3584")
    e("v_mul_lo_u32 v5, v5, s41")
    e("v_and_b32 v6, 15, v0")
    e("v_lshlrev_b32 v7, 2, v4")
    e("v_xor_b32 v6, v6, v7")
    e("v_lshl_add_u32 v5, v6, 4, v5")
    e("s_lshl_b32 s40, s26, 8")
    e("v_add_u32 v5, s40, v5")
    e("s_lshl_b32 s42, s20, 12")
    e("s_lshl_b32 s47, s20, 11")
    WB = NQ*16384
    WR = 128
    NWR = 12
    NW = 3 if NQ == 3 else 2
    def dq(c, j):
        def f():
            e(f"s_add_u32 m0, s42, {(c%NQ)*16384 + j*1024}")
            if ROT:
                e(f"s_add_u32 s43, s50, {c*128}")
                e(f"s_and_b32 s43, s43, 1023")
                e(f"s_add_u32 s43, s43, {j*8192}")
            else:
                e(f"s_mov_b32 s43, {j*8192 + c*128}")
            e(f"buffer_load_dwordx4 v{2 + (j&1)}, s[28:31], s43 offen lds")
            vm.issue(("Q", c))
        return f
    def lw1(hc, j):
        def f():
            r = WR + 8*(hc % NWR) + 4*j
            if ROT:
                e(f"s_add_u32 s43, s51, {hc}")
                e(f"s_and_b32 s43, s43, 15")
                e(f"s_mul_i32 s43, s43, {32*3584}")
                e(f"s_add_u32 s43, s43, {4*j*3584}")
            else:
                e(f"s_mov_b32 s43, {(32*hc + 4*j)*3584}")
            e(f"buffer_load_dwordx4 v[{r}:{r+3}], v5, s[32:35], s43 offen")
            vm.issue(("W", hc))
        return f
    def lw(hc):
        for j in range(2): lw1(hc, j)()
    e("s_and_b32 s51, s26, 7")
    e("s_lshl_b32 s50, s51, 7")
    e("s_lshl_b32 s51, s51, 1")
    for c in range(NQ):
        for j in range(4): dq(c, j)()
        lw(2*c); lw(2*c+1)
    for hc in range(2*NQ, NWR): lw(hc)
    e("s_and_b32 s44, s20, 1")
    e("s_lshr_b32 s45, s20, 1")
    e("v_and_b32 v6, 31, v0")
    e("v_lshrrev_b32 v7, 5, v0")
    e("v_bfe_u32 v8, v0, 1, 3")
    e("v_xor_b32 v8, v8, v7")
    e("v_lshlrev_b32 v8, 4, v8")
    e("v_lshl_add_u32 v8, v6, 7, v8")
    e("s_lshl_b32 s46, s44, 13")
    e("v_add_u32 v8, s46, v8")
    for k in range(4):
        e(f"v_xor_b32 v{10+k}, {32*k}, v8")
    e("v_bfe_u32 v6, v0, 2, 2")
    e("v_lshrrev_b32 v7, 5, v0")
    e("v_lshl_add_u32 v7, v7, 3, v6")
    e("v_lshlrev_b32 v7, 8, v7")
    e("v_bfe_u32 v9, v0, 4, 1")
    e("v_lshl_add_u32 v7, v9, 5, v7")
    e("v_and_b32 v9, 3, v0")
    e("v_lshl_add_u32 v7, v9, 3, v7")
    e(f"v_add_u32 v7, {WB}, v7")
    e("s_lshl_b32 s46, s45, 1")
    e("v_xor_b32 v9, s46, v6")
    e("v_lshl_add_u32 v18, v9, 6, v7")
    e("v_xor_b32 v19, 64, v18")
    e("v_lshlrev_b32 v20, 4, v0")
    e("v_add_u32 v20, s47, v20")
    e(f"v_add_u32 v20, {WB}, v20")
    ACC = 64
    for i in range(64):
        e(f"v_mov_b32 v{ACC+i}, 0")
    FR = [32, 48, 224]
    lg = VM()
    def ww_l(hc):
        L = []
        for j in range(2):
            def f(j=j):
                r = WR + 8*(hc % NWR) + 4*j
                e(f"ds_write_b128 v20, v[{r}:{r+3}] offset:{(hc%NW)*8192 + j*1024}")
                lg.issue(("w", hc))
            L.append(f)
        return L
    def ww(hc):
        for f in ww_l(hc): f()
    def rf_l(step):
        if NOLDS: return []
        c, k, hc, kk = step >> 2, step & 3, step >> 1, step & 1
        b = FR[step % 3]
        LQ = []; LW = []
        for tj in range(2):
            def f(tj=tj):
                e(f"ds_read_b128 v[{b+8+4*tj}:{b+11+4*tj}], v{10+k} offset:{(c%NQ)*16384 + tj*4096}")
                lg.issue(("r", step))
            LQ.append(f)
        for fi in range(2):
            for h in range(2):
                def f(fi=fi, h=h):
                    e(f"ds_read_b64_tr_b16 v[{b+4*fi+2*h}:{b+4*fi+2*h+1}], v{18+fi} offset:{(hc%NW)*8192 + kk*4096 + h*1024}")
                    lg.issue(("rw", step))
                LW.append(f)
        return (LQ + LW) if NW == 3 else (LW + LQ)
    def read_frags(step):
        for f in rf_l(step): f()
    pend = []
    def mfmas(step, ldsops):
        b = FR[step % 3]
        n = 0
        per = (len(ldsops) + 3) // 4
        for fi in range(2):
            for tj in range(2):
                d = ACC + 16*(2*fi+tj)
                if not NOMF: e(f"v_mfma_f32_32x32x16_bf16 v[{d}:{d+15}], v[{b+4*fi}:{b+4*fi+3}], v[{b+8+4*tj}:{b+8+4*tj+3}], v[{d}:{d+15}]")
                for _ in range(per):
                    if ldsops: ldsops.pop(0)()
                if pend:
                    f = pend.pop(0)
                    if not NODMA: f()
    stamp(e, 1, SV)
    e(f"s_waitcnt vmcnt({vm.need([('Q',0),('W',0),('W',1)])})")
    ww(0); ww(1)
    e("s_waitcnt lgkmcnt(0)")
    lg.clear()
    if REP2:
        e("s_mov_b32 s46, 0")
        e.lab("A_REP")
    stamp(e, 2, SV)
    if G1ONLY:
        e("s_memtime s[100:101]"); e("s_waitcnt lgkmcnt(0)"); e(f"v_writelane_b32 v{SV}, s100, 10")
    e("s_barrier")
    read_frags(0); read_frags(1)
    NS = 32
    for step in range(NS):
        hc, c = step >> 1, step >> 2
        e(f"s_waitcnt lgkmcnt({lg.need([('r', step), ('rw', step)] + ([('rw', step+1)] if (NW == 2 and step & 1 == 0) else []))})")
        ops = []
        if step & 1 == 0:
            tags = []
            if hc >= 1:
                if hc & 1 and (hc+1) >> 1 < 8: tags.append(("Q", (hc+1) >> 1))
            if hc + 2 < 16: tags.append(("W", hc+2))
            if hc == 0: tags.append(("Q", 0))
            if tags and not NOVM: e(f"s_waitcnt vmcnt({min(63, vm.need(tags))})")
            if hc >= 1 or NW == 2:
                if not NOBAR: e("s_barrier")
                if hc in (4, 8, 12):
                    stamp(e, 2 + hc//4, SV); lg.clear()
            if hc + 2 < 16: ops += ww_l(hc + 2)
            if hc + NWR - 0 < 16 and hc >= 0:
                for j in range(2): pend.append(lw1(hc + NWR, j))
            if hc >= 2 and hc & 1 == 0 and (hc - 2)//2 + NQ < 8:
                for j in range(4): pend.append(dq((hc-2)//2 + NQ, j))
        if step + 2 < NS: ops = ops + rf_l(step + 2)
        mfmas(step, ops)
    e("s_barrier")
    assert not pend
    stamp(e, 6, SV)
    if G1ONLY:
        e("s_memtime s[100:101]"); e("s_waitcnt lgkmcnt(0)"); e(f"v_writelane_b32 v{SV}, s100, 11")
    if REP2:
        e("s_add_u32 s46, s46, 1")
        e("s_cmp_lt_u32 s46, 2")
        e("s_cbranch_scc1 A_REP")
    def issue(ci):
        sl = ci % S
        for jj in range(4):
            e(f"s_add_u32 m0, s56, {sl*4096 + jj*1024}")
            e(f"s_mov_b32 s59, {(32*ci + 8*jj)*1024}")
            e(f"buffer_load_dwordx4 v208, s[72:75], s59 offen lds")
            vm.issue(("w2", ci))
    def pre_issue():
        e("v_lshrrev_b32 v2, 3, v0")
        e("s_mul_i32 s46, s20, 448")
        e("v_add_u32 v2, s46, v2")
        e("v_lshlrev_b32 v2, 10, v2")
        e("v_and_b32 v3, 7, v0")
        e("v_bfe_u32 v4, v0, 4, 1")
        e("v_lshlrev_b32 v4, 2, v4")
        e("v_xor_b32 v3, v3, v4")
        e("v_lshl_add_u32 v2, v3, 4, v2")
        e("s_lshl_b32 s46, s49, 7")
        e("v_add_u32 v208, s46, v2")
        e("v_lshlrev_b32 v209, 4, v0")
        for ci in range(S): issue(ci)
    if EARLYW: pre_issue()
    e("v_lshlrev_b32 v209, 4, v0")
    e("s_lshl_b32 s46, s25, 2")
    e("s_lshl_b32 s47, s44, 1")
    e("s_add_u32 s46, s46, s47")
    e("s_mul_i32 s46, s46, 112")
    e("s_lshl_b32 s47, s26, 3")
    e("s_add_u32 s46, s46, s47")
    e("s_lshl_b32 s47, s45, 2")
    e("s_add_u32 s46, s46, s47")
    e("s_lshl_b32 s46, s46, 10")
    e("v_add_u32 v2, s46, v209")
    e("v_add_u32 v3, 112*1024, v2")
    for fi in range(2):
        for tj in range(2):
            d = ACC + 16*(2*fi+tj)
            for kq in range(2):
                p = 32 + 4*((2*tj+kq) & 3)
                for x in range(4):
                    i0 = d + 8*kq + 2*x
                    e(f"v_max_f32 v{i0}, 0, v{i0}")
                    e(f"v_max_f32 v{i0+1}, 0, v{i0+1}")
                for x in range(4):
                    i0 = d + 8*kq + 2*x
                    e(f"v_cvt_pk_bf16_f32 v{p+x}, v{i0}, v{i0+1}")
                e("s_nop 1")
                e(f"v_permlane32_swap_b32 v{p}, v{p+2}")
                e(f"v_permlane32_swap_b32 v{p+1}, v{p+3}")
                e(f"buffer_store_dwordx4 v[{p}:{p+3}], v{2+tj}, s[76:79], 0 offen offset:{(2*fi+kq)*1024} sc1")
    stamp(e, 7, SV)
    e("s_waitcnt vmcnt(0)")
    e("s_barrier")
    stamp(e, 8, SV)
    e("s_cmp_lg_u32 s20, 0")
    e("s_cbranch_scc1 A_PRE")
    e("v_mov_b32 v220, v22")
    e("v_mov_b32 v221, v23")
    e("v_readfirstlane_b32 s46, v22")
    e("s_cmp_lg_u32 s46, 0")
    e("s_cbranch_scc1 A_N1_OK")
    get_nonce(e, "A_N1", 92, 220, 46)
    e("s_lshl_b32 s46, s25, 4")
    e("s_add_u32 s46, s46, s26")
    e("s_lshl_b32 s46, s46, 7")
    e("v_mov_b32 v1, s46")
    e("s_mov_b64 exec, 1")
    e(f"buffer_store_dwordx2 v[220:221], v1, s[52:55], 0 offen offset:{F_H} sc1")
    e("s_mov_b64 exec, -1")
    if EARLYW: e("s_branch A_PRE2")
    e.lab("A_PRE")
    pre_issue()
    e.lab("A_PRE2")
    e.lab("A_POLL")
    if G1ONLY:
        stamp_store(e, SV, 0, 18)
        e("s_endpgm")
    HB = 128
    BLK = [16, 32, 48, 128, 144, 160, 176, 192, 224, 240]
    def issue_h(ci):
        sl = ci % S
        e(f"s_add_u32 s59, s57, {ci*2048}")
        e(f"s_add_u32 s60, s58, {ci*2048}")
        for kl in range(2):
            for tj in range(2):
                r = HB + 16*sl + 8*kl + 4*tj
                e(f"buffer_load_dwordx4 v[{r}:{r+3}], v209, s[76:79], s{59+tj} offen offset:{kl*1024}")
                vm.issue(("h", ci))
    e("v_bfe_u32 v6, v0, 2, 2")
    e("v_lshrrev_b32 v7, 5, v0")
    e("v_lshl_add_u32 v7, v7, 3, v6")
    e("v_lshlrev_b32 v7, 7, v7")
    e("v_bfe_u32 v9, v0, 4, 1")
    e("v_lshl_add_u32 v7, v9, 5, v7")
    e("v_and_b32 v9, 3, v0")
    e("v_lshl_add_u32 v7, v9, 3, v7")
    e("v_lshrrev_b32 v9, 1, v6")
    e("v_lshl_add_u32 v8, v9, 6, v7")
    e("v_add_u32 v8, s56, v8")
    e("v_xor_b32 v9, 64, v8")
    e("v_and_b32 v10, 15, v0")
    e("v_lshrrev_b32 v11, 4, v0")
    e("s_lshl_b32 s59, s48, 6")
    e("s_lshl_b32 s60, s20, 4")
    e("s_add_u32 s59, s59, s60")
    e("v_add_u32 v12, s59, v10")
    e("v_lshlrev_b32 v13, 10, v12")
    e("v_lshl_add_u32 v13, v11, 4, v13")
    e("s_lshl_b32 s60, s49, 7")
    e("v_add_u32 v13, s60, v13")
    e("buffer_load_dwordx4 v[212:215], v13, s[88:91], 0 offen"); vm.issue(("q", 0))
    e("buffer_load_dwordx4 v[216:219], v13, s[88:91], 0 offen offset:64"); vm.issue(("q", 1))
    e("v_lshlrev_b32 v14, 2, v12")
    ACC = 64
    def treads(ci, b):
        sl = ci % S
        L = []
        for kl in range(2):
            for di in range(2):
                for h in range(2):
                    r = b + 8*kl + 4*di + 2*h
                    L.append(f"ds_read_b64_tr_b16 v[{r}:{r+1}], v{8+di} offset:{sl*4096 + kl*2048 + h*512}")
        return L
    for ci in range(G2W):
        e(f"s_waitcnt vmcnt({vm.need([('w2', ci)])})")
        for x in treads(ci, BLK[ci]): e(x)
        e("s_waitcnt lgkmcnt(0)")
        issue(ci + S)
    e("s_lshr_b32 s60, s48, 1")
    e("s_lshl_b32 s60, s60, 4")
    e("v_min_u32 v6, 13, v0")
    e("v_add_u32 v6, s60, v6")
    e("v_lshlrev_b32 v6, 7, v6")
    e("s_cmp_lg_u32 s20, 0")
    e("s_cbranch_scc1 A_HG")
    e("s_cmp_lt_u32 s2, 224")
    e("s_cbranch_scc1 A_HP")
    for _ in range(SLEEP0): e("s_sleep 64")
    get_nonce(e, "A_N2", 92, 220, 46)
    e.lab("A_HP")
    if PP:
        R = [222, 210, 2, 4]
        for k in range(3):
            e(f"buffer_load_dwordx2 v[{R[k]}:{R[k]+1}], v6, s[52:55], 0 offen offset:{F_H} sc1")
            e(f"s_sleep {PP}")
        e.lab("A_HPL")
        for k in range(4):
            n = R[(k + 3) % 4]; o = R[k]
            e(f"buffer_load_dwordx2 v[{n}:{n+1}], v6, s[52:55], 0 offen offset:{F_H} sc1")
            e("s_waitcnt vmcnt(3)")
            e(f"v_cmp_ne_u32 vcc, v{o}, v220")
            e(f"v_cmp_ne_u32 s[60:61], v{o+1}, v221")
            e("s_nop 1")
            e("s_or_b64 vcc, vcc, s[60:61]")
            e("s_cmp_eq_u64 vcc, 0")
            e("s_cbranch_scc1 A_HG2")
            e(f"s_sleep {PP}")
        e("s_branch A_HPL")
    else:
        e(f"buffer_load_dwordx2 v[222:223], v6, s[52:55], 0 offen offset:{F_H} sc1")
        e("s_waitcnt vmcnt(0)")
        e("v_cmp_ne_u32 vcc, v222, v220")
        e("v_cmp_ne_u32 s[60:61], v223, v221")
        e("s_nop 1")
        e("s_or_b64 vcc, vcc, s[60:61]")
        e("s_cmp_eq_u64 vcc, 0")
        e("s_cbranch_scc1 A_HG")
        e(f"s_sleep {PSL}")
        e("s_branch A_HP")
    e.lab("A_HG")
    e("s_waitcnt vmcnt(0)")
    e.lab("A_HG2")
    e("s_barrier")
    vm.clear()
    e("v_mov_b32 v1, 0")
    e("buffer_load_dwordx2 v[220:221], v1, s[92:95], 0 offen sc1")
    vm.issue(("nonce", 0))
    def issue_hb_l(ci, b):
        L = []
        for kl in range(2):
            for tj in range(2):
                def f(kl=kl, tj=tj):
                    r = b + 8*kl + 4*tj
                    e(f"s_add_u32 s60, s{57+tj}, {ci*2048}")
                    e(f"buffer_load_dwordx4 v[{r}:{r+3}], v209, s[76:79], s60 offen offset:{kl*1024}")
                    vm.issue(("h", ci))
                L.append(f)
        return L
    if G2W:
        Wb = {c: BLK[c] for c in range(G2W)}
        Hb = {}
        free = BLK[G2W:]
        nh = 0
        while free:
            Hb[nh] = free.pop(0)
            for f in issue_hb_l(nh, Hb[nh]): f()
            nh += 1
    else:
        for ci in range(S): issue_h(ci)
    stamp(e, 9, SV)
    for i in range(64): e(f"v_mov_b32 v{ACC+i}, 0")
    e("s_lshl_b32 s60, s49, 5")
    e("v_add_u32 v6, s60, v0")
    e("v_lshlrev_b32 v6, 7, v6")
    e(f"v_add_u32 v6, {F_Z}, v6")
    e("v_and_b32 v7, 7, v0")
    e("s_lshl_b32 s60, s48, 3")
    e("v_add_u32 v7, s60, v7")
    e("v_lshlrev_b32 v7, 7, v7")
    e(f"v_add_u32 v7, {F_U}, v7")
    e("v_cmp_gt_u32 vcc, 32, v0")
    e("v_cndmask_b32 v6, v7, v6, vcc")
    e("s_lshl_b32 s60, s49, 6")
    e("v_lshl_add_u32 v7, v11, 3, s60")
    e("v_lshlrev_b32 v7, 12, v7")
    e("v_lshl_add_u32 v7, v12, 1, v7")
    ZB, GV = 32, 210
    def zloads_l(track):
        L = []
        for p in range(2):
            for i in range(8):
                def f(p=p, i=i):
                    e(f"s_mov_b32 s60, {(32*p + i)*4096}")
                    e(f"buffer_load_ushort v{ZB+8*p+i}, v7, s[80:83], s60 offen sc1")
                    if track: vm.issue(("z", 0))
                L.append(f)
        def f():
            e(f"buffer_load_dword v{GV}, v14, s[84:87], 0 offen sc1")
            if track: vm.issue(("z", 0))
        L.append(f)
        return L
    ZS = 8
    FR = [16, 32]
    def reads_l(ci):
        b = FR[ci & 1]; sl = ci % S
        L = []
        for kl in range(2):
            for di in range(2):
                for h in range(2):
                    r = b + 8*kl + 4*di + 2*h
                    L.append(f"ds_read_b64_tr_b16 v[{r}:{r+1}], v{8+di} offset:{sl*4096 + kl*2048 + h*512}")
        return L
    def issue_l(ci):
        L = []
        sl = ci % S
        for jj in range(4):
            def f(jj=jj):
                e(f"s_add_u32 m0, s56, {sl*4096 + jj*1024}")
                e(f"s_mov_b32 s59, {(32*ci + 8*jj)*1024}")
                e(f"buffer_load_dwordx4 v208, s[72:75], s59 offen lds")
                vm.issue(("w2", ci))
            L.append(f)
        return L
    def issue_h_l(ci):
        L = []
        sl = ci % S
        for kl in range(2):
            for tj in range(2):
                def f(kl=kl, tj=tj):
                    r = HB + 16*sl + 8*kl + 4*tj
                    e(f"s_add_u32 s60, s{57+tj}, {ci*2048}")
                    e(f"buffer_load_dwordx4 v[{r}:{r+3}], v209, s[76:79], s60 offen offset:{kl*1024}")
                    vm.issue(("h", ci))
                L.append(f)
        return L
    NCH = 14
    if G2W:
        for ci in range(NCH):
            tags = [("h", ci)] + ([("w2", ci+1)] if (ci + 1 < NCH and ci + 1 >= G2W + S) else [])
            if ZE and ci == ZS + 2: tags.append(("zf", 0))
            e(f"s_waitcnt vmcnt({vm.need(tags)}) lgkmcnt(0)")
            rl = []; dl = []
            if ZE and ci == ZS + 2:
                e("v_cmp_ne_u32 vcc, v222, v220")
                e("v_cmp_ne_u32 s[60:61], v223, v221")
                e("s_nop 1")
                e("s_or_b64 s[62:63], vcc, s[60:61]")
                dl += zloads_l(True)
            if ci + 1 < NCH and ci + 1 >= G2W:
                Wb[ci+1] = free.pop(0)
                rl = treads(ci + 1, Wb[ci+1])
            while free and nh < NCH:
                Hb[nh] = free.pop(0)
                dl += issue_hb_l(nh, Hb[nh]); nh += 1
            if ci >= G2W and ci + S < NCH: dl += issue_l(ci + S)
            if ci == (ZS if ZE else 10):
                e("buffer_load_dwordx2 v[222:223], v6, s[52:55], 0 offen sc1"); vm.issue(("zf",0))
            per = max(2, (len(dl) + 7) // 8)
            for kl in range(2):
                for di in range(2):
                    for tj in range(2):
                        d = ACC + 16*(2*di+tj)
                        a = Wb[ci] + 8*kl + 4*di
                        hr = Hb[ci] + 8*kl + 4*tj
                        e(f"v_mfma_f32_32x32x16_bf16 v[{d}:{d+15}], v[{a}:{a+3}], v[{hr}:{hr+3}], v[{d}:{d+15}]")
                        for _ in range(2):
                            if rl: e(rl.pop(0))
                        for _ in range(per):
                            if dl: dl.pop(0)()
            assert not rl and not dl
            free += [Wb[ci], Hb[ci]]
            if ZE and ci == ZS:
                ZB = Hb[ci]; free.remove(ZB)
        assert nh == NCH
    else:
      for x in reads_l(0): e(x)
    hq = []
    for ci in range(0 if G2W else NCH):
        tags = [("h", ci)] + ([("w2", ci+1)] if ci + 1 < NCH else [])
        e(f"s_waitcnt vmcnt({vm.need(tags)}) lgkmcnt(0)")
        rl = reads_l(ci + 1) if ci + 1 < NCH else []
        dl = issue_l(ci + S) if ci + S < NCH else []
        dl = hq + dl
        hq = issue_h_l(ci + S) if ci + S < NCH else []
        if ci == 10:
            e("buffer_load_dwordx2 v[222:223], v6, s[52:55], 0 offen sc1"); vm.issue(("zf",0))
        b = FR[ci & 1]; sl = ci % S
        for kl in range(2):
            for di in range(2):
                for tj in range(2):
                    d = ACC + 16*(2*di+tj)
                    a = b + 8*kl + 4*di
                    hr = HB + 16*sl + 8*kl + 4*tj
                    e(f"v_mfma_f32_32x32x16_bf16 v[{d}:{d+15}], v[{a}:{a+3}], v[{hr}:{hr+3}], v[{d}:{d+15}]")
                    if rl: e(rl.pop(0))
                    if rl: e(rl.pop(0))
                    if dl: dl.pop(0)()
        assert not rl and not dl
    assert not hq
    stamp(e, 10, SV)
    if ZE and G2W:
        e("s_cmp_eq_u64 s[62:63], 0")
        e("s_cbranch_scc1 G2_ZOK")
    e("s_waitcnt vmcnt(0)")
    e("s_branch G2_CHK")
    e.lab("G2_POLL")
    e(f"s_sleep {PSL}")
    e("buffer_load_dwordx2 v[222:223], v6, s[52:55], 0 offen sc1")
    e("s_waitcnt vmcnt(0)")
    e.lab("G2_CHK")
    e("v_cmp_ne_u32 vcc, v222, v220")
    e("v_cmp_ne_u32 s[60:61], v223, v221")
    e("s_nop 1")
    e("s_or_b64 vcc, vcc, s[60:61]")
    e("s_cmp_eq_u64 vcc, 0")
    e("s_cbranch_scc0 G2_POLL")
    e.lab("G2_GO")
    if not FST: stamp(e, 11, SV)
    for f in zloads_l(False): f()
    e.lab("G2_ZOK")
    e("v_and_b32 v4, 31, v0")
    e("s_movk_i32 s60, 272")
    e("v_mul_lo_u32 v4, v4, s60")
    e("v_lshrrev_b32 v5, 5, v0")
    e("v_lshl_add_u32 v4, v5, 4, v4")
    e("v_add_u32 v4, s56, v4")
    for di in range(2):
        for tj in range(2):
            d = ACC + 16*(2*di+tj)
            for q in range(4):
                e(f"ds_write_b128 v4, v[{d+4*q}:{d+4*q+3}] offset:{tj*32*272 + di*128 + q*32}")
    e("s_waitcnt lgkmcnt(0)")
    e("s_barrier")
    if FST: stamp(e, 11, SV)
    e("s_lshl_b32 s60, s20, 4")
    e("v_add_u32 v5, s60, v10")
    e("s_movk_i32 s60, 272")
    e("v_mul_lo_u32 v5, v5, s60")
    e("v_lshl_add_u32 v5, v11, 5, v5")
    for pw in range(4):
        for p in range(2):
            for hh in range(2):
                r = 64 + 16*pw + 8*p + 4*hh
                e(f"ds_read_b128 v[{r}:{r+3}], v5 offset:{pw*S*4096 + p*128 + hh*16}")
    e("s_waitcnt lgkmcnt(0)")
    for i in range(16):
        e(f"v_add_f32 v{64+i}, v{64+i}, v{80+i}")
        e(f"v_add_f32 v{96+i}, v{96+i}, v{112+i}")
    for i in range(16):
        e(f"v_add_f32 v{64+i}, v{64+i}, v{96+i}")
    if FST: stamp(e, 13, SV)
    e("s_mov_b32 s62, 0xffff0000")
    def rb(a, t):
        e(f"v_cvt_pk_bf16_f32 v{t}, v{a}, v{a+1}")
        e(f"v_lshlrev_b32 v{a}, 16, v{t}")
        e(f"v_and_b32 v{a+1}, s62, v{t}")
    for i in range(8): rb(64+2*i, 25)
    e("s_waitcnt vmcnt(0)")
    e(f"v_sub_f32 v26, 1.0, v{GV}")
    e("v_mov_b32 v27, v26")
    rb(26, 25)
    for i in range(16): e(f"v_mul_f32 v{64+i}, v{64+i}, v26")
    for i in range(8): rb(64+2*i, 25)
    for p in range(2):
        for i in range(4):
            qv = 212 + 4*p + i
            z0 = ZB + 8*p + 2*i
            e(f"v_lshlrev_b32 v96, 16, v{qv}")
            e(f"v_and_b32 v97, s62, v{qv}")
            e(f"v_lshlrev_b32 v98, 16, v{z0}")
            e(f"v_lshlrev_b32 v99, 16, v{z0+1}")
            e("v_mul_f32 v96, v96, v98")
            e("v_mul_f32 v97, v97, v99")
            rb(96, 25)
            e(f"v_mul_f32 v96, v96, v{GV}")
            e(f"v_mul_f32 v97, v97, v{GV}")
            rb(96, 25)
            o = 64 + 8*p + 2*i
            e(f"v_add_f32 v96, v96, v{o}")
            e(f"v_add_f32 v97, v97, v{o+1}")
            e(f"v_cvt_pk_bf16_f32 v{100+4*p+i}, v96, v97")
        e(f"buffer_store_dwordx4 v[{100+4*p}:{103+4*p}], v13, s[96:99], 0 offen offset:{64*p} sc1 nt")
    stamp(e, 12, SV)
    if PROF and not FST: e("s_waitcnt vmcnt(0)")
    if not FST: stamp(e, 13, SV)
    stamp_store(e, SV, 0, 18)
    e("s_endpgm")

def gen_typeB(e):
    CH = 29440
    KC, UR, RED = 0, 16640, 21248
    e("s_sub_u32 s2, s2, 256")
    if G1ONLY and not BSTOP: e("s_endpgm")
    e("s_load_dwordx4 s[4:7], s[0:1], 0")
    e("s_load_dwordx4 s[8:11], s[0:1], 16")
    e("s_load_dwordx4 s[12:15], s[0:1], 32")
    e("s_load_dwordx2 s[16:17], s[0:1], 72")
    e("s_load_dwordx2 s[22:23], s[0:1], 88")
    e("s_load_dwordx2 s[18:19], s[0:1], 96")
    e("s_load_dwordx4 s[56:59], s[0:1], 56")
    if PRIOB: e(f"s_setprio {PRIOB}")
    e("s_lshr_b32 s24, s20, 1")
    e("s_and_b32 s25, s20, 1")
    e("s_and_b32 s26, s2, 7")
    e("s_lshl_b32 s26, s26, 6")
    e("s_lshr_b32 s27, s2, 3")
    e("s_lshl_b32 s27, s27, 1")
    e("s_add_u32 s26, s26, s27")
    e("s_add_u32 s26, s26, s24")
    e("s_lshl_b32 s27, s26, 12")
    e("s_mul_i32 s28, s24, %d" % CH)
    e("v_lshlrev_b32 v1, 4, v0")
    e("s_waitcnt lgkmcnt(0)")
    stamp(e, 0, 13)
    prep_setup(e)
    e("s_lshr_b32 s29, s2, 3")
    e("s_lshl_b32 s29, s29, 2")
    e("s_add_u32 s29, s29, s20")
    e("s_lshl_b32 s21, s29, 13")
    if PF & 1:
        srd(e, 52, 56, 512*3584)
        e("s_lshr_b32 s29, s2, 3")
        e("s_lshl_b32 s29, s29, 2")
        e("s_add_u32 s29, s29, s20")
        e("s_lshl_b32 s21, s29, 13")
        e("s_add_u32 s29, s21, %d" % (128*8192))
        e("v_lshlrev_b32 v2, 7, v0")
        e("buffer_load_dword v12, v2, s[52:55], s29 offen")
        e("s_and_b32 s30, s2, 7")
        e("s_lshl_b32 s30, s30, 18")
        e("s_add_u32 s30, s30, s21")
        e("s_sub_u32 s30, s30, %d" % (96*8192))
        e("s_cmp_lt_u32 s21, %d" % (96*8192))
        e("s_cbranch_scc1 B_NOQ")
        e("buffer_load_dword v12, v2, s[80:83], s30 offen")
        e.lab("B_NOQ")
    e("s_add_u32 s32, s12, s27"); e("s_addc_u32 s33, s13, 0"); e("s_mov_b32 s34, 4096"); e("s_mov_b32 s35, 0x00020000")
    srd(e, 36, 18, 512*4096, WS_U)
    srd(e, 40, 18, 512*4096, WS_Z)
    srd(e, 44, 14, 1024)
    srd(e, 48, 22, 256)
    srd(e, 60, 18, 0x18000, WS_F)
    def kloads():
        e("s_lshl_b32 s29, s26, 1")
        e("v_mov_b32 v2, s29")
        e("buffer_load_ushort v3, v2, s[44:47], 0 offen")
        e("s_lshl_b32 s29, s25, 10")
        e("v_add_u32 v4, s29, v1")
        for n in range(3):
            e(f"v_add_u32 v5, {(2048*n - 32) & 0xffffffff:#x}, v4")
            e(f"v_add_u32 v6, {(2048*n - 16) & 0xffffffff:#x}, v4")
            e(f"buffer_load_dwordx4 v[{16+8*n}:{19+8*n}], v5, s[32:35], 0 offen")
            e(f"buffer_load_dwordx4 v[{20+8*n}:{23+8*n}], v6, s[32:35], 0 offen")
    if not KLATE: kloads()
    if PRIOB: e(f"s_setprio {int(os.environ.get('PRIOB2','0'))}")
    e("s_waitcnt vmcnt(%d)" % (0 if KLATE else 7))
    stamp(e, 1, 13)
    if KLATE: kloads()
    if BSTOP == 1: e('s_waitcnt vmcnt(0) lgkmcnt(0)'); e('s_endpgm')
    if PF & 2:
        srd(e, 52, 58, 1792*1024)
        e("v_lshlrev_b32 v2, 7, v0")
        e("buffer_load_dword v12, v2, s[52:55], s21 offen")
        e("s_add_u32 s21, s21, %d" % (128*8192))
        e("buffer_load_dword v12, v2, s[52:55], s21 offen")
    pc = prep_compute()
    stamp(e, 9, 13)
    for ins in pc[:-2]: e(ins)
    stamp(e, 10, 13)
    for ins in pc[-2:]: e(ins)
    stamp(e, 11, 13)
    prep_gate(e)
    stamp(e, 2, 13)
    if BSTOP == 2: e('s_waitcnt vmcnt(0) lgkmcnt(0)'); e('s_endpgm')
    for i in range(4): e(f"v_mov_b32 v{8+i}, 0")
    e(f"v_add_u32 v7, s28, v1")
    e("v_cmp_gt_u32 vcc, 32, v0")
    e("s_and_saveexec_b64 s[52:53], vcc")
    e(f"ds_write_b128 v7, v[8:11] offset:{UR+4096}")
    e("s_mov_b64 exec, s[52:53]")
    e("v_add_u32 v7, s29, v7")
    e("s_waitcnt vmcnt(0)")
    e("s_barrier")
    e("s_cmp_lg_u32 s20, 0")
    e("s_cbranch_scc1 B_NOSIG")
    get_nonce(e, "B_N1", 48, 14, 54)
    e("s_lshl_b32 s54, s2, 7")
    e(f"s_add_u32 s54, s54, {F_U}")
    e("v_mov_b32 v8, s54")
    e("s_mov_b64 exec, 1")
    e(f"buffer_store_dwordx2 v[14:15], v8, s[60:63], 0 offen sc1")
    e("s_mov_b64 exec, -1")
    e.lab("B_NOSIG")
    if PF & 16:
        srd(e, 52, 58, 1792*1024)
        e("v_lshlrev_b32 v2, 7, v0")
        e("buffer_load_dword v200, v2, s[52:55], s21 offen")
        e("s_add_u32 s21, s21, %d" % (128*8192))
        e("buffer_load_dword v200, v2, s[52:55], s21 offen")
    stamp(e, 3, 13)
    if BSTOP == 3: e('s_waitcnt vmcnt(0) lgkmcnt(0)'); e('s_endpgm')
    for n in range(3):
        b = 16 + 8*n
        if n == 2:
            e("s_lshl_b32 s54, s25, 6")
            e("v_add_u32 v12, s54, v0")
            e("v_cmp_gt_u32 vcc, 4, v12")
            e("s_and_saveexec_b64 s[52:53], vcc")
            e("s_cbranch_execz CV_SKIPK")
        for i in range(5):
            e(f"v_alignbit_b32 v{48+i}, v{b+i+1}, v{b+i}, 16")
        for i in range(4):
            e(f"v_mov_b32 v{56+i}, v{49+i}")
            e(f"v_mov_b32 v{60+i}, v{b+1+i}")
        o = 2048*n
        e(f"ds_write_b128 v7, v[48:51] offset:{KC + 0*4160 + o}")
        e(f"ds_write_b128 v7, v[60:63] offset:{KC + 1*4160 + o}")
        e(f"ds_write_b128 v7, v[56:59] offset:{KC + 2*4160 + o}")
        e(f"ds_write_b128 v7, v[{b+2}:{b+5}] offset:{KC + 3*4160 + o}")
        if n == 2:
            e.lab("CV_SKIPK")
            e("s_mov_b64 exec, s[52:53]")
    e("v_and_b32 v4, 15, v0")
    e("v_lshrrev_b32 v5, 4, v0")
    e("v_and_b32 v6, 3, v0")
    e("s_movk_i32 s54, 4160")
    e("v_mul_lo_u32 v6, v6, s54")
    e("v_lshl_add_u32 v6, v5, 4, v6")
    e("v_and_b32 v8, 12, v0")
    e("v_lshl_add_u32 v6, v8, 1, v6")
    e("s_lshl_b32 s54, s25, 8")
    e("s_add_u32 s54, s54, s28")
    e("v_add_u32 v6, s54, v6")
    e("v_lshlrev_b32 v8, 5, v4")
    e("v_lshlrev_b32 v9, 4, v5")
    e("v_sub_u32 v8, v9, v8")
    e(f"s_add_u32 s54, s54, {UR + 4064 - 3584}")
    e("v_add_u32 v8, s54, v8")
    ACC = 224
    for i in range(32): e(f"v_mov_b32 v{ACC+i}, 0")
    e("v_and_b32 v10, 31, v0")
    e("v_lshlrev_b32 v10, 3, v10")
    e("s_and_b32 s54, s2, 7")
    e("v_add_u32 v10, s54, v10")
    e("v_lshlrev_b32 v10, 7, v10")
    e(f"v_add_u32 v10, {F_U}, v10")
    e("s_cmp_lg_u32 s20, 0")
    e("s_cbranch_scc1 B_UG")
    e.lab("B_UP")
    e(f"buffer_load_dwordx2 v[48:49], v10, s[60:63], 0 offen sc1")
    e("s_waitcnt vmcnt(0)")
    e("v_cmp_ne_u32 vcc, v48, v14")
    e("v_cmp_ne_u32 s[54:55], v49, v15")
    e("s_nop 1")
    e("s_or_b64 vcc, vcc, s[54:55]")
    e("s_cmp_eq_u64 vcc, 0")
    e("s_cbranch_scc1 B_UG")
    e(f"s_sleep {PSL}")
    e("s_branch B_UP")
    e.lab("B_UG")
    e("s_barrier")
    stamp(e, 4, 13)
    if BSTOP == 4: e('s_waitcnt vmcnt(0) lgkmcnt(0)'); e('s_endpgm')
    e("s_lshl_b32 s29, s25, 11")
    e("s_add_u32 s30, s27, s29")
    e("s_add_u32 s31, s28, s29")
    e(f"s_add_u32 m0, s31, {UR}")
    e("s_nop 0")
    e("buffer_load_dwordx4 v1, s[36:39], s30 offen sc1 lds")
    e("buffer_load_dwordx4 v1, s[36:39], s30 offen offset:1024 sc1 lds")
    e("s_waitcnt vmcnt(0) lgkmcnt(0)")
    e("s_barrier")
    stamp(e, 5, 13)
    if BSTOP == 5: e('s_waitcnt vmcnt(0) lgkmcnt(0)'); e('s_endpgm')
    SETS = [64, 128]
    def loads_l(rr):
        b = SETS[rr & 1]
        L = []
        for a in range(8):
            L.append(f"ds_read_b128 v[{b+32+4*a}:{b+35+4*a}], v8 offset:{512*(7-a) + 64*rr}")
            for h in range(2):
                L.append(f"ds_read_b64 v[{b+4*a+2*h}:{b+4*a+2*h+1}], v6 offset:{64*rr + 512*a + 8*h}")
        return L
    for x in loads_l(0): e(x)
    for rr in range(4):
        b = SETS[rr & 1]
        e("s_waitcnt lgkmcnt(0)")
        nxt = loads_l(rr + 1) if rr < 3 else []
        n = 0
        for s in range(8):
            for a in range(s + 1):
                bb = s - a
                d = ACC + 4*s
                e(f"v_mfma_f32_16x16x32_bf16 v[{d}:{d+3}], v[{b+4*a}:{b+4*a+3}], v[{b+32+4*bb}:{b+35+4*bb}], v[{d}:{d+3}]")
                if nxt: e(nxt.pop(0))
        assert not nxt
    e("s_nop 7")
    stamp(e, 6, 13)
    if BSTOP == 6: e('s_waitcnt vmcnt(0) lgkmcnt(0)'); e('s_endpgm')
    e(f"s_add_u32 s54, s28, {RED}")
    e("v_add_u32 v9, s54, v1")
    e("s_cmp_eq_u32 s25, 0")
    e("s_cbranch_scc1 CV_X0")
    for nt in range(4):
        e(f"ds_write_b128 v9, v[{ACC+4*nt}:{ACC+4*nt+3}] offset:{1024*nt}")
    e("s_waitcnt lgkmcnt(0)")
    e("s_barrier")
    for nt in range(4):
        e(f"ds_read_b128 v[{64+4*nt}:{67+4*nt}], v9 offset:{1024*(4+nt)}")
    e("s_waitcnt lgkmcnt(0)")
    for i in range(16):
        e(f"v_add_f32 v{64+i}, v{64+i}, v{ACC+16+i}")
    e("s_branch CV_FIN")
    e.lab("CV_X0")
    for nt in range(4):
        e(f"ds_write_b128 v9, v[{ACC+16+4*nt}:{ACC+16+4*nt+3}] offset:{1024*(4+nt)}")
    e("s_waitcnt lgkmcnt(0)")
    e("s_barrier")
    for nt in range(4):
        e(f"ds_read_b128 v[{64+4*nt}:{67+4*nt}], v9 offset:{1024*nt}")
    e("s_waitcnt lgkmcnt(0)")
    for i in range(16):
        e(f"v_add_f32 v{64+i}, v{64+i}, v{ACC+i}")
    e.lab("CV_FIN")
    e("v_lshlrev_b32 v10, 4, v4")
    e("v_lshl_add_u32 v10, v5, 2, v10")
    e("s_lshl_b32 s54, s25, 10")
    e("v_add_u32 v10, s54, v10")
    e(f"s_add_u32 s55, s28, {UR + 2*2044 - 512*3}")
    e("v_lshlrev_b32 v11, 1, v10")
    e("v_sub_u32 v11, s55, v11")
    for t in range(4):
        e(f"ds_read_b64 v[{80+2*t}:{81+2*t}], v11 offset:{512*(3-t)}")
    e("v_lshlrev_b32 v3, 16, v3")
    e("s_mov_b32 s56, 0xffff0000")
    e("v_lshlrev_b32 v12, 1, v10")
    e("v_add_u32 v12, s27, v12")
    e("s_waitcnt lgkmcnt(0)")
    for t in range(4):
        y = 64 + 4*t; kq = 80 + 2*t
        e(f"v_and_b32 v96, s56, v{kq+1}")
        e(f"v_lshlrev_b32 v97, 16, v{kq+1}")
        e(f"v_and_b32 v98, s56, v{kq}")
        e(f"v_lshlrev_b32 v99, 16, v{kq}")
        for i in range(4): e(f"v_mul_f32 v{96+i}, v{96+i}, v3")
        e("v_cvt_pk_bf16_f32 v100, v96, v97")
        e("v_cvt_pk_bf16_f32 v101, v98, v99")
        e(f"v_cvt_pk_bf16_f32 v102, v{y}, v{y+1}")
        e(f"v_cvt_pk_bf16_f32 v103, v{y+2}, v{y+3}")
        for i in range(2):
            e(f"v_lshlrev_b32 v{96+2*i}, 16, v{100+i}")
            e(f"v_and_b32 v{97+2*i}, s56, v{100+i}")
            e(f"v_lshlrev_b32 v{104+2*i}, 16, v{102+i}")
            e(f"v_and_b32 v{105+2*i}, s56, v{102+i}")
        for i in range(4): e(f"v_add_f32 v{96+i}, v{96+i}, v{104+i}")
        e(f"v_cvt_pk_bf16_f32 v{108+2*t}, v96, v97")
        e(f"v_cvt_pk_bf16_f32 v{109+2*t}, v98, v99")
        e(f"buffer_store_dwordx2 v[{108+2*t}:{109+2*t}], v12, s[40:43], 0 offen offset:{512*t} sc1")
    stamp(e, 7, 13)
    if BSTOP == 7: e('s_waitcnt vmcnt(0) lgkmcnt(0)'); e('s_endpgm')
    e("s_waitcnt vmcnt(0)")
    stamp(e, 8, 13)
    if BSTOP == 8: e('s_waitcnt vmcnt(0) lgkmcnt(0)'); e('s_endpgm')
    stamp_store(e, 13, 1, 18)
    e("s_barrier")
    e("s_cmp_lg_u32 s20, 0")
    e("s_cbranch_scc1 F_END")
    e("s_and_b32 s54, s2, 7")
    e("s_lshl_b32 s54, s54, 5")
    e("s_lshr_b32 s55, s2, 3")
    e("s_add_u32 s54, s54, s55")
    e("s_lshl_b32 s54, s54, 7")
    e(f"s_add_u32 s54, s54, {F_Z}")
    e("v_mov_b32 v1, s54")
    e("s_mov_b64 exec, 1")
    e("buffer_store_dwordx2 v[14:15], v1, s[60:63], 0 offen sc1")
    e("s_endpgm")


def gen_fused(e):
    e.lab("fused_kernel")
    e("s_cmp_ge_u32 s2, 512")
    e("s_cbranch_scc1 F_END")
    e("v_lshrrev_b32 v1, 6, v0")
    e("v_and_b32 v0, 63, v0")
    e("s_nop 0")
    e("v_readfirstlane_b32 s20, v1")
    if SWAP: e("s_xor_b32 s2, s2, 256")
    e("s_cmp_ge_u32 s2, 256")
    e("s_cbranch_scc1 F_B")
    gen_typeA(e)
    e.lab("F_B")
    gen_typeB(e)
    e.lab("F_END")
    e("s_endpgm")

def kdesc(name, vgpr, sgpr=96):
    return f""".amdhsa_kernel {name}
  .amdhsa_next_free_vgpr {vgpr}
  .amdhsa_next_free_sgpr {sgpr}
  .amdhsa_accum_offset {(vgpr+3)//4*4}
  .amdhsa_group_segment_fixed_size 0
  .amdhsa_kernarg_size 104
  .amdhsa_user_sgpr_count 2
  .amdhsa_user_sgpr_kernarg_segment_ptr 1
  .amdhsa_system_sgpr_workgroup_id_x 1
.end_amdhsa_kernel
"""

def main(out):
    e = E()
    hdr = "; @launch kernel=fused_kernel grid=(512,1,1) block=(256,1,1) lds=81920\n"
    hdr += '.amdgcn_target "amdgcn-amd-amdhsa--gfx950"\n.text\n'
    body = ".globl fused_kernel\n.p2align 8\n.type fused_kernel,@function\n"
    gen_fused(e)
    body += e.text()
    ro = '.section .rodata,"a"\n.p2align 6\n' + kdesc("fused_kernel", 256, 102)
    open(out, "w").write(hdr + body + ro)

if __name__ == "__main__":
    main(sys.argv[1] if len(sys.argv) > 1 else "k.s")
```

```python
import sys

KN = "gated_mix__ssm_conv_h3__dense_activation_relu__prompt"
WS_H = 0
WS_H_SIZE = 64*112*1024
WS_U = 0x800000
WS_G = 0xA00000
WS_Z = 0xB00000

class E:
    def __init__(self): self.l = []
    def __call__(self, s): self.l.append("    " + s)
    def lab(self, s): self.l.append(s + ":")
    def c(self, s): self.l.append("    ; " + s)
    def text(self): return "\n".join(self.l) + "\n"

import os
PROF = int(os.environ.get("PROF", "0"))
WS_P = 0xE00000
def stamp(e, idx, vr):
    if not PROF: return
    e("s_memrealtime s[100:101]")
    e("s_waitcnt lgkmcnt(0)")
    e(f"v_writelane_b32 v{vr}, s100, {idx}")
def stamp_store(e, vr, kidx, ws_lo):
    if not PROF: return
    e("s_getreg_b32 s100, hwreg(HW_REG_HW_ID)")
    e("s_getreg_b32 s101, hwreg(HW_REG_XCC_ID)")
    e(f"v_writelane_b32 v{vr}, s100, 14")
    e(f"v_writelane_b32 v{vr}, s101, 15")
    e(f"s_add_u32 s96, s{ws_lo}, {WS_P + kidx*0x40000:#x}")
    e(f"s_addc_u32 s97, s{ws_lo+1}, 0")
    e("s_mov_b32 s98, 0x40000")
    e("s_mov_b32 s99, 0x00020000")
    e("s_lshl_b32 s100, s2, 8")
    e("s_lshl_b32 s101, s20, 6")
    e("s_add_u32 s100, s100, s101")
    e("v_and_b32 v1, 15, v0")
    e("v_lshlrev_b32 v1, 2, v1")
    e("s_mov_b64 exec, 0xffff")
    e(f"buffer_store_dword v{vr}, v1, s[96:99], s100 offen")
    e("s_mov_b64 exec, -1")

def srd(e, sd, sp, size, off=0):
    if off:
        e(f"s_add_u32 s{sd}, s{sp}, {off:#x}")
        e(f"s_addc_u32 s{sd+1}, s{sp+1}, 0")
    else:
        e(f"s_mov_b32 s{sd}, s{sp}")
        e(f"s_mov_b32 s{sd+1}, s{sp+1}")
    e(f"s_mov_b32 s{sd+2}, {size:#x}")
    e(f"s_mov_b32 s{sd+3}, 0x00020000")

PB = 128
def prep_setup(e):
    P = PB
    e("s_lshr_b32 s60, s2, 3")
    e("s_and_b32 s61, s2, 7")
    srd(e, 64, 6, 2048*1024)
    srd(e, 68, 8, 2048*1024)
    srd(e, 72, 10, 512*8)
    srd(e, 76, 18, 512*4096, WS_U)
    srd(e, 80, 4, 2048*1024)
    srd(e, 84, 16, 1024)
    srd(e, 88, 18, 8192, WS_G)
    e(f"v_and_b32 v{P+1}, 31, v0")
    e(f"v_lshrrev_b32 v{P+2}, 5, v0")
    e("s_lshl_b32 s62, s20, 1")
    e(f"v_add_u32 v{P+2}, s62, v{P+2}")
    e("s_lshl_b32 s62, s60, 6")
    e(f"v_lshl_add_u32 v{P+3}, v{P+2}, 3, s62")
    e(f"v_lshlrev_b32 v{P+4}, 10, v{P+3}")
    e("s_lshl_b32 s63, s61, 7")
    e(f"v_lshl_add_u32 v{P+5}, v{P+1}, 2, s63")
    e(f"v_add_u32 v{P+4}, v{P+4}, v{P+5}")
    for i in range(11):
        e(f"v_add_u32 v{P+6}, {(i-3)*1024 & 0xffffffff:#x}, v{P+4}")
        e(f"buffer_load_dword v{P+16+i}, v{P+6}, s[64:67], 0 offen")
    for i in range(8):
        if i < 4:
            e(f"buffer_load_dword v{P+32+i}, v{P+4}, s[68:71], 0 offen offset:{i*1024}")
        else:
            if i == 4: e(f"v_add_u32 v{P+6}, 4096, v{P+4}")
            e(f"buffer_load_dword v{P+32+i}, v{P+6}, s[68:71], 0 offen offset:{(i-4)*1024}")
    e(f"v_lshlrev_b32 v{P+6}, 2, v{P+5}")
    e(f"buffer_load_dwordx4 v[{P+40}:{P+43}], v{P+6}, s[72:75], 0 offen")
    e("s_lshl_b32 s92, s2, 3")
    e("s_lshl_b32 s93, s20, 1")
    e("s_add_u32 s92, s92, s93")
    e("s_lshl_b32 s93, s92, 10")
    e(f"v_lshlrev_b32 v{P+7}, 4, v0")
    e(f"buffer_load_dwordx4 v[{P+44}:{P+47}], v{P+7}, s[80:83], s93 offen")
    e(f"buffer_load_dwordx4 v[{P+48}:{P+51}], v{P+7}, s[80:83], s93 offen offset:1024")
    e(f"buffer_load_dwordx4 v[{P+52}:{P+55}], v{P+7}, s[84:87], 0 offen")
    e("s_mov_b32 s94, 0xffff0000")
    e("s_mov_b32 s95, 0x05040100")
    e("s_mov_b32 s96, 0x07060302")
    e(f"v_lshlrev_b32 v{P+8}, 1, v{P+1}")
    e("s_lshl_b32 s93, s61, 6")
    e(f"v_add_u32 v{P+8}, s93, v{P+8}")
    e(f"v_lshlrev_b32 v{P+8}, 12, v{P+8}")
    e(f"v_sub_u32 v{P+9}, 2040, v{P+3}")
    e(f"v_lshl_add_u32 v{P+8}, v{P+9}, 1, v{P+8}")
    e(f"v_add_u32 v{P+9}, 4096, v{P+8}")
NPREP_LOADS = 11 + 8 + 1 + 3

def prep_compute():
    P = PB
    L = []
    e = L.append
    for j in range(4):
        for ch in range(2):
            src = P + 40 + 2*ch + (j >> 1)
            if j & 1: e(f"v_and_b32 v{P+56+2*j+ch}, s94, v{src}")
            else:     e(f"v_lshlrev_b32 v{P+56+2*j+ch}, 16, v{src}")
    for i in range(11):
        e(f"v_lshlrev_b32 v{P+64+2*i}, 16, v{P+16+i}")
        e(f"v_and_b32 v{P+65+2*i}, s94, v{P+16+i}")
    def rb(dst, src, tmp):
        e(f"v_cvt_pk_bf16_f32 v{tmp}, v{src}, v{src+1}")
        e(f"v_lshlrev_b32 v{dst}, 16, v{tmp}")
        e(f"v_and_b32 v{dst+1}, s94, v{tmp}")
    for r in range(8):
        S, Q, T = P+88, P+90, P+92
        e(f"v_pk_mul_f32 v[{S}:{S+1}], v[{P+64+2*r}:{P+65+2*r}], v[{P+62}:{P+63}]")
        rb(S, S, T)
        for j in (2, 1, 0):
            e(f"v_pk_mul_f32 v[{Q}:{Q+1}], v[{P+64+2*(r+3-j)}:{P+65+2*(r+3-j)}], v[{P+56+2*j}:{P+57+2*j}]")
            rb(Q, Q, T)
            e(f"v_pk_add_f32 v[{S}:{S+1}], v[{S}:{S+1}], v[{Q}:{Q+1}]")
            rb(S, S, T)
        e(f"v_lshlrev_b32 v{Q}, 16, v{P+32+r}")
        e(f"v_and_b32 v{Q+1}, s94, v{P+32+r}")
        e(f"v_pk_mul_f32 v[{S}:{S+1}], v[{S}:{S+1}], v[{Q}:{Q+1}]")
        e(f"v_cvt_pk_bf16_f32 v{P+96+r}, v{S}, v{S+1}")
    for m in range(4):
        e(f"v_perm_b32 v{P+104+m}, v{P+96+6-2*m}, v{P+96+7-2*m}, s95")
        e(f"v_perm_b32 v{P+108+m}, v{P+96+6-2*m}, v{P+96+7-2*m}, s96")
    e(f"buffer_store_dwordx4 v[{P+104}:{P+107}], v{P+8}, s[76:79], 0 offen sc1")
    e(f"buffer_store_dwordx4 v[{P+108}:{P+111}], v{P+9}, s[76:79], 0 offen sc1")
    return L

def prep_gate(e):
    P = PB
    def rb(dst, src, tmp):
        e(f"v_cvt_pk_bf16_f32 v{tmp}, v{src}, v{src+1}")
        e(f"v_lshlrev_b32 v{dst}, 16, v{tmp}")
        e(f"v_and_b32 v{dst+1}, s94, v{tmp}")
    G = P + 112
    A = P + 120
    X = P + 122; T = P + 124
    for i in range(4):
        e(f"v_lshlrev_b32 v{G+2*i}, 16, v{P+52+i}")
        e(f"v_and_b32 v{G+1+2*i}, s94, v{P+52+i}")
    for row in range(2):
        q = P + 44 + 4*row
        for i in range(4):
            e(f"v_lshlrev_b32 v{X}, 16, v{q+i}")
            e(f"v_and_b32 v{X+1}, s94, v{q+i}")
            e(f"v_pk_mul_f32 v[{X}:{X+1}], v[{X}:{X+1}], v[{G+2*i}:{G+1+2*i}]")
            rb(X, X, T)
            if i == 0: e(f"v_add_f32 v{A+row}, v{X}, v{X+1}")
            else:
                e(f"v_add_f32 v{A+row}, v{A+row}, v{X}")
                e(f"v_add_f32 v{A+row}, v{A+row}, v{X+1}")
    for sh in ("row_shr:1", "row_shr:2", "row_shr:4", "row_shr:8"):
        e("s_nop 1")
        for row in range(2):
            e(f"v_add_f32_dpp v{A+row}, v{A+row}, v{A+row} {sh} bound_ctrl:0")
    e("s_nop 1")
    for row in range(2):
        e(f"v_add_f32_dpp v{A+row}, v{A+row}, v{A+row} row_bcast:15 row_mask:0xa")
    e("s_nop 1")
    for row in range(2):
        e(f"v_add_f32_dpp v{A+row}, v{A+row}, v{A+row} row_bcast:31 row_mask:0xc")
    e("s_nop 1")
    e(f"v_readlane_b32 s98, v{A}, 63")
    e(f"v_readlane_b32 s99, v{A+1}, 63")
    e("s_nop 3")
    e(f"v_mov_b32 v{A}, s98")
    e(f"v_mov_b32 v{A+1}, s99")
    rb(A, A, T)
    e(f"v_mul_f32 v{A}, 0xbfb8aa3b, v{A}")
    e(f"v_mul_f32 v{A+1}, 0xbfb8aa3b, v{A+1}")
    e(f"v_exp_f32 v{A}, v{A}")
    e(f"v_exp_f32 v{A+1}, v{A+1}")
    e("s_nop 0")
    e(f"v_add_f32 v{A}, 1.0, v{A}")
    e(f"v_add_f32 v{A+1}, 1.0, v{A+1}")
    e(f"v_rcp_f32 v{A}, v{A}")
    e(f"v_rcp_f32 v{A+1}, v{A+1}")
    e("s_nop 0")
    rb(A, A, T)
    e("s_lshl_b32 s93, s92, 2")
    e(f"v_mov_b32 v{X}, s93")
    e("v_cmp_eq_u32 vcc, 0, v0")
    e("s_and_saveexec_b64 s[98:99], vcc")
    e(f"buffer_store_dwordx2 v[{A}:{A+1}], v{X}, s[88:91], 0 offen sc1")
    e("s_mov_b64 exec, s[98:99]")

class VM:
    def __init__(s): s.q = []
    def issue(s, tag): s.q.append(tag)
    def need(s, tags):
        idx = max([i for i, t in enumerate(s.q) if t in tags] + [-1])
        return len(s.q) - 1 - idx
    def clear(s): s.q = []

CNT_H, CNT_U, CNT_Z = 0, 32, 48
SWAP = int(os.environ.get('SWAP','0'))
PRIOA = int(os.environ.get('PRIOA','2'))
PRIOB = int(os.environ.get('PRIOB','0'))
PF = int(os.environ.get('PF','1'))
G1ONLY = int(os.environ.get('G1ONLY','0'))
NOTR = int(os.environ.get('NOTR','0'))
NOMF = int(os.environ.get('NOMF','0'))
NOLDS = int(os.environ.get('NOLDS','0'))
NOBAR = int(os.environ.get('NOBAR','0'))
ROT = int(os.environ.get('ROT','1'))
NOVM = int(os.environ.get('NOVM','0'))
NODMA = int(os.environ.get('NODMA','0'))
REP2 = int(os.environ.get('REP2','0'))
G2W = int(os.environ.get('G2W','6'))
EARLYW = int(os.environ.get('EARLYW','1'))
PP = int(os.environ.get('PP','0'))
KLATE = int(os.environ.get('KLATE','0'))
ZE = int(os.environ.get('ZE','1'))
FST = int(os.environ.get('FST','0'))
NQ = int(os.environ.get('NQ','3'))
PST = int(os.environ.get('PST','0'))
UPF = int(os.environ.get('UPF','99'))
UT = int(os.environ.get('UT','1'))
PFSL = int(os.environ.get('PFSL','1'))
MAP2 = int(os.environ.get('MAP2','0'))
BSTOP = int(os.environ.get('BSTOP','0'))
PSL = int(os.environ.get('PSL','8'))
SLEEP0 = int(os.environ.get('SLEEP0','1'))
WS_F = 0xF00000
F_H, F_U, F_Z = 0, 0x8000, 0x10000
SV = 15

def get_nonce(e, lab, dbg, vr, st):
    e.lab(lab)
    e(f"v_mov_b32 v{vr+1}, 0")
    e(f"buffer_load_dwordx2 v[{vr}:{vr+1}], v{vr+1}, s[{dbg}:{dbg+3}], 0 offen sc1")
    e("s_waitcnt vmcnt(0)")
    e(f"v_readfirstlane_b32 s{st}, v{vr}")
    e(f"s_cmp_lg_u32 s{st}, 0")
    e(f"s_cbranch_scc1 {lab}_OK")
    e("s_sleep 4")
    e(f"s_branch {lab}")
    e.lab(lab + "_OK")

def gen_typeA(e):
    e("s_load_dwordx2 s[4:5], s[0:1], 0")
    e("s_load_dwordx2 s[14:15], s[0:1], 56")
    e("s_load_dwordx2 s[18:19], s[0:1], 96")
    e("s_load_dwordx4 s[64:67], s[0:1], 64")
    e("s_load_dwordx4 s[68:71], s[0:1], 80")
    if PRIOA: e(f"s_setprio {PRIOA}")
    e("s_and_b32 s21, s2, 7")
    e("s_lshr_b32 s22, s2, 3")
    if MAP2:
        e("s_mul_i32 s23, s22, 37")
        e("s_lshr_b32 s23, s23, 8")
        e("s_lshr_b32 s25, s21, 1")
        e("s_lshl_b32 s25, s25, 2")
        e("s_add_u32 s25, s25, s23")
        e("s_mul_i32 s23, s23, 7")
        e("s_sub_u32 s26, s22, s23")
        e("s_and_b32 s23, s21, 1")
        e("s_mul_i32 s23, s23, 7")
        e("s_add_u32 s26, s26, s23")
    else:
        e("s_cmp_ge_u32 s22, 14")
        e("s_cselect_b32 s23, 1, 0")
        e("s_lshl_b32 s25, s21, 1")
        e("s_add_u32 s25, s25, s23")
        e("s_mul_i32 s23, s23, 14")
        e("s_sub_u32 s26, s22, s23")
    e("s_lshl_b32 s48, s21, 2")
    e("s_lshr_b32 s49, s22, 3")
    e("s_add_u32 s48, s48, s49")
    e("s_and_b32 s49, s22, 7")
    S = 5
    e("s_mul_i32 s56, s20, %d" % (S*4096))
    e("s_lshl_b32 s57, s48, 1")
    e("s_mul_i32 s57, s57, 112")
    e("s_mul_i32 s58, s20, 28")
    e("s_add_u32 s57, s57, s58")
    e("s_lshl_b32 s57, s57, 10")
    e("s_add_u32 s58, s57, %d" % (112*1024))
    e("s_waitcnt lgkmcnt(0)")
    stamp(e, 0, SV)
    if PST and PROF: e(f"v_writelane_b32 v{SV}, s38, 12")
    srd(e, 28, 4, 2048*1024)
    srd(e, 32, 14, 512*3584)
    srd(e, 72, 64, 1792*1024)
    srd(e, 76, 18, WS_H_SIZE, WS_H)
    srd(e, 80, 18, 512*4096, WS_Z)
    srd(e, 84, 18, 8192, WS_G)
    srd(e, 88, 4, 2048*1024)
    srd(e, 92, 70, 256)
    srd(e, 96, 68, 2048*1024)
    srd(e, 52, 18, 0x18000, WS_F)
    e("v_mov_b32 v1, 0")
    e("s_or_b32 s46, s2, s20")
    e("s_cmp_lg_u32 s46, 0")
    e("s_cbranch_scc1 A_NOPUB")
    e("s_memrealtime s[46:47]")
    e("s_waitcnt lgkmcnt(0)")
    e("s_or_b32 s46, s46, 1")
    e("v_mov_b32 v2, s46")
    e("v_mov_b32 v3, s47")
    e("s_mov_b64 exec, 1")
    e("buffer_store_dwordx2 v[2:3], v1, s[92:95], 0 offen sc1")
    e("s_mov_b64 exec, -1")
    e.lab("A_NOPUB")
    e("v_mov_b32 v1, 0")
    e("buffer_load_dwordx2 v[22:23], v1, s[92:95], 0 offen sc1")
    if PF & 1:
        e("s_lshr_b32 s46, s2, 3")
        e("s_lshl_b32 s46, s46, 2")
        e("s_add_u32 s46, s46, s20")
        e("s_lshl_b32 s46, s46, 13")
        e("v_lshlrev_b32 v1, 7, v0")
        e("buffer_load_dword v24, v1, s[32:35], s46 offen")
    if PF & 32:
        srd(e, 60, 18, 16 << 20)
        e("v_lshlrev_b32 v1, 20, v0")
        e("buffer_load_dword v24, v1, s[60:63], 0 offen")
        e("buffer_load_dword v24, v1, s[72:75], 0 offen")
        e("buffer_load_dword v24, v1, s[96:99], 0 offen")
    if PF & 4:
        e("s_lshr_b32 s46, s2, 3")
        e("s_cmp_ge_u32 s46, 8")
        e("s_cbranch_scc1 A_NOQPF")
        e("s_lshl_b32 s46, s46, 2")
        e("s_add_u32 s46, s46, s20")
        e("s_lshl_b32 s46, s46, 13")
        e("s_lshl_b32 s47, s21, 18")
        e("s_add_u32 s46, s46, s47")
        e("v_lshlrev_b32 v1, 7, v0")
        e("buffer_load_dword v24, v1, s[28:31], s46 offen")
        e.lab("A_NOQPF")
    e("s_cmp_ge_u32 s2, 224")
    if PF & 8:
        e("s_cbranch_scc0 A_G1")
        for _ in range(PFSL): e("s_sleep 64")
        e("s_sub_u32 s46, s2, 224")
        e("s_lshr_b32 s46, s46, 3")
        e("s_mul_i32 s46, s46, %d" % (3584*128))
        e("s_lshl_b32 s47, s20, 13")
        e("s_add_u32 s46, s46, s47")
        e("v_lshlrev_b32 v1, 7, v0")
        for it in range(14):
            e("buffer_load_dword v24, v1, s[72:75], s46 offen")
            if it < 13: e("s_add_u32 s46, s46, %d" % (256*128))
        e("s_branch A_PRE")
        e.lab("A_G1")
    else:
        e("s_cbranch_scc1 A_PRE")
    vm = VM()
    e("v_lshrrev_b32 v2, 3, v0")
    e("s_lshl_b32 s27, s25, 7")
    e("s_lshl_b32 s40, s20, 5")
    e("s_add_u32 s27, s27, s40")
    e("v_add_u32 v2, s27, v2")
    e("v_lshlrev_b32 v2, 10, v2")
    e("v_and_b32 v3, 7, v0")
    e("v_lshrrev_b32 v4, 4, v0")
    e("v_xor_b32 v3, v3, v4")
    e("v_lshl_add_u32 v2, v3, 4, v2")
    e("v_xor_b32 v3, 64, v2")
    e("s_lshl_b32 s40, s20, 3")
    e("v_add_u32 v5, s40, v4")
    e("s_movk_i32 s41, 3584")
    e("v_mul_lo_u32 v5, v5, s41")
    e("v_and_b32 v6, 15, v0")
    e("v_lshlrev_b32 v7, 2, v4")
    e("v_xor_b32 v6, v6, v7")
    e("v_lshl_add_u32 v5, v6, 4, v5")
    e("s_lshl_b32 s40, s26, 8")
    e("v_add_u32 v5, s40, v5")
    e("s_lshl_b32 s42, s20, 12")
    e("s_lshl_b32 s47, s20, 11")
    WB = NQ*16384
    WR = 128
    NWR = 12
    NW = 3 if NQ == 3 else 2
    def dq(c, j):
        def f():
            e(f"s_add_u32 m0, s42, {(c%NQ)*16384 + j*1024}")
            if ROT:
                e(f"s_add_u32 s43, s50, {c*128}")
                e(f"s_and_b32 s43, s43, 1023")
                e(f"s_add_u32 s43, s43, {j*8192}")
            else:
                e(f"s_mov_b32 s43, {j*8192 + c*128}")
            e(f"buffer_load_dwordx4 v{2 + (j&1)}, s[28:31], s43 offen lds")
            vm.issue(("Q", c))
        return f
    def lw1(hc, j):
        def f():
            r = WR + 8*(hc % NWR) + 4*j
            if ROT:
                e(f"s_add_u32 s43, s51, {hc}")
                e(f"s_and_b32 s43, s43, 15")
                e(f"s_mul_i32 s43, s43, {32*3584}")
                e(f"s_add_u32 s43, s43, {4*j*3584}")
            else:
                e(f"s_mov_b32 s43, {(32*hc + 4*j)*3584}")
            e(f"buffer_load_dwordx4 v[{r}:{r+3}], v5, s[32:35], s43 offen")
            vm.issue(("W", hc))
        return f
    def lw(hc):
        for j in range(2): lw1(hc, j)()
    e("s_and_b32 s51, s26, 7")
    e("s_lshl_b32 s50, s51, 7")
    e("s_lshl_b32 s51, s51, 1")
    if PST: stamp(e, 11, SV)
    if UPF >= 99:
        order = []
        for c in range(NQ): order += [("Q", c), ("W", 2*c), ("W", 2*c+1)]
        order += [("W", hc) for hc in range(2*NQ, NWR)]
    else:
        order = [("Q",0),("W",0),("W",1),("W",2),("W",3),("Q",1),("W",4),("W",5),("Q",2),("W",6),("W",7)]
        if NQ == 4: order += [("Q",3)]
        order += [("W", hc) for hc in range(8, NWR)]
    left = []
    for n, (t, i) in enumerate(order):
        fs = [dq(i, j) for j in range(4)] if t == "Q" else [lw1(i, j) for j in range(2)]
        if n < UPF:
            for f in fs: f()
        else: left += fs
    if PST: stamp(e, 13, SV)
    e("s_and_b32 s44, s20, 1")
    e("s_lshr_b32 s45, s20, 1")
    e("v_and_b32 v6, 31, v0")
    e("v_lshrrev_b32 v7, 5, v0")
    e("v_bfe_u32 v8, v0, 1, 3")
    e("v_xor_b32 v8, v8, v7")
    e("v_lshlrev_b32 v8, 4, v8")
    e("v_lshl_add_u32 v8, v6, 7, v8")
    e("s_lshl_b32 s46, s44, 13")
    e("v_add_u32 v8, s46, v8")
    for k in range(4):
        e(f"v_xor_b32 v{10+k}, {32*k}, v8")
    e("v_bfe_u32 v6, v0, 2, 2")
    e("v_lshrrev_b32 v7, 5, v0")
    e("v_lshl_add_u32 v7, v7, 3, v6")
    e("v_lshlrev_b32 v7, 8, v7")
    e("v_bfe_u32 v9, v0, 4, 1")
    e("v_lshl_add_u32 v7, v9, 5, v7")
    e("v_and_b32 v9, 3, v0")
    e("v_lshl_add_u32 v7, v9, 3, v7")
    e(f"v_add_u32 v7, {WB}, v7")
    e("s_lshl_b32 s46, s45, 1")
    e("v_xor_b32 v9, s46, v6")
    e("v_lshl_add_u32 v18, v9, 6, v7")
    e("v_xor_b32 v19, 64, v18")
    e("v_lshlrev_b32 v20, 4, v0")
    e("v_add_u32 v20, s47, v20")
    e(f"v_add_u32 v20, {WB}, v20")
    ACC = 64
    for i in range(64):
        e(f"v_mov_b32 v{ACC+i}, 0")
    FR = [32, 48, 224]
    lg = VM()
    def ww_l(hc):
        L = []
        for j in range(2):
            def f(j=j):
                r = WR + 8*(hc % NWR) + 4*j
                e(f"ds_write_b128 v20, v[{r}:{r+3}] offset:{(hc%NW)*8192 + j*1024}")
                lg.issue(("w", hc))
            L.append(f)
        return L
    def ww(hc):
        for f in ww_l(hc): f()
    def rf_l(step):
        if NOLDS: return []
        c, k, hc, kk = step >> 2, step & 3, step >> 1, step & 1
        b = FR[step % 3]
        LQ = []; LW = []
        for tj in range(2):
            def f(tj=tj):
                e(f"ds_read_b128 v[{b+8+4*tj}:{b+11+4*tj}], v{10+k} offset:{(c%NQ)*16384 + tj*4096}")
                lg.issue(("r", step))
            LQ.append(f)
        for fi in range(2):
            for h in range(2):
                def f(fi=fi, h=h):
                    e(f"ds_read_b64_tr_b16 v[{b+4*fi+2*h}:{b+4*fi+2*h+1}], v{18+fi} offset:{(hc%NW)*8192 + kk*4096 + h*1024}")
                    lg.issue(("rw", step))
                LW.append(f)
        return (LQ + LW) if NW == 3 else (LW + LQ)
    def read_frags(step):
        for f in rf_l(step): f()
    pend = list(left)
    def mfmas(step, ldsops):
        b = FR[step % 3]
        n = 0
        per = (len(ldsops) + 3) // 4
        for fi in range(2):
            for tj in range(2):
                d = ACC + 16*(2*fi+tj)
                if not NOMF: e(f"v_mfma_f32_32x32x16_bf16 v[{d}:{d+15}], v[{b+4*fi}:{b+4*fi+3}], v[{b+8+4*tj}:{b+8+4*tj+3}], v[{d}:{d+15}]")
                for _ in range(per):
                    if ldsops: ldsops.pop(0)()
                if pend:
                    f = pend.pop(0)
                    if not NODMA: f()
    stamp(e, 1, SV)
    e(f"s_waitcnt vmcnt({vm.need([('Q',0),('W',0),('W',1)])})")
    ww(0); ww(1)
    e("s_waitcnt lgkmcnt(0)")
    lg.clear()
    if REP2:
        e("s_mov_b32 s46, 0")
        e.lab("A_REP")
    stamp(e, 2, SV)
    if G1ONLY:
        e("s_memtime s[100:101]"); e("s_waitcnt lgkmcnt(0)"); e(f"v_writelane_b32 v{SV}, s100, 10")
    e("s_barrier")
    read_frags(0); read_frags(1)
    NS = 32
    for step in range(NS):
        hc, c = step >> 1, step >> 2
        e(f"s_waitcnt lgkmcnt({lg.need([('r', step), ('rw', step)] + ([('rw', step+1)] if (NW == 2 and step & 1 == 0) else []))})")
        ops = []
        if step & 1 == 0:
            tags = []
            if hc >= 1:
                if hc & 1 and (hc+1) >> 1 < 8: tags.append(("Q", (hc+1) >> 1))
            if hc + 2 < 16: tags.append(("W", hc+2))
            if hc == 0: tags.append(("Q", 0))
            for t in tags: assert vm.q.count(t) == (4 if t[0] == "Q" else 2), (t, step)
            if tags and not NOVM: e(f"s_waitcnt vmcnt({min(63, vm.need(tags))})")
            if hc >= 1 or NW == 2:
                if not NOBAR: e("s_barrier")
                if hc in (4, 8, 12):
                    stamp(e, 2 + hc//4, SV); lg.clear()
            if hc + 2 < 16: ops += ww_l(hc + 2)
            if hc + NWR - 0 < 16 and hc >= 0:
                for j in range(2): pend.append(lw1(hc + NWR, j))
            if hc >= 2 and hc & 1 == 0 and (hc - 2)//2 + NQ < 8:
                for j in range(4): pend.append(dq((hc-2)//2 + NQ, j))
        if step + 2 < NS: ops = ops + rf_l(step + 2)
        mfmas(step, ops)
    e("s_barrier")
    assert not pend
    stamp(e, 6, SV)
    if G1ONLY:
        e("s_memtime s[100:101]"); e("s_waitcnt lgkmcnt(0)"); e(f"v_writelane_b32 v{SV}, s100, 11")
    if REP2:
        e("s_add_u32 s46, s46, 1")
        e("s_cmp_lt_u32 s46, 2")
        e("s_cbranch_scc1 A_REP")
    def issue(ci):
        sl = ci % S
        for jj in range(4):
            e(f"s_add_u32 m0, s56, {sl*4096 + jj*1024}")
            e(f"s_mov_b32 s59, {(32*ci + 8*jj)*1024}")
            e(f"buffer_load_dwordx4 v208, s[72:75], s59 offen lds")
            vm.issue(("w2", ci))
    def pre_issue():
        e("v_lshrrev_b32 v2, 3, v0")
        e("s_mul_i32 s46, s20, 448")
        e("v_add_u32 v2, s46, v2")
        e("v_lshlrev_b32 v2, 10, v2")
        e("v_and_b32 v3, 7, v0")
        e("v_bfe_u32 v4, v0, 4, 1")
        e("v_lshlrev_b32 v4, 2, v4")
        e("v_xor_b32 v3, v3, v4")
        e("v_lshl_add_u32 v2, v3, 4, v2")
        e("s_lshl_b32 s46, s49, 7")
        e("v_add_u32 v208, s46, v2")
        e("v_lshlrev_b32 v209, 4, v0")
        for ci in range(S): issue(ci)
    if EARLYW: pre_issue()
    e("v_lshlrev_b32 v209, 4, v0")
    e("s_lshl_b32 s46, s25, 2")
    e("s_lshl_b32 s47, s44, 1")
    e("s_add_u32 s46, s46, s47")
    e("s_mul_i32 s46, s46, 112")
    e("s_lshl_b32 s47, s26, 3")
    e("s_add_u32 s46, s46, s47")
    e("s_lshl_b32 s47, s45, 2")
    e("s_add_u32 s46, s46, s47")
    e("s_lshl_b32 s46, s46, 10")
    e("v_add_u32 v2, s46, v209")
    e("v_add_u32 v3, 112*1024, v2")
    for fi in range(2):
        for tj in range(2):
            d = ACC + 16*(2*fi+tj)
            for kq in range(2):
                p = 32 + 4*((2*tj+kq) & 3)
                for x in range(4):
                    i0 = d + 8*kq + 2*x
                    e(f"v_max_f32 v{i0}, 0, v{i0}")
                    e(f"v_max_f32 v{i0+1}, 0, v{i0+1}")
                for x in range(4):
                    i0 = d + 8*kq + 2*x
                    e(f"v_cvt_pk_bf16_f32 v{p+x}, v{i0}, v{i0+1}")
                e("s_nop 1")
                e(f"v_permlane32_swap_b32 v{p}, v{p+2}")
                e(f"v_permlane32_swap_b32 v{p+1}, v{p+3}")
                e(f"buffer_store_dwordx4 v[{p}:{p+3}], v{2+tj}, s[76:79], 0 offen offset:{(2*fi+kq)*1024} sc1")
    stamp(e, 7, SV)
    e("s_waitcnt vmcnt(0)")
    e("s_barrier")
    stamp(e, 8, SV)
    e("s_cmp_lg_u32 s20, 0")
    e("s_cbranch_scc1 A_PRE")
    e("v_mov_b32 v220, v22")
    e("v_mov_b32 v221, v23")
    e("v_readfirstlane_b32 s46, v22")
    e("s_cmp_lg_u32 s46, 0")
    e("s_cbranch_scc1 A_N1_OK")
    get_nonce(e, "A_N1", 92, 220, 46)
    e("s_lshl_b32 s46, s25, 4")
    e("s_add_u32 s46, s46, s26")
    e("s_lshl_b32 s46, s46, 7")
    e("v_mov_b32 v1, s46")
    e("s_mov_b64 exec, 1")
    e(f"buffer_store_dwordx2 v[220:221], v1, s[52:55], 0 offen offset:{F_H} sc1")
    e("s_mov_b64 exec, -1")
    if EARLYW: e("s_branch A_PRE2")
    e.lab("A_PRE")
    pre_issue()
    e.lab("A_PRE2")
    e.lab("A_POLL")
    if G1ONLY:
        stamp_store(e, SV, 0, 18)
        e("s_endpgm")
    HB = 128
    BLK = [16, 32, 48, 128, 144, 160, 176, 192, 224, 240]
    def issue_h(ci):
        sl = ci % S
        e(f"s_add_u32 s59, s57, {ci*2048}")
        e(f"s_add_u32 s60, s58, {ci*2048}")
        for kl in range(2):
            for tj in range(2):
                r = HB + 16*sl + 8*kl + 4*tj
                e(f"buffer_load_dwordx4 v[{r}:{r+3}], v209, s[76:79], s{59+tj} offen offset:{kl*1024}")
                vm.issue(("h", ci))
    e("v_bfe_u32 v6, v0, 2, 2")
    e("v_lshrrev_b32 v7, 5, v0")
    e("v_lshl_add_u32 v7, v7, 3, v6")
    e("v_lshlrev_b32 v7, 7, v7")
    e("v_bfe_u32 v9, v0, 4, 1")
    e("v_lshl_add_u32 v7, v9, 5, v7")
    e("v_and_b32 v9, 3, v0")
    e("v_lshl_add_u32 v7, v9, 3, v7")
    e("v_lshrrev_b32 v9, 1, v6")
    e("v_lshl_add_u32 v8, v9, 6, v7")
    e("v_add_u32 v8, s56, v8")
    e("v_xor_b32 v9, 64, v8")
    e("v_and_b32 v10, 15, v0")
    e("v_lshrrev_b32 v11, 4, v0")
    e("s_lshl_b32 s59, s48, 6")
    e("s_lshl_b32 s60, s20, 4")
    e("s_add_u32 s59, s59, s60")
    e("v_add_u32 v12, s59, v10")
    e("v_lshlrev_b32 v13, 10, v12")
    e("v_lshl_add_u32 v13, v11, 4, v13")
    e("s_lshl_b32 s60, s49, 7")
    e("v_add_u32 v13, s60, v13")
    e("buffer_load_dwordx4 v[212:215], v13, s[88:91], 0 offen"); vm.issue(("q", 0))
    e("buffer_load_dwordx4 v[216:219], v13, s[88:91], 0 offen offset:64"); vm.issue(("q", 1))
    e("v_lshlrev_b32 v14, 2, v12")
    ACC = 64
    def treads(ci, b):
        sl = ci % S
        L = []
        for kl in range(2):
            for di in range(2):
                for h in range(2):
                    r = b + 8*kl + 4*di + 2*h
                    L.append(f"ds_read_b64_tr_b16 v[{r}:{r+1}], v{8+di} offset:{sl*4096 + kl*2048 + h*512}")
        return L
    for ci in range(G2W):
        e(f"s_waitcnt vmcnt({vm.need([('w2', ci)])})")
        for x in treads(ci, BLK[ci]): e(x)
        e("s_waitcnt lgkmcnt(0)")
        issue(ci + S)
    e("s_lshr_b32 s60, s48, 1")
    e("s_lshl_b32 s60, s60, 4")
    e("v_min_u32 v6, 13, v0")
    e("v_add_u32 v6, s60, v6")
    e("v_lshlrev_b32 v6, 7, v6")
    e("s_cmp_lg_u32 s20, 0")
    e("s_cbranch_scc1 A_HG")
    e("s_cmp_lt_u32 s2, 224")
    e("s_cbranch_scc1 A_HP")
    for _ in range(SLEEP0): e("s_sleep 64")
    get_nonce(e, "A_N2", 92, 220, 46)
    e.lab("A_HP")
    if PP:
        R = [222, 210, 2, 4]
        for k in range(3):
            e(f"buffer_load_dwordx2 v[{R[k]}:{R[k]+1}], v6, s[52:55], 0 offen offset:{F_H} sc1")
            e(f"s_sleep {PP}")
        e.lab("A_HPL")
        for k in range(4):
            n = R[(k + 3) % 4]; o = R[k]
            e(f"buffer_load_dwordx2 v[{n}:{n+1}], v6, s[52:55], 0 offen offset:{F_H} sc1")
            e("s_waitcnt vmcnt(3)")
            e(f"v_cmp_ne_u32 vcc, v{o}, v220")
            e(f"v_cmp_ne_u32 s[60:61], v{o+1}, v221")
            e("s_nop 1")
            e("s_or_b64 vcc, vcc, s[60:61]")
            e("s_cmp_eq_u64 vcc, 0")
            e("s_cbranch_scc1 A_HG2")
            e(f"s_sleep {PP}")
        e("s_branch A_HPL")
    else:
        e(f"buffer_load_dwordx2 v[222:223], v6, s[52:55], 0 offen offset:{F_H} sc1")
        e("s_waitcnt vmcnt(0)")
        e("v_cmp_ne_u32 vcc, v222, v220")
        e("v_cmp_ne_u32 s[60:61], v223, v221")
        e("s_nop 1")
        e("s_or_b64 vcc, vcc, s[60:61]")
        e("s_cmp_eq_u64 vcc, 0")
        e("s_cbranch_scc1 A_HG")
        e(f"s_sleep {PSL}")
        e("s_branch A_HP")
    e.lab("A_HG")
    e("s_waitcnt vmcnt(0)")
    e.lab("A_HG2")
    e("s_barrier")
    vm.clear()
    e("v_mov_b32 v1, 0")
    e("buffer_load_dwordx2 v[220:221], v1, s[92:95], 0 offen sc1")
    vm.issue(("nonce", 0))
    def issue_hb_l(ci, b):
        L = []
        for kl in range(2):
            for tj in range(2):
                def f(kl=kl, tj=tj):
                    r = b + 8*kl + 4*tj
                    e(f"s_add_u32 s60, s{57+tj}, {ci*2048}")
                    e(f"buffer_load_dwordx4 v[{r}:{r+3}], v209, s[76:79], s60 offen offset:{kl*1024}")
                    vm.issue(("h", ci))
                L.append(f)
        return L
    if G2W:
        Wb = {c: BLK[c] for c in range(G2W)}
        Hb = {}
        free = BLK[G2W:]
        nh = 0
        while free:
            Hb[nh] = free.pop(0)
            for f in issue_hb_l(nh, Hb[nh]): f()
            nh += 1
    else:
        for ci in range(S): issue_h(ci)
    stamp(e, 9, SV)
    for i in range(64): e(f"v_mov_b32 v{ACC+i}, 0")
    e("s_lshl_b32 s60, s49, 5")
    e("v_add_u32 v6, s60, v0")
    e("v_lshlrev_b32 v6, 7, v6")
    e(f"v_add_u32 v6, {F_Z}, v6")
    e("v_and_b32 v7, 7, v0")
    e("s_lshl_b32 s60, s48, 3")
    e("v_add_u32 v7, s60, v7")
    e("v_lshlrev_b32 v7, 7, v7")
    e(f"v_add_u32 v7, {F_U}, v7")
    e("v_cmp_gt_u32 vcc, 32, v0")
    e("v_cndmask_b32 v6, v7, v6, vcc")
    e("s_lshl_b32 s60, s49, 6")
    e("v_lshl_add_u32 v7, v11, 3, s60")
    e("v_lshlrev_b32 v7, 12, v7")
    e("v_lshl_add_u32 v7, v12, 1, v7")
    ZB, GV = 32, 210
    def zloads_l(track):
        L = []
        for p in range(2):
            for i in range(8):
                def f(p=p, i=i):
                    e(f"s_mov_b32 s60, {(32*p + i)*4096}")
                    e(f"buffer_load_ushort v{ZB+8*p+i}, v7, s[80:83], s60 offen sc1")
                    if track: vm.issue(("z", 0))
                L.append(f)
        def f():
            e(f"buffer_load_dword v{GV}, v14, s[84:87], 0 offen sc1")
            if track: vm.issue(("z", 0))
        L.append(f)
        return L
    ZS = 8
    FR = [16, 32]
    def reads_l(ci):
        b = FR[ci & 1]; sl = ci % S
        L = []
        for kl in range(2):
            for di in range(2):
                for h in range(2):
                    r = b + 8*kl + 4*di + 2*h
                    L.append(f"ds_read_b64_tr_b16 v[{r}:{r+1}], v{8+di} offset:{sl*4096 + kl*2048 + h*512}")
        return L
    def issue_l(ci):
        L = []
        sl = ci % S
        for jj in range(4):
            def f(jj=jj):
                e(f"s_add_u32 m0, s56, {sl*4096 + jj*1024}")
                e(f"s_mov_b32 s59, {(32*ci + 8*jj)*1024}")
                e(f"buffer_load_dwordx4 v208, s[72:75], s59 offen lds")
                vm.issue(("w2", ci))
            L.append(f)
        return L
    def issue_h_l(ci):
        L = []
        sl = ci % S
        for kl in range(2):
            for tj in range(2):
                def f(kl=kl, tj=tj):
                    r = HB + 16*sl + 8*kl + 4*tj
                    e(f"s_add_u32 s60, s{57+tj}, {ci*2048}")
                    e(f"buffer_load_dwordx4 v[{r}:{r+3}], v209, s[76:79], s60 offen offset:{kl*1024}")
                    vm.issue(("h", ci))
                L.append(f)
        return L
    NCH = 14
    if G2W:
        for ci in range(NCH):
            tags = [("h", ci)] + ([("w2", ci+1)] if (ci + 1 < NCH and ci + 1 >= G2W + S) else [])
            if ZE and ci == ZS + 2: tags.append(("zf", 0))
            e(f"s_waitcnt vmcnt({vm.need(tags)}) lgkmcnt(0)")
            rl = []; dl = []
            if ZE and ci == ZS + 2:
                e("v_cmp_ne_u32 vcc, v222, v220")
                e("v_cmp_ne_u32 s[60:61], v223, v221")
                e("s_nop 1")
                e("s_or_b64 s[62:63], vcc, s[60:61]")
                dl += zloads_l(True)
            if ci + 1 < NCH and ci + 1 >= G2W:
                Wb[ci+1] = free.pop(0)
                rl = treads(ci + 1, Wb[ci+1])
            while free and nh < NCH:
                Hb[nh] = free.pop(0)
                dl += issue_hb_l(nh, Hb[nh]); nh += 1
            if ci >= G2W and ci + S < NCH: dl += issue_l(ci + S)
            if ci == (ZS if ZE else 10):
                e("buffer_load_dwordx2 v[222:223], v6, s[52:55], 0 offen sc1"); vm.issue(("zf",0))
            per = max(2, (len(dl) + 7) // 8)
            for kl in range(2):
                for di in range(2):
                    for tj in range(2):
                        d = ACC + 16*(2*di+tj)
                        a = Wb[ci] + 8*kl + 4*di
                        hr = Hb[ci] + 8*kl + 4*tj
                        e(f"v_mfma_f32_32x32x16_bf16 v[{d}:{d+15}], v[{a}:{a+3}], v[{hr}:{hr+3}], v[{d}:{d+15}]")
                        for _ in range(2):
                            if rl: e(rl.pop(0))
                        for _ in range(per):
                            if dl: dl.pop(0)()
            assert not rl and not dl
            free += [Wb[ci], Hb[ci]]
            if ZE and ci == ZS:
                ZB = Hb[ci]; free.remove(ZB)
        assert nh == NCH
    else:
      for x in reads_l(0): e(x)
    hq = []
    for ci in range(0 if G2W else NCH):
        tags = [("h", ci)] + ([("w2", ci+1)] if ci + 1 < NCH else [])
        e(f"s_waitcnt vmcnt({vm.need(tags)}) lgkmcnt(0)")
        rl = reads_l(ci + 1) if ci + 1 < NCH else []
        dl = issue_l(ci + S) if ci + S < NCH else []
        dl = hq + dl
        hq = issue_h_l(ci + S) if ci + S < NCH else []
        if ci == 10:
            e("buffer_load_dwordx2 v[222:223], v6, s[52:55], 0 offen sc1"); vm.issue(("zf",0))
        b = FR[ci & 1]; sl = ci % S
        for kl in range(2):
            for di in range(2):
                for tj in range(2):
                    d = ACC + 16*(2*di+tj)
                    a = b + 8*kl + 4*di
                    hr = HB + 16*sl + 8*kl + 4*tj
                    e(f"v_mfma_f32_32x32x16_bf16 v[{d}:{d+15}], v[{a}:{a+3}], v[{hr}:{hr+3}], v[{d}:{d+15}]")
                    if rl: e(rl.pop(0))
                    if rl: e(rl.pop(0))
                    if dl: dl.pop(0)()
        assert not rl and not dl
    assert not hq
    stamp(e, 10, SV)
    if ZE and G2W:
        e("s_cmp_eq_u64 s[62:63], 0")
        e("s_cbranch_scc1 G2_ZOK")
    e("s_waitcnt vmcnt(0)")
    e("s_branch G2_CHK")
    e.lab("G2_POLL")
    e(f"s_sleep {PSL}")
    e("buffer_load_dwordx2 v[222:223], v6, s[52:55], 0 offen sc1")
    e("s_waitcnt vmcnt(0)")
    e.lab("G2_CHK")
    e("v_cmp_ne_u32 vcc, v222, v220")
    e("v_cmp_ne_u32 s[60:61], v223, v221")
    e("s_nop 1")
    e("s_or_b64 vcc, vcc, s[60:61]")
    e("s_cmp_eq_u64 vcc, 0")
    e("s_cbranch_scc0 G2_POLL")
    e.lab("G2_GO")
    if not FST and not PST: stamp(e, 11, SV)
    for f in zloads_l(False): f()
    e.lab("G2_ZOK")
    e("v_and_b32 v4, 31, v0")
    e("s_movk_i32 s60, 272")
    e("v_mul_lo_u32 v4, v4, s60")
    e("v_lshrrev_b32 v5, 5, v0")
    e("v_lshl_add_u32 v4, v5, 4, v4")
    e("v_add_u32 v4, s56, v4")
    for di in range(2):
        for tj in range(2):
            d = ACC + 16*(2*di+tj)
            for q in range(4):
                e(f"ds_write_b128 v4, v[{d+4*q}:{d+4*q+3}] offset:{tj*32*272 + di*128 + q*32}")
    e("s_waitcnt lgkmcnt(0)")
    e("s_barrier")
    if FST: stamp(e, 11, SV)
    e("s_lshl_b32 s60, s20, 4")
    e("v_add_u32 v5, s60, v10")
    e("s_movk_i32 s60, 272")
    e("v_mul_lo_u32 v5, v5, s60")
    e("v_lshl_add_u32 v5, v11, 5, v5")
    for pw in range(4):
        for p in range(2):
            for hh in range(2):
                r = 64 + 16*pw + 8*p + 4*hh
                e(f"ds_read_b128 v[{r}:{r+3}], v5 offset:{pw*S*4096 + p*128 + hh*16}")
    e("s_waitcnt lgkmcnt(0)")
    for i in range(16):
        e(f"v_add_f32 v{64+i}, v{64+i}, v{80+i}")
        e(f"v_add_f32 v{96+i}, v{96+i}, v{112+i}")
    for i in range(16):
        e(f"v_add_f32 v{64+i}, v{64+i}, v{96+i}")
    if FST: stamp(e, 13, SV)
    e("s_mov_b32 s62, 0xffff0000")
    def rb(a, t):
        e(f"v_cvt_pk_bf16_f32 v{t}, v{a}, v{a+1}")
        e(f"v_lshlrev_b32 v{a}, 16, v{t}")
        e(f"v_and_b32 v{a+1}, s62, v{t}")
    for i in range(8): rb(64+2*i, 25)
    e("s_waitcnt vmcnt(0)")
    e(f"v_sub_f32 v26, 1.0, v{GV}")
    e("v_mov_b32 v27, v26")
    rb(26, 25)
    for i in range(16): e(f"v_mul_f32 v{64+i}, v{64+i}, v26")
    for i in range(8): rb(64+2*i, 25)
    for p in range(2):
        for i in range(4):
            qv = 212 + 4*p + i
            z0 = ZB + 8*p + 2*i
            e(f"v_lshlrev_b32 v96, 16, v{qv}")
            e(f"v_and_b32 v97, s62, v{qv}")
            e(f"v_lshlrev_b32 v98, 16, v{z0}")
            e(f"v_lshlrev_b32 v99, 16, v{z0+1}")
            e("v_mul_f32 v96, v96, v98")
            e("v_mul_f32 v97, v97, v99")
            rb(96, 25)
            e(f"v_mul_f32 v96, v96, v{GV}")
            e(f"v_mul_f32 v97, v97, v{GV}")
            rb(96, 25)
            o = 64 + 8*p + 2*i
            e(f"v_add_f32 v96, v96, v{o}")
            e(f"v_add_f32 v97, v97, v{o+1}")
            e(f"v_cvt_pk_bf16_f32 v{100+4*p+i}, v96, v97")
        e(f"buffer_store_dwordx4 v[{100+4*p}:{103+4*p}], v13, s[96:99], 0 offen offset:{64*p} sc1 nt")
    if not PST: stamp(e, 12, SV)
    if PROF and not FST: e("s_waitcnt vmcnt(0)")
    if not FST and not PST: stamp(e, 13, SV)
    stamp_store(e, SV, 0, 18)
    e("s_endpgm")

def gen_typeB(e):
    CH = 29440
    KC, UR, RED = 0, 16640, 21248
    e("s_sub_u32 s2, s2, 256")
    if G1ONLY and not BSTOP: e("s_endpgm")
    e("s_load_dwordx4 s[4:7], s[0:1], 0")
    e("s_load_dwordx4 s[8:11], s[0:1], 16")
    e("s_load_dwordx4 s[12:15], s[0:1], 32")
    e("s_load_dwordx2 s[16:17], s[0:1], 72")
    e("s_load_dwordx2 s[22:23], s[0:1], 88")
    e("s_load_dwordx2 s[18:19], s[0:1], 96")
    e("s_load_dwordx4 s[56:59], s[0:1], 56")
    if PRIOB: e(f"s_setprio {PRIOB}")
    e("s_lshr_b32 s24, s20, 1")
    e("s_and_b32 s25, s20, 1")
    e("s_and_b32 s26, s2, 7")
    e("s_lshl_b32 s26, s26, 6")
    e("s_lshr_b32 s27, s2, 3")
    e("s_lshl_b32 s27, s27, 1")
    e("s_add_u32 s26, s26, s27")
    e("s_add_u32 s26, s26, s24")
    e("s_lshl_b32 s27, s26, 12")
    e("s_mul_i32 s28, s24, %d" % CH)
    e("v_lshlrev_b32 v1, 4, v0")
    e("s_waitcnt lgkmcnt(0)")
    stamp(e, 0, 13)
    prep_setup(e)
    e("s_lshr_b32 s29, s2, 3")
    e("s_lshl_b32 s29, s29, 2")
    e("s_add_u32 s29, s29, s20")
    e("s_lshl_b32 s21, s29, 13")
    if PF & 1:
        srd(e, 52, 56, 512*3584)
        e("s_lshr_b32 s29, s2, 3")
        e("s_lshl_b32 s29, s29, 2")
        e("s_add_u32 s29, s29, s20")
        e("s_lshl_b32 s21, s29, 13")
        e("s_add_u32 s29, s21, %d" % (128*8192))
        e("v_lshlrev_b32 v2, 7, v0")
        e("buffer_load_dword v12, v2, s[52:55], s29 offen")
        e("s_and_b32 s30, s2, 7")
        e("s_lshl_b32 s30, s30, 18")
        e("s_add_u32 s30, s30, s21")
        e("s_sub_u32 s30, s30, %d" % (96*8192))
        e("s_cmp_lt_u32 s21, %d" % (96*8192))
        e("s_cbranch_scc1 B_NOQ")
        e("buffer_load_dword v12, v2, s[80:83], s30 offen")
        e.lab("B_NOQ")
    e("s_add_u32 s32, s12, s27"); e("s_addc_u32 s33, s13, 0"); e("s_mov_b32 s34, 4096"); e("s_mov_b32 s35, 0x00020000")
    srd(e, 36, 18, 512*4096, WS_U)
    srd(e, 40, 18, 512*4096, WS_Z)
    srd(e, 44, 14, 1024)
    srd(e, 48, 22, 256)
    srd(e, 60, 18, 0x18000, WS_F)
    def kloads():
        e("s_lshl_b32 s29, s26, 1")
        e("v_mov_b32 v2, s29")
        e("buffer_load_ushort v3, v2, s[44:47], 0 offen")
        e("s_lshl_b32 s29, s25, 10")
        e("v_add_u32 v4, s29, v1")
        for n in range(3):
            e(f"v_add_u32 v5, {(2048*n - 32) & 0xffffffff:#x}, v4")
            e(f"v_add_u32 v6, {(2048*n - 16) & 0xffffffff:#x}, v4")
            e(f"buffer_load_dwordx4 v[{16+8*n}:{19+8*n}], v5, s[32:35], 0 offen")
            e(f"buffer_load_dwordx4 v[{20+8*n}:{23+8*n}], v6, s[32:35], 0 offen")
    if not KLATE: kloads()
    if PRIOB: e(f"s_setprio {int(os.environ.get('PRIOB2','0'))}")
    e("s_waitcnt vmcnt(%d)" % (0 if KLATE else 7))
    stamp(e, 1, 13)
    if KLATE: kloads()
    if BSTOP == 1: e('s_waitcnt vmcnt(0) lgkmcnt(0)'); e('s_endpgm')
    if PF & 2:
        srd(e, 52, 58, 1792*1024)
        e("v_lshlrev_b32 v2, 7, v0")
        e("buffer_load_dword v12, v2, s[52:55], s21 offen")
        e("s_add_u32 s21, s21, %d" % (128*8192))
        e("buffer_load_dword v12, v2, s[52:55], s21 offen")
    pc = prep_compute()
    stamp(e, 9, 13)
    for ins in pc[:-2]: e(ins)
    stamp(e, 10, 13)
    if UT:
        UST, RS = 59392, 144
        P = 128
        e(f"v_mul_u32_u24 v{P+16}, {2*RS}, v{P+1}")
        e(f"v_lshlrev_b32 v{P+17}, 4, v{P+2}")
        e(f"v_sub_u32 v{P+16}, v{P+16}, v{P+17}")
        e(f"v_add_u32 v{P+16}, 112, v{P+16}")
        e(f"ds_write_b128 v{P+16}, v[{P+104}:{P+107}] offset:{UST}")
        e(f"ds_write_b128 v{P+16}, v[{P+108}:{P+111}] offset:{UST + RS}")
        e(f"v_lshrrev_b32 v{P+17}, 3, v0")
        e("s_lshl_b32 s97, s20, 4")
        e(f"v_add_u32 v{P+17}, s97, v{P+17}")
        e(f"v_and_b32 v{P+18}, 7, v0")
        e(f"v_lshlrev_b32 v{P+18}, 4, v{P+18}")
        e(f"v_mul_u32_u24 v{P+19}, {RS}, v{P+17}")
        e(f"v_add_u32 v{P+19}, v{P+19}, v{P+18}")
        e("s_and_b32 s97, s2, 7")
        e("s_lshl_b32 s97, s97, 18")
        e("s_lshr_b32 s98, s2, 3")
        e("s_lshl_b32 s98, s98, 7")
        e("s_sub_u32 s97, s97, s98")
        e("s_add_u32 s97, s97, 3968")
        e(f"v_lshl_add_u32 v{P+20}, v{P+17}, 12, v{P+18}")
        e("s_waitcnt lgkmcnt(0)")
        e("s_barrier")
        e(f"ds_read_b128 v[{P+104}:{P+107}], v{P+19} offset:{UST}")
        e(f"ds_read_b128 v[{P+108}:{P+111}], v{P+19} offset:{UST + 8*RS}")
        e("s_add_u32 s98, s97, 32768")
        e("s_waitcnt lgkmcnt(1)")
        e(f"buffer_store_dwordx4 v[{P+104}:{P+107}], v{P+20}, s[76:79], s97 offen sc1")
        e("s_waitcnt lgkmcnt(0)")
        e(f"buffer_store_dwordx4 v[{P+108}:{P+111}], v{P+20}, s[76:79], s98 offen sc1")
    else:
        for ins in pc[-2:]: e(ins)
    stamp(e, 11, 13)
    prep_gate(e)
    stamp(e, 2, 13)
    if BSTOP == 2: e('s_waitcnt vmcnt(0) lgkmcnt(0)'); e('s_endpgm')
    for i in range(4): e(f"v_mov_b32 v{8+i}, 0")
    e(f"v_add_u32 v7, s28, v1")
    e("v_cmp_gt_u32 vcc, 32, v0")
    e("s_and_saveexec_b64 s[52:53], vcc")
    e(f"ds_write_b128 v7, v[8:11] offset:{UR+4096}")
    e("s_mov_b64 exec, s[52:53]")
    e("v_add_u32 v7, s29, v7")
    e("s_waitcnt vmcnt(0)")
    e("s_barrier")
    e("s_cmp_lg_u32 s20, 0")
    e("s_cbranch_scc1 B_NOSIG")
    get_nonce(e, "B_N1", 48, 14, 54)
    e("s_lshl_b32 s54, s2, 7")
    e(f"s_add_u32 s54, s54, {F_U}")
    e("v_mov_b32 v8, s54")
    e("s_mov_b64 exec, 1")
    e(f"buffer_store_dwordx2 v[14:15], v8, s[60:63], 0 offen sc1")
    e("s_mov_b64 exec, -1")
    e.lab("B_NOSIG")
    if PF & 16:
        srd(e, 52, 58, 1792*1024)
        e("v_lshlrev_b32 v2, 7, v0")
        e("buffer_load_dword v200, v2, s[52:55], s21 offen")
        e("s_add_u32 s21, s21, %d" % (128*8192))
        e("buffer_load_dword v200, v2, s[52:55], s21 offen")
    stamp(e, 3, 13)
    if BSTOP == 3: e('s_waitcnt vmcnt(0) lgkmcnt(0)'); e('s_endpgm')
    for n in range(3):
        b = 16 + 8*n
        if n == 2:
            e("s_lshl_b32 s54, s25, 6")
            e("v_add_u32 v12, s54, v0")
            e("v_cmp_gt_u32 vcc, 4, v12")
            e("s_and_saveexec_b64 s[52:53], vcc")
            e("s_cbranch_execz CV_SKIPK")
        for i in range(5):
            e(f"v_alignbit_b32 v{48+i}, v{b+i+1}, v{b+i}, 16")
        for i in range(4):
            e(f"v_mov_b32 v{56+i}, v{49+i}")
            e(f"v_mov_b32 v{60+i}, v{b+1+i}")
        o = 2048*n
        e(f"ds_write_b128 v7, v[48:51] offset:{KC + 0*4160 + o}")
        e(f"ds_write_b128 v7, v[60:63] offset:{KC + 1*4160 + o}")
        e(f"ds_write_b128 v7, v[56:59] offset:{KC + 2*4160 + o}")
        e(f"ds_write_b128 v7, v[{b+2}:{b+5}] offset:{KC + 3*4160 + o}")
        if n == 2:
            e.lab("CV_SKIPK")
            e("s_mov_b64 exec, s[52:53]")
    e("v_and_b32 v4, 15, v0")
    e("v_lshrrev_b32 v5, 4, v0")
    e("v_and_b32 v6, 3, v0")
    e("s_movk_i32 s54, 4160")
    e("v_mul_lo_u32 v6, v6, s54")
    e("v_lshl_add_u32 v6, v5, 4, v6")
    e("v_and_b32 v8, 12, v0")
    e("v_lshl_add_u32 v6, v8, 1, v6")
    e("s_lshl_b32 s54, s25, 8")
    e("s_add_u32 s54, s54, s28")
    e("v_add_u32 v6, s54, v6")
    e("v_lshlrev_b32 v8, 5, v4")
    e("v_lshlrev_b32 v9, 4, v5")
    e("v_sub_u32 v8, v9, v8")
    e(f"s_add_u32 s54, s54, {UR + 4064 - 3584}")
    e("v_add_u32 v8, s54, v8")
    ACC = 224
    for i in range(32): e(f"v_mov_b32 v{ACC+i}, 0")
    e("v_and_b32 v10, 31, v0")
    e("v_lshlrev_b32 v10, 3, v10")
    e("s_and_b32 s54, s2, 7")
    e("v_add_u32 v10, s54, v10")
    e("v_lshlrev_b32 v10, 7, v10")
    e(f"v_add_u32 v10, {F_U}, v10")
    e("s_cmp_lg_u32 s20, 0")
    e("s_cbranch_scc1 B_UG")
    e.lab("B_UP")
    e(f"buffer_load_dwordx2 v[48:49], v10, s[60:63], 0 offen sc1")
    e("s_waitcnt vmcnt(0)")
    e("v_cmp_ne_u32 vcc, v48, v14")
    e("v_cmp_ne_u32 s[54:55], v49, v15")
    e("s_nop 1")
    e("s_or_b64 vcc, vcc, s[54:55]")
    e("s_cmp_eq_u64 vcc, 0")
    e("s_cbranch_scc1 B_UG")
    e(f"s_sleep {PSL}")
    e("s_branch B_UP")
    e.lab("B_UG")
    e("s_barrier")
    stamp(e, 4, 13)
    if BSTOP == 4: e('s_waitcnt vmcnt(0) lgkmcnt(0)'); e('s_endpgm')
    e("s_lshl_b32 s29, s25, 11")
    e("s_add_u32 s30, s27, s29")
    e("s_add_u32 s31, s28, s29")
    e(f"s_add_u32 m0, s31, {UR}")
    e("s_nop 0")
    e("buffer_load_dwordx4 v1, s[36:39], s30 offen sc1 lds")
    e("buffer_load_dwordx4 v1, s[36:39], s30 offen offset:1024 sc1 lds")
    e("s_waitcnt vmcnt(0) lgkmcnt(0)")
    e("s_barrier")
    stamp(e, 5, 13)
    if BSTOP == 5: e('s_waitcnt vmcnt(0) lgkmcnt(0)'); e('s_endpgm')
    SETS = [64, 128]
    def loads_l(rr):
        b = SETS[rr & 1]
        L = []
        for a in range(8):
            L.append(f"ds_read_b128 v[{b+32+4*a}:{b+35+4*a}], v8 offset:{512*(7-a) + 64*rr}")
            for h in range(2):
                L.append(f"ds_read_b64 v[{b+4*a+2*h}:{b+4*a+2*h+1}], v6 offset:{64*rr + 512*a + 8*h}")
        return L
    for x in loads_l(0): e(x)
    for rr in range(4):
        b = SETS[rr & 1]
        e("s_waitcnt lgkmcnt(0)")
        nxt = loads_l(rr + 1) if rr < 3 else []
        n = 0
        for s in range(8):
            for a in range(s + 1):
                bb = s - a
                d = ACC + 4*s
                e(f"v_mfma_f32_16x16x32_bf16 v[{d}:{d+3}], v[{b+4*a}:{b+4*a+3}], v[{b+32+4*bb}:{b+35+4*bb}], v[{d}:{d+3}]")
                if nxt: e(nxt.pop(0))
        assert not nxt
    e("s_nop 7")
    stamp(e, 6, 13)
    if BSTOP == 6: e('s_waitcnt vmcnt(0) lgkmcnt(0)'); e('s_endpgm')
    e(f"s_add_u32 s54, s28, {RED}")
    e("v_add_u32 v9, s54, v1")
    e("s_cmp_eq_u32 s25, 0")
    e("s_cbranch_scc1 CV_X0")
    for nt in range(4):
        e(f"ds_write_b128 v9, v[{ACC+4*nt}:{ACC+4*nt+3}] offset:{1024*nt}")
    e("s_waitcnt lgkmcnt(0)")
    e("s_barrier")
    for nt in range(4):
        e(f"ds_read_b128 v[{64+4*nt}:{67+4*nt}], v9 offset:{1024*(4+nt)}")
    e("s_waitcnt lgkmcnt(0)")
    for i in range(16):
        e(f"v_add_f32 v{64+i}, v{64+i}, v{ACC+16+i}")
    e("s_branch CV_FIN")
    e.lab("CV_X0")
    for nt in range(4):
        e(f"ds_write_b128 v9, v[{ACC+16+4*nt}:{ACC+16+4*nt+3}] offset:{1024*(4+nt)}")
    e("s_waitcnt lgkmcnt(0)")
    e("s_barrier")
    for nt in range(4):
        e(f"ds_read_b128 v[{64+4*nt}:{67+4*nt}], v9 offset:{1024*nt}")
    e("s_waitcnt lgkmcnt(0)")
    for i in range(16):
        e(f"v_add_f32 v{64+i}, v{64+i}, v{ACC+i}")
    e.lab("CV_FIN")
    e("v_lshlrev_b32 v10, 4, v4")
    e("v_lshl_add_u32 v10, v5, 2, v10")
    e("s_lshl_b32 s54, s25, 10")
    e("v_add_u32 v10, s54, v10")
    e(f"s_add_u32 s55, s28, {UR + 2*2044 - 512*3}")
    e("v_lshlrev_b32 v11, 1, v10")
    e("v_sub_u32 v11, s55, v11")
    for t in range(4):
        e(f"ds_read_b64 v[{80+2*t}:{81+2*t}], v11 offset:{512*(3-t)}")
    e("v_lshlrev_b32 v3, 16, v3")
    e("s_mov_b32 s56, 0xffff0000")
    e("v_lshlrev_b32 v12, 1, v10")
    e("v_add_u32 v12, s27, v12")
    e("s_waitcnt lgkmcnt(0)")
    for t in range(4):
        y = 64 + 4*t; kq = 80 + 2*t
        e(f"v_and_b32 v96, s56, v{kq+1}")
        e(f"v_lshlrev_b32 v97, 16, v{kq+1}")
        e(f"v_and_b32 v98, s56, v{kq}")
        e(f"v_lshlrev_b32 v99, 16, v{kq}")
        for i in range(4): e(f"v_mul_f32 v{96+i}, v{96+i}, v3")
        e("v_cvt_pk_bf16_f32 v100, v96, v97")
        e("v_cvt_pk_bf16_f32 v101, v98, v99")
        e(f"v_cvt_pk_bf16_f32 v102, v{y}, v{y+1}")
        e(f"v_cvt_pk_bf16_f32 v103, v{y+2}, v{y+3}")
        for i in range(2):
            e(f"v_lshlrev_b32 v{96+2*i}, 16, v{100+i}")
            e(f"v_and_b32 v{97+2*i}, s56, v{100+i}")
            e(f"v_lshlrev_b32 v{104+2*i}, 16, v{102+i}")
            e(f"v_and_b32 v{105+2*i}, s56, v{102+i}")
        for i in range(4): e(f"v_add_f32 v{96+i}, v{96+i}, v{104+i}")
        e(f"v_cvt_pk_bf16_f32 v{108+2*t}, v96, v97")
        e(f"v_cvt_pk_bf16_f32 v{109+2*t}, v98, v99")
        e(f"buffer_store_dwordx2 v[{108+2*t}:{109+2*t}], v12, s[40:43], 0 offen offset:{512*t} sc1")
    stamp(e, 7, 13)
    if BSTOP == 7: e('s_waitcnt vmcnt(0) lgkmcnt(0)'); e('s_endpgm')
    e("s_waitcnt vmcnt(0)")
    stamp(e, 8, 13)
    if BSTOP == 8: e('s_waitcnt vmcnt(0) lgkmcnt(0)'); e('s_endpgm')
    stamp_store(e, 13, 1, 18)
    e("s_barrier")
    e("s_cmp_lg_u32 s20, 0")
    e("s_cbranch_scc1 F_END")
    e("s_and_b32 s54, s2, 7")
    e("s_lshl_b32 s54, s54, 5")
    e("s_lshr_b32 s55, s2, 3")
    e("s_add_u32 s54, s54, s55")
    e("s_lshl_b32 s54, s54, 7")
    e(f"s_add_u32 s54, s54, {F_Z}")
    e("v_mov_b32 v1, s54")
    e("s_mov_b64 exec, 1")
    e("buffer_store_dwordx2 v[14:15], v1, s[60:63], 0 offen sc1")
    e("s_endpgm")


def gen_fused(e):
    e.lab("fused_kernel")
    if PST and PROF: e("s_memrealtime s[38:39]")
    e("s_cmp_ge_u32 s2, 512")
    e("s_cbranch_scc1 F_END")
    e("v_lshrrev_b32 v1, 6, v0")
    e("v_and_b32 v0, 63, v0")
    e("s_nop 0")
    e("v_readfirstlane_b32 s20, v1")
    if SWAP: e("s_xor_b32 s2, s2, 256")
    e("s_cmp_ge_u32 s2, 256")
    e("s_cbranch_scc1 F_B")
    gen_typeA(e)
    e.lab("F_B")
    gen_typeB(e)
    e.lab("F_END")
    e("s_endpgm")

def kdesc(name, vgpr, sgpr=96):
    return f""".amdhsa_kernel {name}
  .amdhsa_next_free_vgpr {vgpr}
  .amdhsa_next_free_sgpr {sgpr}
  .amdhsa_accum_offset {(vgpr+3)//4*4}
  .amdhsa_group_segment_fixed_size 0
  .amdhsa_kernarg_size 104
  .amdhsa_user_sgpr_count 2
  .amdhsa_user_sgpr_kernarg_segment_ptr 1
  .amdhsa_system_sgpr_workgroup_id_x 1
.end_amdhsa_kernel
"""

def main(out):
    e = E()
    hdr = "; @launch kernel=fused_kernel grid=(512,1,1) block=(256,1,1) lds=81920\n"
    hdr += '.amdgcn_target "amdgcn-amd-amdhsa--gfx950"\n.text\n'
    body = ".globl fused_kernel\n.p2align 8\n.type fused_kernel,@function\n"
    gen_fused(e)
    body += e.text()
    ro = '.section .rodata,"a"\n.p2align 6\n' + kdesc("fused_kernel", 256, 102)
    open(out, "w").write(hdr + body + ro)

if __name__ == "__main__":
    main(sys.argv[1] if len(sys.argv) > 1 else "k.s")
```

```python
import sys

KN = "gated_mix__ssm_conv_h3__dense_activation_relu__prompt"
WS_H = 0
WS_H_SIZE = 64*112*1024
WS_U = 0x800000
WS_G = 0xA00000
WS_Z = 0xB00000

class E:
    def __init__(self): self.l = []
    def __call__(self, s): self.l.append("    " + s)
    def lab(self, s): self.l.append(s + ":")
    def c(self, s): self.l.append("    ; " + s)
    def text(self): return "\n".join(self.l) + "\n"

import os
PROF = int(os.environ.get("PROF", "0"))
WS_P = 0xE00000
def stamp(e, idx, vr):
    if not PROF: return
    e("s_memrealtime s[100:101]")
    e("s_waitcnt lgkmcnt(0)")
    e(f"v_writelane_b32 v{vr}, s100, {idx}")
def stamp_store(e, vr, kidx, ws_lo):
    if not PROF: return
    e("s_getreg_b32 s100, hwreg(HW_REG_HW_ID)")
    e("s_getreg_b32 s101, hwreg(HW_REG_XCC_ID)")
    e(f"v_writelane_b32 v{vr}, s100, 14")
    e(f"v_writelane_b32 v{vr}, s101, 15")
    e(f"s_add_u32 s96, s{ws_lo}, {WS_P + kidx*0x40000:#x}")
    e(f"s_addc_u32 s97, s{ws_lo+1}, 0")
    e("s_mov_b32 s98, 0x40000")
    e("s_mov_b32 s99, 0x00020000")
    e("s_lshl_b32 s100, s2, 8")
    e("s_lshl_b32 s101, s20, 6")
    e("s_add_u32 s100, s100, s101")
    e("v_and_b32 v1, 15, v0")
    e("v_lshlrev_b32 v1, 2, v1")
    e("s_mov_b64 exec, 0xffff")
    e(f"buffer_store_dword v{vr}, v1, s[96:99], s100 offen")
    e("s_mov_b64 exec, -1")

def srd(e, sd, sp, size, off=0):
    if off:
        e(f"s_add_u32 s{sd}, s{sp}, {off:#x}")
        e(f"s_addc_u32 s{sd+1}, s{sp+1}, 0")
    else:
        e(f"s_mov_b32 s{sd}, s{sp}")
        e(f"s_mov_b32 s{sd+1}, s{sp+1}")
    e(f"s_mov_b32 s{sd+2}, {size:#x}")
    e(f"s_mov_b32 s{sd+3}, 0x00020000")

PB = 128
def prep_setup(e):
    P = PB
    e("s_lshr_b32 s60, s2, 3")
    e("s_and_b32 s61, s2, 7")
    srd(e, 64, 6, 2048*1024)
    srd(e, 68, 8, 2048*1024)
    srd(e, 72, 10, 512*8)
    srd(e, 76, 18, 512*4096, WS_U)
    srd(e, 80, 4, 2048*1024)
    srd(e, 84, 16, 1024)
    srd(e, 88, 18, 8192, WS_G)
    e(f"v_and_b32 v{P+1}, 31, v0")
    e(f"v_lshrrev_b32 v{P+2}, 5, v0")
    e("s_lshl_b32 s62, s20, 1")
    e(f"v_add_u32 v{P+2}, s62, v{P+2}")
    e("s_lshl_b32 s62, s60, 6")
    e(f"v_lshl_add_u32 v{P+3}, v{P+2}, 3, s62")
    e(f"v_lshlrev_b32 v{P+4}, 10, v{P+3}")
    e("s_lshl_b32 s63, s61, 7")
    e(f"v_lshl_add_u32 v{P+5}, v{P+1}, 2, s63")
    e(f"v_add_u32 v{P+4}, v{P+4}, v{P+5}")
    for i in range(11):
        e(f"v_add_u32 v{P+6}, {(i-3)*1024 & 0xffffffff:#x}, v{P+4}")
        e(f"buffer_load_dword v{P+16+i}, v{P+6}, s[64:67], 0 offen")
    for i in range(8):
        if i < 4:
            e(f"buffer_load_dword v{P+32+i}, v{P+4}, s[68:71], 0 offen offset:{i*1024}")
        else:
            if i == 4: e(f"v_add_u32 v{P+6}, 4096, v{P+4}")
            e(f"buffer_load_dword v{P+32+i}, v{P+6}, s[68:71], 0 offen offset:{(i-4)*1024}")
    e(f"v_lshlrev_b32 v{P+6}, 2, v{P+5}")
    e(f"buffer_load_dwordx4 v[{P+40}:{P+43}], v{P+6}, s[72:75], 0 offen")
    e("s_lshl_b32 s92, s2, 3")
    e("s_lshl_b32 s93, s20, 1")
    e("s_add_u32 s92, s92, s93")
    e("s_lshl_b32 s93, s92, 10")
    e(f"v_lshlrev_b32 v{P+7}, 4, v0")
    e(f"buffer_load_dwordx4 v[{P+44}:{P+47}], v{P+7}, s[80:83], s93 offen")
    e(f"buffer_load_dwordx4 v[{P+48}:{P+51}], v{P+7}, s[80:83], s93 offen offset:1024")
    e(f"buffer_load_dwordx4 v[{P+52}:{P+55}], v{P+7}, s[84:87], 0 offen")
    e("s_mov_b32 s94, 0xffff0000")
    e("s_mov_b32 s95, 0x05040100")
    e("s_mov_b32 s96, 0x07060302")
    e(f"v_lshlrev_b32 v{P+8}, 1, v{P+1}")
    e("s_lshl_b32 s93, s61, 6")
    e(f"v_add_u32 v{P+8}, s93, v{P+8}")
    e(f"v_lshlrev_b32 v{P+8}, 12, v{P+8}")
    e(f"v_sub_u32 v{P+9}, 2040, v{P+3}")
    e(f"v_lshl_add_u32 v{P+8}, v{P+9}, 1, v{P+8}")
    e(f"v_add_u32 v{P+9}, 4096, v{P+8}")
NPREP_LOADS = 11 + 8 + 1 + 3

def prep_compute():
    P = PB
    L = []
    e = L.append
    for j in range(4):
        for ch in range(2):
            src = P + 40 + 2*ch + (j >> 1)
            if j & 1: e(f"v_and_b32 v{P+56+2*j+ch}, s94, v{src}")
            else:     e(f"v_lshlrev_b32 v{P+56+2*j+ch}, 16, v{src}")
    for i in range(11):
        e(f"v_lshlrev_b32 v{P+64+2*i}, 16, v{P+16+i}")
        e(f"v_and_b32 v{P+65+2*i}, s94, v{P+16+i}")
    def rb(dst, src, tmp):
        e(f"v_cvt_pk_bf16_f32 v{tmp}, v{src}, v{src+1}")
        e(f"v_lshlrev_b32 v{dst}, 16, v{tmp}")
        e(f"v_and_b32 v{dst+1}, s94, v{tmp}")
    for r in range(8):
        S, Q, T = P+88, P+90, P+92
        e(f"v_pk_mul_f32 v[{S}:{S+1}], v[{P+64+2*r}:{P+65+2*r}], v[{P+62}:{P+63}]")
        rb(S, S, T)
        for j in (2, 1, 0):
            e(f"v_pk_mul_f32 v[{Q}:{Q+1}], v[{P+64+2*(r+3-j)}:{P+65+2*(r+3-j)}], v[{P+56+2*j}:{P+57+2*j}]")
            rb(Q, Q, T)
            e(f"v_pk_add_f32 v[{S}:{S+1}], v[{S}:{S+1}], v[{Q}:{Q+1}]")
            rb(S, S, T)
        e(f"v_lshlrev_b32 v{Q}, 16, v{P+32+r}")
        e(f"v_and_b32 v{Q+1}, s94, v{P+32+r}")
        e(f"v_pk_mul_f32 v[{S}:{S+1}], v[{S}:{S+1}], v[{Q}:{Q+1}]")
        e(f"v_cvt_pk_bf16_f32 v{P+96+r}, v{S}, v{S+1}")
    for m in range(4):
        e(f"v_perm_b32 v{P+104+m}, v{P+96+6-2*m}, v{P+96+7-2*m}, s95")
        e(f"v_perm_b32 v{P+108+m}, v{P+96+6-2*m}, v{P+96+7-2*m}, s96")
    e(f"buffer_store_dwordx4 v[{P+104}:{P+107}], v{P+8}, s[76:79], 0 offen sc1")
    e(f"buffer_store_dwordx4 v[{P+108}:{P+111}], v{P+9}, s[76:79], 0 offen sc1")
    return L

def prep_gate(e):
    P = PB
    def rb(dst, src, tmp):
        e(f"v_cvt_pk_bf16_f32 v{tmp}, v{src}, v{src+1}")
        e(f"v_lshlrev_b32 v{dst}, 16, v{tmp}")
        e(f"v_and_b32 v{dst+1}, s94, v{tmp}")
    G = P + 112
    A = P + 120
    X = P + 122; T = P + 124
    for i in range(4):
        e(f"v_lshlrev_b32 v{G+2*i}, 16, v{P+52+i}")
        e(f"v_and_b32 v{G+1+2*i}, s94, v{P+52+i}")
    for row in range(2):
        q = P + 44 + 4*row
        for i in range(4):
            e(f"v_lshlrev_b32 v{X}, 16, v{q+i}")
            e(f"v_and_b32 v{X+1}, s94, v{q+i}")
            e(f"v_pk_mul_f32 v[{X}:{X+1}], v[{X}:{X+1}], v[{G+2*i}:{G+1+2*i}]")
            rb(X, X, T)
            if i == 0: e(f"v_add_f32 v{A+row}, v{X}, v{X+1}")
            else:
                e(f"v_add_f32 v{A+row}, v{A+row}, v{X}")
                e(f"v_add_f32 v{A+row}, v{A+row}, v{X+1}")
    for sh in ("row_shr:1", "row_shr:2", "row_shr:4", "row_shr:8"):
        e("s_nop 1")
        for row in range(2):
            e(f"v_add_f32_dpp v{A+row}, v{A+row}, v{A+row} {sh} bound_ctrl:0")
    e("s_nop 1")
    for row in range(2):
        e(f"v_add_f32_dpp v{A+row}, v{A+row}, v{A+row} row_bcast:15 row_mask:0xa")
    e("s_nop 1")
    for row in range(2):
        e(f"v_add_f32_dpp v{A+row}, v{A+row}, v{A+row} row_bcast:31 row_mask:0xc")
    e("s_nop 1")
    e(f"v_readlane_b32 s98, v{A}, 63")
    e(f"v_readlane_b32 s99, v{A+1}, 63")
    e("s_nop 3")
    e(f"v_mov_b32 v{A}, s98")
    e(f"v_mov_b32 v{A+1}, s99")
    rb(A, A, T)
    e(f"v_mul_f32 v{A}, 0xbfb8aa3b, v{A}")
    e(f"v_mul_f32 v{A+1}, 0xbfb8aa3b, v{A+1}")
    e(f"v_exp_f32 v{A}, v{A}")
    e(f"v_exp_f32 v{A+1}, v{A+1}")
    e("s_nop 0")
    e(f"v_add_f32 v{A}, 1.0, v{A}")
    e(f"v_add_f32 v{A+1}, 1.0, v{A+1}")
    e(f"v_rcp_f32 v{A}, v{A}")
    e(f"v_rcp_f32 v{A+1}, v{A+1}")
    e("s_nop 0")
    rb(A, A, T)
    e("s_lshl_b32 s93, s92, 2")
    e(f"v_mov_b32 v{X}, s93")
    e("v_cmp_eq_u32 vcc, 0, v0")
    e("s_and_saveexec_b64 s[98:99], vcc")
    e(f"buffer_store_dwordx2 v[{A}:{A+1}], v{X}, s[88:91], 0 offen sc1")
    e("s_mov_b64 exec, s[98:99]")

class VM:
    def __init__(s): s.q = []
    def issue(s, tag): s.q.append(tag)
    def need(s, tags):
        idx = max([i for i, t in enumerate(s.q) if t in tags] + [-1])
        return len(s.q) - 1 - idx
    def clear(s): s.q = []

CNT_H, CNT_U, CNT_Z = 0, 32, 48
SWAP = int(os.environ.get('SWAP','0'))
PRIOA = int(os.environ.get('PRIOA','2'))
PRIOB = int(os.environ.get('PRIOB','0'))
PF = int(os.environ.get('PF','1'))
G1ONLY = int(os.environ.get('G1ONLY','0'))
NOTR = int(os.environ.get('NOTR','0'))
NOMF = int(os.environ.get('NOMF','0'))
NOLDS = int(os.environ.get('NOLDS','0'))
NOBAR = int(os.environ.get('NOBAR','0'))
ROT = int(os.environ.get('ROT','1'))
NOVM = int(os.environ.get('NOVM','0'))
NODMA = int(os.environ.get('NODMA','0'))
REP2 = int(os.environ.get('REP2','0'))
G2W = int(os.environ.get('G2W','6'))
EARLYW = int(os.environ.get('EARLYW','1'))
PP = int(os.environ.get('PP','0'))
KLATE = int(os.environ.get('KLATE','0'))
ZE = int(os.environ.get('ZE','1'))
FST = int(os.environ.get('FST','0'))
NQ = int(os.environ.get('NQ','3'))
PST = int(os.environ.get('PST','0'))
UPF = int(os.environ.get('UPF','99'))
UT = int(os.environ.get('UT','1'))
KD = int(os.environ.get('KD','0'))
DBG = int(os.environ.get('DBG','-1'))
PFSL = int(os.environ.get('PFSL','1'))
MAP2 = int(os.environ.get('MAP2','0'))
BSTOP = int(os.environ.get('BSTOP','0'))
PSL = int(os.environ.get('PSL','8'))
SLEEP0 = int(os.environ.get('SLEEP0','1'))
WS_F = 0xF00000
F_H, F_U, F_Z = 0, 0x8000, 0x10000
SV = 15

def get_nonce(e, lab, dbg, vr, st):
    e.lab(lab)
    e(f"v_mov_b32 v{vr+1}, 0")
    e(f"buffer_load_dwordx2 v[{vr}:{vr+1}], v{vr+1}, s[{dbg}:{dbg+3}], 0 offen sc1")
    e("s_waitcnt vmcnt(0)")
    e(f"v_readfirstlane_b32 s{st}, v{vr}")
    e(f"s_cmp_lg_u32 s{st}, 0")
    e(f"s_cbranch_scc1 {lab}_OK")
    e("s_sleep 4")
    e(f"s_branch {lab}")
    e.lab(lab + "_OK")

def gen_typeA(e):
    e("s_load_dwordx2 s[4:5], s[0:1], 0")
    e("s_load_dwordx2 s[14:15], s[0:1], 56")
    e("s_load_dwordx2 s[18:19], s[0:1], 96")
    e("s_load_dwordx4 s[64:67], s[0:1], 64")
    e("s_load_dwordx4 s[68:71], s[0:1], 80")
    if PRIOA: e(f"s_setprio {PRIOA}")
    e("s_and_b32 s21, s2, 7")
    e("s_lshr_b32 s22, s2, 3")
    if MAP2:
        e("s_mul_i32 s23, s22, 37")
        e("s_lshr_b32 s23, s23, 8")
        e("s_lshr_b32 s25, s21, 1")
        e("s_lshl_b32 s25, s25, 2")
        e("s_add_u32 s25, s25, s23")
        e("s_mul_i32 s23, s23, 7")
        e("s_sub_u32 s26, s22, s23")
        e("s_and_b32 s23, s21, 1")
        e("s_mul_i32 s23, s23, 7")
        e("s_add_u32 s26, s26, s23")
    else:
        e("s_cmp_ge_u32 s22, 14")
        e("s_cselect_b32 s23, 1, 0")
        e("s_lshl_b32 s25, s21, 1")
        e("s_add_u32 s25, s25, s23")
        e("s_mul_i32 s23, s23, 14")
        e("s_sub_u32 s26, s22, s23")
    e("s_lshl_b32 s48, s21, 2")
    e("s_lshr_b32 s49, s22, 3")
    e("s_add_u32 s48, s48, s49")
    e("s_and_b32 s49, s22, 7")
    S = 5
    e("s_mul_i32 s56, s20, %d" % (S*4096))
    e("s_lshl_b32 s57, s48, 1")
    e("s_mul_i32 s57, s57, 112")
    e("s_mul_i32 s58, s20, 28")
    e("s_add_u32 s57, s57, s58")
    e("s_lshl_b32 s57, s57, 10")
    e("s_add_u32 s58, s57, %d" % (112*1024))
    e("s_waitcnt lgkmcnt(0)")
    stamp(e, 0, SV)
    if PST and PROF: e(f"v_writelane_b32 v{SV}, s38, 12")
    srd(e, 28, 4, 2048*1024)
    srd(e, 32, 14, 512*3584)
    srd(e, 72, 64, 1792*1024)
    srd(e, 76, 18, WS_H_SIZE, WS_H)
    srd(e, 80, 18, 512*4096, WS_Z)
    srd(e, 84, 18, 8192, WS_G)
    srd(e, 88, 4, 2048*1024)
    srd(e, 92, 70, 256)
    srd(e, 96, 68, 2048*1024)
    srd(e, 52, 18, 0x18000, WS_F)
    e("v_mov_b32 v1, 0")
    e("s_or_b32 s46, s2, s20")
    e("s_cmp_lg_u32 s46, 0")
    e("s_cbranch_scc1 A_NOPUB")
    e("s_memrealtime s[46:47]")
    e("s_waitcnt lgkmcnt(0)")
    e("s_or_b32 s46, s46, 1")
    e("v_mov_b32 v2, s46")
    e("v_mov_b32 v3, s47")
    e("s_mov_b64 exec, 1")
    e("buffer_store_dwordx2 v[2:3], v1, s[92:95], 0 offen sc1")
    e("s_mov_b64 exec, -1")
    e.lab("A_NOPUB")
    e("v_mov_b32 v1, 0")
    e("buffer_load_dwordx2 v[22:23], v1, s[92:95], 0 offen sc1")
    if PF & 1:
        e("s_lshr_b32 s46, s2, 3")
        e("s_lshl_b32 s46, s46, 2")
        e("s_add_u32 s46, s46, s20")
        e("s_lshl_b32 s46, s46, 13")
        e("v_lshlrev_b32 v1, 7, v0")
        e("buffer_load_dword v24, v1, s[32:35], s46 offen")
    if PF & 32:
        srd(e, 60, 18, 16 << 20)
        e("v_lshlrev_b32 v1, 20, v0")
        e("buffer_load_dword v24, v1, s[60:63], 0 offen")
        e("buffer_load_dword v24, v1, s[72:75], 0 offen")
        e("buffer_load_dword v24, v1, s[96:99], 0 offen")
    if PF & 4:
        e("s_lshr_b32 s46, s2, 3")
        e("s_cmp_ge_u32 s46, 8")
        e("s_cbranch_scc1 A_NOQPF")
        e("s_lshl_b32 s46, s46, 2")
        e("s_add_u32 s46, s46, s20")
        e("s_lshl_b32 s46, s46, 13")
        e("s_lshl_b32 s47, s21, 18")
        e("s_add_u32 s46, s46, s47")
        e("v_lshlrev_b32 v1, 7, v0")
        e("buffer_load_dword v24, v1, s[28:31], s46 offen")
        e.lab("A_NOQPF")
    e("s_cmp_ge_u32 s2, 224")
    if PF & 8:
        e("s_cbranch_scc0 A_G1")
        for _ in range(PFSL): e("s_sleep 64")
        e("s_sub_u32 s46, s2, 224")
        e("s_lshr_b32 s46, s46, 3")
        e("s_mul_i32 s46, s46, %d" % (3584*128))
        e("s_lshl_b32 s47, s20, 13")
        e("s_add_u32 s46, s46, s47")
        e("v_lshlrev_b32 v1, 7, v0")
        for it in range(14):
            e("buffer_load_dword v24, v1, s[72:75], s46 offen")
            if it < 13: e("s_add_u32 s46, s46, %d" % (256*128))
        e("s_branch A_PRE")
        e.lab("A_G1")
    else:
        e("s_cbranch_scc1 A_PRE")
    vm = VM()
    e("v_lshrrev_b32 v2, 3, v0")
    e("s_lshl_b32 s27, s25, 7")
    e("s_lshl_b32 s40, s20, 5")
    e("s_add_u32 s27, s27, s40")
    e("v_add_u32 v2, s27, v2")
    e("v_lshlrev_b32 v2, 10, v2")
    e("v_and_b32 v3, 7, v0")
    e("v_lshrrev_b32 v4, 4, v0")
    e("v_xor_b32 v3, v3, v4")
    e("v_lshl_add_u32 v2, v3, 4, v2")
    e("v_xor_b32 v3, 64, v2")
    e("s_lshl_b32 s40, s20, 3")
    e("v_add_u32 v5, s40, v4")
    e("s_movk_i32 s41, 3584")
    e("v_mul_lo_u32 v5, v5, s41")
    e("v_and_b32 v6, 15, v0")
    e("v_lshlrev_b32 v7, 2, v4")
    e("v_xor_b32 v6, v6, v7")
    e("v_lshl_add_u32 v5, v6, 4, v5")
    e("s_lshl_b32 s40, s26, 8")
    e("v_add_u32 v5, s40, v5")
    e("s_lshl_b32 s42, s20, 12")
    e("s_lshl_b32 s47, s20, 11")
    WB = NQ*16384
    WR = 128
    NWR = 12
    NW = 3 if NQ == 3 else 2
    def dq(c, j):
        def f():
            e(f"s_add_u32 m0, s42, {(c%NQ)*16384 + j*1024}")
            if ROT:
                e(f"s_add_u32 s43, s50, {c*128}")
                e(f"s_and_b32 s43, s43, 1023")
                e(f"s_add_u32 s43, s43, {j*8192}")
            else:
                e(f"s_mov_b32 s43, {j*8192 + c*128}")
            e(f"buffer_load_dwordx4 v{2 + (j&1)}, s[28:31], s43 offen lds")
            vm.issue(("Q", c))
        return f
    def lw1(hc, j):
        def f():
            r = WR + 8*(hc % NWR) + 4*j
            if ROT:
                e(f"s_add_u32 s43, s51, {hc}")
                e(f"s_and_b32 s43, s43, 15")
                e(f"s_mul_i32 s43, s43, {32*3584}")
                e(f"s_add_u32 s43, s43, {4*j*3584}")
            else:
                e(f"s_mov_b32 s43, {(32*hc + 4*j)*3584}")
            e(f"buffer_load_dwordx4 v[{r}:{r+3}], v5, s[32:35], s43 offen")
            vm.issue(("W", hc))
        return f
    def lw(hc):
        for j in range(2): lw1(hc, j)()
    e("s_and_b32 s51, s26, 7")
    e("s_lshl_b32 s50, s51, 7")
    e("s_lshl_b32 s51, s51, 1")
    if PST: stamp(e, 11, SV)
    if UPF >= 99:
        order = []
        for c in range(NQ): order += [("Q", c), ("W", 2*c), ("W", 2*c+1)]
        order += [("W", hc) for hc in range(2*NQ, NWR)]
    else:
        order = [("Q",0),("W",0),("W",1),("W",2),("W",3),("Q",1),("W",4),("W",5),("Q",2),("W",6),("W",7)]
        if NQ == 4: order += [("Q",3)]
        order += [("W", hc) for hc in range(8, NWR)]
    left = []
    for n, (t, i) in enumerate(order):
        fs = [dq(i, j) for j in range(4)] if t == "Q" else [lw1(i, j) for j in range(2)]
        if n < UPF:
            for f in fs: f()
        else: left += fs
    if PST: stamp(e, 13, SV)
    e("s_and_b32 s44, s20, 1")
    e("s_lshr_b32 s45, s20, 1")
    e("v_and_b32 v6, 31, v0")
    e("v_lshrrev_b32 v7, 5, v0")
    e("v_bfe_u32 v8, v0, 1, 3")
    e("v_xor_b32 v8, v8, v7")
    e("v_lshlrev_b32 v8, 4, v8")
    e("v_lshl_add_u32 v8, v6, 7, v8")
    e("s_lshl_b32 s46, s44, 13")
    e("v_add_u32 v8, s46, v8")
    for k in range(4):
        e(f"v_xor_b32 v{10+k}, {32*k}, v8")
    e("v_bfe_u32 v6, v0, 2, 2")
    e("v_lshrrev_b32 v7, 5, v0")
    e("v_lshl_add_u32 v7, v7, 3, v6")
    e("v_lshlrev_b32 v7, 8, v7")
    e("v_bfe_u32 v9, v0, 4, 1")
    e("v_lshl_add_u32 v7, v9, 5, v7")
    e("v_and_b32 v9, 3, v0")
    e("v_lshl_add_u32 v7, v9, 3, v7")
    e(f"v_add_u32 v7, {WB}, v7")
    e("s_lshl_b32 s46, s45, 1")
    e("v_xor_b32 v9, s46, v6")
    e("v_lshl_add_u32 v18, v9, 6, v7")
    e("v_xor_b32 v19, 64, v18")
    e("v_lshlrev_b32 v20, 4, v0")
    e("v_add_u32 v20, s47, v20")
    e(f"v_add_u32 v20, {WB}, v20")
    ACC = 64
    for i in range(64):
        e(f"v_mov_b32 v{ACC+i}, 0")
    FR = [32, 48, 224]
    lg = VM()
    def ww_l(hc):
        L = []
        for j in range(2):
            def f(j=j):
                r = WR + 8*(hc % NWR) + 4*j
                e(f"ds_write_b128 v20, v[{r}:{r+3}] offset:{(hc%NW)*8192 + j*1024}")
                lg.issue(("w", hc))
            L.append(f)
        return L
    def ww(hc):
        for f in ww_l(hc): f()
    def rf_l(step):
        if NOLDS: return []
        c, k, hc, kk = step >> 2, step & 3, step >> 1, step & 1
        b = FR[step % 3]
        LQ = []; LW = []
        for tj in range(2):
            def f(tj=tj):
                e(f"ds_read_b128 v[{b+8+4*tj}:{b+11+4*tj}], v{10+k} offset:{(c%NQ)*16384 + tj*4096}")
                lg.issue(("r", step))
            LQ.append(f)
        for fi in range(2):
            for h in range(2):
                def f(fi=fi, h=h):
                    e(f"ds_read_b64_tr_b16 v[{b+4*fi+2*h}:{b+4*fi+2*h+1}], v{18+fi} offset:{(hc%NW)*8192 + kk*4096 + h*1024}")
                    lg.issue(("rw", step))
                LW.append(f)
        return (LQ + LW) if NW == 3 else (LW + LQ)
    def read_frags(step):
        for f in rf_l(step): f()
    pend = list(left)
    def mfmas(step, ldsops):
        b = FR[step % 3]
        n = 0
        per = (len(ldsops) + 3) // 4
        for fi in range(2):
            for tj in range(2):
                d = ACC + 16*(2*fi+tj)
                if not NOMF: e(f"v_mfma_f32_32x32x16_bf16 v[{d}:{d+15}], v[{b+4*fi}:{b+4*fi+3}], v[{b+8+4*tj}:{b+8+4*tj+3}], v[{d}:{d+15}]")
                for _ in range(per):
                    if ldsops: ldsops.pop(0)()
                if pend:
                    f = pend.pop(0)
                    if not NODMA: f()
    stamp(e, 1, SV)
    e(f"s_waitcnt vmcnt({vm.need([('Q',0),('W',0),('W',1)])})")
    ww(0); ww(1)
    e("s_waitcnt lgkmcnt(0)")
    lg.clear()
    if REP2:
        e("s_mov_b32 s46, 0")
        e.lab("A_REP")
    stamp(e, 2, SV)
    if G1ONLY:
        e("s_memtime s[100:101]"); e("s_waitcnt lgkmcnt(0)"); e(f"v_writelane_b32 v{SV}, s100, 10")
    e("s_barrier")
    read_frags(0); read_frags(1)
    NS = 32
    for step in range(NS):
        hc, c = step >> 1, step >> 2
        e(f"s_waitcnt lgkmcnt({lg.need([('r', step), ('rw', step)] + ([('rw', step+1)] if (NW == 2 and step & 1 == 0) else []))})")
        ops = []
        if step & 1 == 0:
            tags = []
            if hc >= 1:
                if hc & 1 and (hc+1) >> 1 < 8: tags.append(("Q", (hc+1) >> 1))
            if hc + 2 < 16: tags.append(("W", hc+2))
            if hc == 0: tags.append(("Q", 0))
            for t in tags: assert vm.q.count(t) == (4 if t[0] == "Q" else 2), (t, step)
            if tags and not NOVM: e(f"s_waitcnt vmcnt({min(63, vm.need(tags))})")
            if hc >= 1 or NW == 2:
                if not NOBAR: e("s_barrier")
                if hc in (4, 8, 12):
                    stamp(e, 2 + hc//4, SV); lg.clear()
            if hc + 2 < 16: ops += ww_l(hc + 2)
            if hc + NWR - 0 < 16 and hc >= 0:
                for j in range(2): pend.append(lw1(hc + NWR, j))
            if hc >= 2 and hc & 1 == 0 and (hc - 2)//2 + NQ < 8:
                for j in range(4): pend.append(dq((hc-2)//2 + NQ, j))
        if step + 2 < NS: ops = ops + rf_l(step + 2)
        mfmas(step, ops)
    e("s_barrier")
    assert not pend
    stamp(e, 6, SV)
    if G1ONLY:
        e("s_memtime s[100:101]"); e("s_waitcnt lgkmcnt(0)"); e(f"v_writelane_b32 v{SV}, s100, 11")
    if REP2:
        e("s_add_u32 s46, s46, 1")
        e("s_cmp_lt_u32 s46, 2")
        e("s_cbranch_scc1 A_REP")
    def issue(ci):
        sl = ci % S
        for jj in range(4):
            e(f"s_add_u32 m0, s56, {sl*4096 + jj*1024}")
            e(f"s_mov_b32 s59, {(32*ci + 8*jj)*1024}")
            e(f"buffer_load_dwordx4 v208, s[72:75], s59 offen lds")
            vm.issue(("w2", ci))
    def pre_issue():
        e("v_lshrrev_b32 v2, 3, v0")
        e("s_mul_i32 s46, s20, 448")
        e("v_add_u32 v2, s46, v2")
        e("v_lshlrev_b32 v2, 10, v2")
        e("v_and_b32 v3, 7, v0")
        e("v_bfe_u32 v4, v0, 4, 1")
        e("v_lshlrev_b32 v4, 2, v4")
        e("v_xor_b32 v3, v3, v4")
        e("v_lshl_add_u32 v2, v3, 4, v2")
        e("s_lshl_b32 s46, s49, 7")
        e("v_add_u32 v208, s46, v2")
        e("v_lshlrev_b32 v209, 4, v0")
        for ci in range(S): issue(ci)
    if EARLYW: pre_issue()
    e("v_lshlrev_b32 v209, 4, v0")
    e("s_lshl_b32 s46, s25, 2")
    e("s_lshl_b32 s47, s44, 1")
    e("s_add_u32 s46, s46, s47")
    e("s_mul_i32 s46, s46, 112")
    e("s_lshl_b32 s47, s26, 3")
    e("s_add_u32 s46, s46, s47")
    e("s_lshl_b32 s47, s45, 2")
    e("s_add_u32 s46, s46, s47")
    e("s_lshl_b32 s46, s46, 10")
    e("v_add_u32 v2, s46, v209")
    e("v_add_u32 v3, 112*1024, v2")
    for fi in range(2):
        for tj in range(2):
            d = ACC + 16*(2*fi+tj)
            for kq in range(2):
                p = 32 + 4*((2*tj+kq) & 3)
                for x in range(4):
                    i0 = d + 8*kq + 2*x
                    e(f"v_max_f32 v{i0}, 0, v{i0}")
                    e(f"v_max_f32 v{i0+1}, 0, v{i0+1}")
                for x in range(4):
                    i0 = d + 8*kq + 2*x
                    e(f"v_cvt_pk_bf16_f32 v{p+x}, v{i0}, v{i0+1}")
                e("s_nop 1")
                e(f"v_permlane32_swap_b32 v{p}, v{p+2}")
                e(f"v_permlane32_swap_b32 v{p+1}, v{p+3}")
                e(f"buffer_store_dwordx4 v[{p}:{p+3}], v{2+tj}, s[76:79], 0 offen offset:{(2*fi+kq)*1024} sc1")
    stamp(e, 7, SV)
    e("s_waitcnt vmcnt(0)")
    e("s_barrier")
    stamp(e, 8, SV)
    e("s_cmp_lg_u32 s20, 0")
    e("s_cbranch_scc1 A_PRE")
    e("v_mov_b32 v220, v22")
    e("v_mov_b32 v221, v23")
    e("v_readfirstlane_b32 s46, v22")
    e("s_cmp_lg_u32 s46, 0")
    e("s_cbranch_scc1 A_N1_OK")
    get_nonce(e, "A_N1", 92, 220, 46)
    e("s_lshl_b32 s46, s25, 4")
    e("s_add_u32 s46, s46, s26")
    e("s_lshl_b32 s46, s46, 7")
    e("v_mov_b32 v1, s46")
    e("s_mov_b64 exec, 1")
    e(f"buffer_store_dwordx2 v[220:221], v1, s[52:55], 0 offen offset:{F_H} sc1")
    e("s_mov_b64 exec, -1")
    if EARLYW: e("s_branch A_PRE2")
    e.lab("A_PRE")
    pre_issue()
    e.lab("A_PRE2")
    e.lab("A_POLL")
    if G1ONLY:
        stamp_store(e, SV, 0, 18)
        e("s_endpgm")
    HB = 128
    BLK = [16, 32, 48, 128, 144, 160, 176, 192, 224, 240]
    def issue_h(ci):
        sl = ci % S
        e(f"s_add_u32 s59, s57, {ci*2048}")
        e(f"s_add_u32 s60, s58, {ci*2048}")
        for kl in range(2):
            for tj in range(2):
                r = HB + 16*sl + 8*kl + 4*tj
                e(f"buffer_load_dwordx4 v[{r}:{r+3}], v209, s[76:79], s{59+tj} offen offset:{kl*1024}")
                vm.issue(("h", ci))
    e("v_bfe_u32 v6, v0, 2, 2")
    e("v_lshrrev_b32 v7, 5, v0")
    e("v_lshl_add_u32 v7, v7, 3, v6")
    e("v_lshlrev_b32 v7, 7, v7")
    e("v_bfe_u32 v9, v0, 4, 1")
    e("v_lshl_add_u32 v7, v9, 5, v7")
    e("v_and_b32 v9, 3, v0")
    e("v_lshl_add_u32 v7, v9, 3, v7")
    e("v_lshrrev_b32 v9, 1, v6")
    e("v_lshl_add_u32 v8, v9, 6, v7")
    e("v_add_u32 v8, s56, v8")
    e("v_xor_b32 v9, 64, v8")
    e("v_and_b32 v10, 15, v0")
    e("v_lshrrev_b32 v11, 4, v0")
    e("s_lshl_b32 s59, s48, 6")
    e("s_lshl_b32 s60, s20, 4")
    e("s_add_u32 s59, s59, s60")
    e("v_add_u32 v12, s59, v10")
    e("v_lshlrev_b32 v13, 10, v12")
    e("v_lshl_add_u32 v13, v11, 4, v13")
    e("s_lshl_b32 s60, s49, 7")
    e("v_add_u32 v13, s60, v13")
    e("buffer_load_dwordx4 v[212:215], v13, s[88:91], 0 offen"); vm.issue(("q", 0))
    e("buffer_load_dwordx4 v[216:219], v13, s[88:91], 0 offen offset:64"); vm.issue(("q", 1))
    e("v_lshlrev_b32 v14, 2, v12")
    ACC = 64
    def treads(ci, b):
        sl = ci % S
        L = []
        for kl in range(2):
            for di in range(2):
                for h in range(2):
                    r = b + 8*kl + 4*di + 2*h
                    L.append(f"ds_read_b64_tr_b16 v[{r}:{r+1}], v{8+di} offset:{sl*4096 + kl*2048 + h*512}")
        return L
    for ci in range(G2W):
        e(f"s_waitcnt vmcnt({vm.need([('w2', ci)])})")
        for x in treads(ci, BLK[ci]): e(x)
        e("s_waitcnt lgkmcnt(0)")
        issue(ci + S)
    e("s_lshr_b32 s60, s48, 1")
    e("s_lshl_b32 s60, s60, 4")
    e("v_min_u32 v6, 13, v0")
    e("v_add_u32 v6, s60, v6")
    e("v_lshlrev_b32 v6, 7, v6")
    e("s_cmp_lg_u32 s20, 0")
    e("s_cbranch_scc1 A_HG")
    e("s_cmp_lt_u32 s2, 224")
    e("s_cbranch_scc1 A_HP")
    for _ in range(SLEEP0): e("s_sleep 64")
    get_nonce(e, "A_N2", 92, 220, 46)
    e.lab("A_HP")
    if PP:
        R = [222, 210, 2, 4]
        for k in range(3):
            e(f"buffer_load_dwordx2 v[{R[k]}:{R[k]+1}], v6, s[52:55], 0 offen offset:{F_H} sc1")
            e(f"s_sleep {PP}")
        e.lab("A_HPL")
        for k in range(4):
            n = R[(k + 3) % 4]; o = R[k]
            e(f"buffer_load_dwordx2 v[{n}:{n+1}], v6, s[52:55], 0 offen offset:{F_H} sc1")
            e("s_waitcnt vmcnt(3)")
            e(f"v_cmp_ne_u32 vcc, v{o}, v220")
            e(f"v_cmp_ne_u32 s[60:61], v{o+1}, v221")
            e("s_nop 1")
            e("s_or_b64 vcc, vcc, s[60:61]")
            e("s_cmp_eq_u64 vcc, 0")
            e("s_cbranch_scc1 A_HG2")
            e(f"s_sleep {PP}")
        e("s_branch A_HPL")
    else:
        e(f"buffer_load_dwordx2 v[222:223], v6, s[52:55], 0 offen offset:{F_H} sc1")
        e("s_waitcnt vmcnt(0)")
        e("v_cmp_ne_u32 vcc, v222, v220")
        e("v_cmp_ne_u32 s[60:61], v223, v221")
        e("s_nop 1")
        e("s_or_b64 vcc, vcc, s[60:61]")
        e("s_cmp_eq_u64 vcc, 0")
        e("s_cbranch_scc1 A_HG")
        e(f"s_sleep {PSL}")
        e("s_branch A_HP")
    e.lab("A_HG")
    e("s_waitcnt vmcnt(0)")
    e.lab("A_HG2")
    e("s_barrier")
    vm.clear()
    e("v_mov_b32 v1, 0")
    e("buffer_load_dwordx2 v[220:221], v1, s[92:95], 0 offen sc1")
    vm.issue(("nonce", 0))
    def issue_hb_l(ci, b):
        L = []
        for kl in range(2):
            for tj in range(2):
                def f(kl=kl, tj=tj):
                    r = b + 8*kl + 4*tj
                    e(f"s_add_u32 s60, s{57+tj}, {ci*2048}")
                    e(f"buffer_load_dwordx4 v[{r}:{r+3}], v209, s[76:79], s60 offen offset:{kl*1024}")
                    vm.issue(("h", ci))
                L.append(f)
        return L
    if G2W:
        Wb = {c: BLK[c] for c in range(G2W)}
        Hb = {}
        free = BLK[G2W:]
        nh = 0
        while free:
            Hb[nh] = free.pop(0)
            for f in issue_hb_l(nh, Hb[nh]): f()
            nh += 1
    else:
        for ci in range(S): issue_h(ci)
    stamp(e, 9, SV)
    for i in range(64): e(f"v_mov_b32 v{ACC+i}, 0")
    e("s_lshl_b32 s60, s49, 5")
    e("v_add_u32 v6, s60, v0")
    e("v_lshlrev_b32 v6, 7, v6")
    e(f"v_add_u32 v6, {F_Z}, v6")
    e("v_and_b32 v7, 7, v0")
    e("s_lshl_b32 s60, s48, 3")
    e("v_add_u32 v7, s60, v7")
    e("v_lshlrev_b32 v7, 7, v7")
    e(f"v_add_u32 v7, {F_U}, v7")
    e("v_cmp_gt_u32 vcc, 32, v0")
    e("v_cndmask_b32 v6, v7, v6, vcc")
    e("s_lshl_b32 s60, s49, 6")
    e("v_lshl_add_u32 v7, v11, 3, s60")
    e("v_lshlrev_b32 v7, 12, v7")
    e("v_lshl_add_u32 v7, v12, 1, v7")
    ZB, GV = 32, 210
    def zloads_l(track):
        L = []
        for p in range(2):
            for i in range(8):
                def f(p=p, i=i):
                    e(f"s_mov_b32 s60, {(32*p + i)*4096}")
                    e(f"buffer_load_ushort v{ZB+8*p+i}, v7, s[80:83], s60 offen sc1")
                    if track: vm.issue(("z", 0))
                L.append(f)
        def f():
            e(f"buffer_load_dword v{GV}, v14, s[84:87], 0 offen sc1")
            if track: vm.issue(("z", 0))
        L.append(f)
        return L
    ZS = 8
    FR = [16, 32]
    def reads_l(ci):
        b = FR[ci & 1]; sl = ci % S
        L = []
        for kl in range(2):
            for di in range(2):
                for h in range(2):
                    r = b + 8*kl + 4*di + 2*h
                    L.append(f"ds_read_b64_tr_b16 v[{r}:{r+1}], v{8+di} offset:{sl*4096 + kl*2048 + h*512}")
        return L
    def issue_l(ci):
        L = []
        sl = ci % S
        for jj in range(4):
            def f(jj=jj):
                e(f"s_add_u32 m0, s56, {sl*4096 + jj*1024}")
                e(f"s_mov_b32 s59, {(32*ci + 8*jj)*1024}")
                e(f"buffer_load_dwordx4 v208, s[72:75], s59 offen lds")
                vm.issue(("w2", ci))
            L.append(f)
        return L
    def issue_h_l(ci):
        L = []
        sl = ci % S
        for kl in range(2):
            for tj in range(2):
                def f(kl=kl, tj=tj):
                    r = HB + 16*sl + 8*kl + 4*tj
                    e(f"s_add_u32 s60, s{57+tj}, {ci*2048}")
                    e(f"buffer_load_dwordx4 v[{r}:{r+3}], v209, s[76:79], s60 offen offset:{kl*1024}")
                    vm.issue(("h", ci))
                L.append(f)
        return L
    NCH = 14
    if G2W:
        for ci in range(NCH):
            tags = [("h", ci)] + ([("w2", ci+1)] if (ci + 1 < NCH and ci + 1 >= G2W + S) else [])
            if ZE and ci == ZS + 2: tags.append(("zf", 0))
            e(f"s_waitcnt vmcnt({vm.need(tags)}) lgkmcnt(0)")
            rl = []; dl = []
            if ZE and ci == ZS + 2:
                e("v_cmp_ne_u32 vcc, v222, v220")
                e("v_cmp_ne_u32 s[60:61], v223, v221")
                e("s_nop 1")
                e("s_or_b64 s[62:63], vcc, s[60:61]")
                dl += zloads_l(True)
            if ci + 1 < NCH and ci + 1 >= G2W:
                Wb[ci+1] = free.pop(0)
                rl = treads(ci + 1, Wb[ci+1])
            while free and nh < NCH:
                Hb[nh] = free.pop(0)
                dl += issue_hb_l(nh, Hb[nh]); nh += 1
            if ci >= G2W and ci + S < NCH: dl += issue_l(ci + S)
            if ci == (ZS if ZE else 10):
                e("buffer_load_dwordx2 v[222:223], v6, s[52:55], 0 offen sc1"); vm.issue(("zf",0))
            per = max(2, (len(dl) + 7) // 8)
            for kl in range(2):
                for di in range(2):
                    for tj in range(2):
                        d = ACC + 16*(2*di+tj)
                        a = Wb[ci] + 8*kl + 4*di
                        hr = Hb[ci] + 8*kl + 4*tj
                        e(f"v_mfma_f32_32x32x16_bf16 v[{d}:{d+15}], v[{a}:{a+3}], v[{hr}:{hr+3}], v[{d}:{d+15}]")
                        for _ in range(2):
                            if rl: e(rl.pop(0))
                        for _ in range(per):
                            if dl: dl.pop(0)()
            assert not rl and not dl
            free += [Wb[ci], Hb[ci]]
            if ZE and ci == ZS:
                ZB = Hb[ci]; free.remove(ZB)
        assert nh == NCH
    else:
      for x in reads_l(0): e(x)
    hq = []
    for ci in range(0 if G2W else NCH):
        tags = [("h", ci)] + ([("w2", ci+1)] if ci + 1 < NCH else [])
        e(f"s_waitcnt vmcnt({vm.need(tags)}) lgkmcnt(0)")
        rl = reads_l(ci + 1) if ci + 1 < NCH else []
        dl = issue_l(ci + S) if ci + S < NCH else []
        dl = hq + dl
        hq = issue_h_l(ci + S) if ci + S < NCH else []
        if ci == 10:
            e("buffer_load_dwordx2 v[222:223], v6, s[52:55], 0 offen sc1"); vm.issue(("zf",0))
        b = FR[ci & 1]; sl = ci % S
        for kl in range(2):
            for di in range(2):
                for tj in range(2):
                    d = ACC + 16*(2*di+tj)
                    a = b + 8*kl + 4*di
                    hr = HB + 16*sl + 8*kl + 4*tj
                    e(f"v_mfma_f32_32x32x16_bf16 v[{d}:{d+15}], v[{a}:{a+3}], v[{hr}:{hr+3}], v[{d}:{d+15}]")
                    if rl: e(rl.pop(0))
                    if rl: e(rl.pop(0))
                    if dl: dl.pop(0)()
        assert not rl and not dl
    assert not hq
    stamp(e, 10, SV)
    if ZE and G2W:
        e("s_cmp_eq_u64 s[62:63], 0")
        e("s_cbranch_scc1 G2_ZOK")
    e("s_waitcnt vmcnt(0)")
    e("s_branch G2_CHK")
    e.lab("G2_POLL")
    e(f"s_sleep {PSL}")
    e("buffer_load_dwordx2 v[222:223], v6, s[52:55], 0 offen sc1")
    e("s_waitcnt vmcnt(0)")
    e.lab("G2_CHK")
    e("v_cmp_ne_u32 vcc, v222, v220")
    e("v_cmp_ne_u32 s[60:61], v223, v221")
    e("s_nop 1")
    e("s_or_b64 vcc, vcc, s[60:61]")
    e("s_cmp_eq_u64 vcc, 0")
    e("s_cbranch_scc0 G2_POLL")
    e.lab("G2_GO")
    if not FST and not PST: stamp(e, 11, SV)
    for f in zloads_l(False): f()
    e.lab("G2_ZOK")
    e("v_and_b32 v4, 31, v0")
    e("s_movk_i32 s60, 272")
    e("v_mul_lo_u32 v4, v4, s60")
    e("v_lshrrev_b32 v5, 5, v0")
    e("v_lshl_add_u32 v4, v5, 4, v4")
    e("v_add_u32 v4, s56, v4")
    for di in range(2):
        for tj in range(2):
            d = ACC + 16*(2*di+tj)
            for q in range(4):
                e(f"ds_write_b128 v4, v[{d+4*q}:{d+4*q+3}] offset:{tj*32*272 + di*128 + q*32}")
    e("s_waitcnt lgkmcnt(0)")
    e("s_barrier")
    if FST: stamp(e, 11, SV)
    e("s_lshl_b32 s60, s20, 4")
    e("v_add_u32 v5, s60, v10")
    e("s_movk_i32 s60, 272")
    e("v_mul_lo_u32 v5, v5, s60")
    e("v_lshl_add_u32 v5, v11, 5, v5")
    for pw in range(4):
        for p in range(2):
            for hh in range(2):
                r = 64 + 16*pw + 8*p + 4*hh
                e(f"ds_read_b128 v[{r}:{r+3}], v5 offset:{pw*S*4096 + p*128 + hh*16}")
    e("s_waitcnt lgkmcnt(0)")
    for i in range(16):
        e(f"v_add_f32 v{64+i}, v{64+i}, v{80+i}")
        e(f"v_add_f32 v{96+i}, v{96+i}, v{112+i}")
    for i in range(16):
        e(f"v_add_f32 v{64+i}, v{64+i}, v{96+i}")
    if FST: stamp(e, 13, SV)
    e("s_mov_b32 s62, 0xffff0000")
    def rb(a, t):
        e(f"v_cvt_pk_bf16_f32 v{t}, v{a}, v{a+1}")
        e(f"v_lshlrev_b32 v{a}, 16, v{t}")
        e(f"v_and_b32 v{a+1}, s62, v{t}")
    for i in range(8): rb(64+2*i, 25)
    e("s_waitcnt vmcnt(0)")
    e(f"v_sub_f32 v26, 1.0, v{GV}")
    e("v_mov_b32 v27, v26")
    rb(26, 25)
    for i in range(16): e(f"v_mul_f32 v{64+i}, v{64+i}, v26")
    for i in range(8): rb(64+2*i, 25)
    for p in range(2):
        for i in range(4):
            qv = 212 + 4*p + i
            z0 = ZB + 8*p + 2*i
            e(f"v_lshlrev_b32 v96, 16, v{qv}")
            e(f"v_and_b32 v97, s62, v{qv}")
            e(f"v_lshlrev_b32 v98, 16, v{z0}")
            e(f"v_lshlrev_b32 v99, 16, v{z0+1}")
            e("v_mul_f32 v96, v96, v98")
            e("v_mul_f32 v97, v97, v99")
            rb(96, 25)
            e(f"v_mul_f32 v96, v96, v{GV}")
            e(f"v_mul_f32 v97, v97, v{GV}")
            rb(96, 25)
            o = 64 + 8*p + 2*i
            e(f"v_add_f32 v96, v96, v{o}")
            e(f"v_add_f32 v97, v97, v{o+1}")
            e(f"v_cvt_pk_bf16_f32 v{100+4*p+i}, v96, v97")
        e(f"buffer_store_dwordx4 v[{100+4*p}:{103+4*p}], v13, s[96:99], 0 offen offset:{64*p} sc1 nt")
    if not PST: stamp(e, 12, SV)
    if PROF and not FST: e("s_waitcnt vmcnt(0)")
    if not FST and not PST: stamp(e, 13, SV)
    stamp_store(e, SV, 0, 18)
    if DBG >= 0:
        e(f"s_cmp_lg_u32 s2, {DBG}")
        e("s_cbranch_scc1 A_DBGX")
        e("s_cmp_lg_u32 s20, 0")
        e("s_cbranch_scc1 A_DBGX")
        e("v_lshlrev_b32 v1, 2, v0")
        e("v_add_u32 v1, 8, v1")
        e("s_mov_b64 exec, 0x3fff")
        e(f"buffer_store_dword v{SV}, v1, s[92:95], 0 offen")
        e.lab("A_DBGX")
    e("s_endpgm")

def gen_typeB(e):
    CH = 29440
    KC, UR, RED = 0, 16640, 21248
    e("s_sub_u32 s2, s2, 256")
    if G1ONLY and not BSTOP: e("s_endpgm")
    e("s_load_dwordx4 s[4:7], s[0:1], 0")
    e("s_load_dwordx4 s[8:11], s[0:1], 16")
    e("s_load_dwordx4 s[12:15], s[0:1], 32")
    e("s_load_dwordx2 s[16:17], s[0:1], 72")
    e("s_load_dwordx2 s[22:23], s[0:1], 88")
    e("s_load_dwordx2 s[18:19], s[0:1], 96")
    e("s_load_dwordx4 s[56:59], s[0:1], 56")
    if PRIOB: e(f"s_setprio {PRIOB}")
    e("s_lshr_b32 s24, s20, 1")
    e("s_and_b32 s25, s20, 1")
    e("s_and_b32 s26, s2, 7")
    e("s_lshl_b32 s26, s26, 6")
    e("s_lshr_b32 s27, s2, 3")
    e("s_lshl_b32 s27, s27, 1")
    e("s_add_u32 s26, s26, s27")
    e("s_add_u32 s26, s26, s24")
    e("s_lshl_b32 s27, s26, 12")
    e("s_mul_i32 s28, s24, %d" % CH)
    e("v_lshlrev_b32 v1, 4, v0")
    e("s_waitcnt lgkmcnt(0)")
    stamp(e, 0, 13)
    prep_setup(e)
    e("s_lshr_b32 s29, s2, 3")
    e("s_lshl_b32 s29, s29, 2")
    e("s_add_u32 s29, s29, s20")
    e("s_lshl_b32 s21, s29, 13")
    if PF & 1:
        srd(e, 52, 56, 512*3584)
        e("s_lshr_b32 s29, s2, 3")
        e("s_lshl_b32 s29, s29, 2")
        e("s_add_u32 s29, s29, s20")
        e("s_lshl_b32 s21, s29, 13")
        e("s_add_u32 s29, s21, %d" % (128*8192))
        e("v_lshlrev_b32 v2, 7, v0")
        e("buffer_load_dword v12, v2, s[52:55], s29 offen")
        e("s_and_b32 s30, s2, 7")
        e("s_lshl_b32 s30, s30, 18")
        e("s_add_u32 s30, s30, s21")
        e("s_sub_u32 s30, s30, %d" % (96*8192))
        e("s_cmp_lt_u32 s21, %d" % (96*8192))
        e("s_cbranch_scc1 B_NOQ")
        e("buffer_load_dword v12, v2, s[80:83], s30 offen")
        e.lab("B_NOQ")
    e("s_add_u32 s32, s12, s27"); e("s_addc_u32 s33, s13, 0"); e("s_mov_b32 s34, 4096"); e("s_mov_b32 s35, 0x00020000")
    srd(e, 36, 18, 512*4096, WS_U)
    srd(e, 40, 18, 512*4096, WS_Z)
    srd(e, 44, 14, 1024)
    srd(e, 48, 22, 256)
    srd(e, 60, 18, 0x18000, WS_F)
    def kloads():
        e("s_lshl_b32 s29, s26, 1")
        e("v_mov_b32 v2, s29")
        e("buffer_load_ushort v3, v2, s[44:47], 0 offen")
        if KD:
            KR, KRS = 68608, 4224
            e("s_mul_i32 s29, s24, %d" % KRS)
            e(f"s_add_u32 s29, s29, {KR}")
            e("s_lshl_b32 s30, s25, 11")
            e("s_add_u32 s31, s29, s30")
            e("s_add_u32 m0, s31, 32")
            e("s_nop 0")
            e("buffer_load_dwordx4 v1, s[32:35], s30 offen lds")
            e("s_add_u32 m0, s31, 1056")
            e("s_nop 0")
            e("buffer_load_dwordx4 v1, s[32:35], s30 offen offset:1024 lds")
            e("v_and_b32 v4, 1, v0")
            e("v_lshlrev_b32 v4, 4, v4")
            e("v_add_u32 v5, 4128, v1")
            e("s_cmp_eq_u32 s25, 0")
            e("s_cselect_b64 vcc, -1, 0")
            e("v_cndmask_b32 v4, v5, v4, vcc")
            e("v_add_u32 v4, s29, v4")
            for i in range(4): e(f"v_mov_b32 v{8+i}, 0")
            e("v_cmp_gt_u32 vcc, 4, v0")
            e("s_and_saveexec_b64 s[52:53], vcc")
            e("ds_write_b128 v4, v[8:11]")
            e("s_mov_b64 exec, s[52:53]")
            e("s_lshl_b32 s30, s25, 10")
            e("s_add_u32 s30, s30, s29")
            e("v_add_u32 v4, s30, v1")
        else:
            e("s_lshl_b32 s29, s25, 10")
            e("v_add_u32 v4, s29, v1")
            for n in range(3):
                e(f"v_add_u32 v5, {(2048*n - 32) & 0xffffffff:#x}, v4")
                e(f"v_add_u32 v6, {(2048*n - 16) & 0xffffffff:#x}, v4")
                e(f"buffer_load_dwordx4 v[{16+8*n}:{19+8*n}], v5, s[32:35], 0 offen")
                e(f"buffer_load_dwordx4 v[{20+8*n}:{23+8*n}], v6, s[32:35], 0 offen")
    if not KLATE: kloads()
    if PRIOB: e(f"s_setprio {int(os.environ.get('PRIOB2','0'))}")
    e("s_waitcnt vmcnt(%d)" % (0 if KLATE else (3 if KD else 7)))
    stamp(e, 1, 13)
    if KLATE: kloads()
    if BSTOP == 1: e('s_waitcnt vmcnt(0) lgkmcnt(0)'); e('s_endpgm')
    if PF & 2:
        srd(e, 52, 58, 1792*1024)
        e("v_lshlrev_b32 v2, 7, v0")
        e("buffer_load_dword v12, v2, s[52:55], s21 offen")
        e("s_add_u32 s21, s21, %d" % (128*8192))
        e("buffer_load_dword v12, v2, s[52:55], s21 offen")
    pc = prep_compute()
    stamp(e, 9, 13)
    for ins in pc[:-2]: e(ins)
    stamp(e, 10, 13)
    if UT:
        UST, RS = 59392, 144
        P = 128
        e(f"v_mul_u32_u24 v{P+16}, {2*RS}, v{P+1}")
        e(f"v_lshlrev_b32 v{P+17}, 4, v{P+2}")
        e(f"v_sub_u32 v{P+16}, v{P+16}, v{P+17}")
        e(f"v_add_u32 v{P+16}, 112, v{P+16}")
        e(f"ds_write_b128 v{P+16}, v[{P+104}:{P+107}] offset:{UST}")
        e(f"ds_write_b128 v{P+16}, v[{P+108}:{P+111}] offset:{UST + RS}")
        e(f"v_lshrrev_b32 v{P+17}, 3, v0")
        e("s_lshl_b32 s97, s20, 4")
        e(f"v_add_u32 v{P+17}, s97, v{P+17}")
        e(f"v_and_b32 v{P+18}, 7, v0")
        e(f"v_lshlrev_b32 v{P+18}, 4, v{P+18}")
        e(f"v_mul_u32_u24 v{P+19}, {RS}, v{P+17}")
        e(f"v_add_u32 v{P+19}, v{P+19}, v{P+18}")
        e("s_and_b32 s97, s2, 7")
        e("s_lshl_b32 s97, s97, 18")
        e("s_lshr_b32 s98, s2, 3")
        e("s_lshl_b32 s98, s98, 7")
        e("s_sub_u32 s97, s97, s98")
        e("s_add_u32 s97, s97, 3968")
        e(f"v_lshl_add_u32 v{P+20}, v{P+17}, 12, v{P+18}")
        e("s_waitcnt lgkmcnt(0)")
        e("s_barrier")
        e(f"ds_read_b128 v[{P+104}:{P+107}], v{P+19} offset:{UST}")
        e(f"ds_read_b128 v[{P+108}:{P+111}], v{P+19} offset:{UST + 8*RS}")
        e("s_add_u32 s98, s97, 32768")
        e("s_waitcnt lgkmcnt(1)")
        e(f"buffer_store_dwordx4 v[{P+104}:{P+107}], v{P+20}, s[76:79], s97 offen sc1")
        e("s_waitcnt lgkmcnt(0)")
        e(f"buffer_store_dwordx4 v[{P+108}:{P+111}], v{P+20}, s[76:79], s98 offen sc1")
    else:
        for ins in pc[-2:]: e(ins)
    stamp(e, 11, 13)
    prep_gate(e)
    stamp(e, 2, 13)
    if BSTOP == 2: e('s_waitcnt vmcnt(0) lgkmcnt(0)'); e('s_endpgm')
    for i in range(4): e(f"v_mov_b32 v{8+i}, 0")
    e(f"v_add_u32 v7, s28, v1")
    e("v_cmp_gt_u32 vcc, 32, v0")
    e("s_and_saveexec_b64 s[52:53], vcc")
    e(f"ds_write_b128 v7, v[8:11] offset:{UR+4096}")
    e("s_mov_b64 exec, s[52:53]")
    e("v_add_u32 v7, s29, v7")
    e("s_waitcnt vmcnt(0) lgkmcnt(0)")
    e("s_barrier")
    if KD:
        for n in range(3):
            e(f"ds_read_b128 v[{16+8*n}:{19+8*n}], v4 offset:{2048*n}")
            e(f"ds_read_b128 v[{20+8*n}:{23+8*n}], v4 offset:{2048*n + 16}")
    e("s_cmp_lg_u32 s20, 0")
    e("s_cbranch_scc1 B_NOSIG")
    get_nonce(e, "B_N1", 48, 14, 54)
    e("s_lshl_b32 s54, s2, 7")
    e(f"s_add_u32 s54, s54, {F_U}")
    e("v_mov_b32 v8, s54")
    e("s_mov_b64 exec, 1")
    e(f"buffer_store_dwordx2 v[14:15], v8, s[60:63], 0 offen sc1")
    e("s_mov_b64 exec, -1")
    e.lab("B_NOSIG")
    if PF & 16:
        srd(e, 52, 58, 1792*1024)
        e("v_lshlrev_b32 v2, 7, v0")
        e("buffer_load_dword v200, v2, s[52:55], s21 offen")
        e("s_add_u32 s21, s21, %d" % (128*8192))
        e("buffer_load_dword v200, v2, s[52:55], s21 offen")
    if KD: e("s_waitcnt lgkmcnt(0)")
    stamp(e, 3, 13)
    if BSTOP == 3: e('s_waitcnt vmcnt(0) lgkmcnt(0)'); e('s_endpgm')
    for n in range(3):
        b = 16 + 8*n
        if n == 2:
            e("s_lshl_b32 s54, s25, 6")
            e("v_add_u32 v12, s54, v0")
            e("v_cmp_gt_u32 vcc, 4, v12")
            e("s_and_saveexec_b64 s[52:53], vcc")
            e("s_cbranch_execz CV_SKIPK")
        for i in range(5):
            e(f"v_alignbit_b32 v{48+i}, v{b+i+1}, v{b+i}, 16")
        for i in range(4):
            e(f"v_mov_b32 v{56+i}, v{49+i}")
            e(f"v_mov_b32 v{60+i}, v{b+1+i}")
        o = 2048*n
        e(f"ds_write_b128 v7, v[48:51] offset:{KC + 0*4160 + o}")
        e(f"ds_write_b128 v7, v[60:63] offset:{KC + 1*4160 + o}")
        e(f"ds_write_b128 v7, v[56:59] offset:{KC + 2*4160 + o}")
        e(f"ds_write_b128 v7, v[{b+2}:{b+5}] offset:{KC + 3*4160 + o}")
        if n == 2:
            e.lab("CV_SKIPK")
            e("s_mov_b64 exec, s[52:53]")
    e("v_and_b32 v4, 15, v0")
    e("v_lshrrev_b32 v5, 4, v0")
    e("v_and_b32 v6, 3, v0")
    e("s_movk_i32 s54, 4160")
    e("v_mul_lo_u32 v6, v6, s54")
    e("v_lshl_add_u32 v6, v5, 4, v6")
    e("v_and_b32 v8, 12, v0")
    e("v_lshl_add_u32 v6, v8, 1, v6")
    e("s_lshl_b32 s54, s25, 8")
    e("s_add_u32 s54, s54, s28")
    e("v_add_u32 v6, s54, v6")
    e("v_lshlrev_b32 v8, 5, v4")
    e("v_lshlrev_b32 v9, 4, v5")
    e("v_sub_u32 v8, v9, v8")
    e(f"s_add_u32 s54, s54, {UR + 4064 - 3584}")
    e("v_add_u32 v8, s54, v8")
    ACC = 224
    for i in range(32): e(f"v_mov_b32 v{ACC+i}, 0")
    e("v_and_b32 v10, 31, v0")
    e("v_lshlrev_b32 v10, 3, v10")
    e("s_and_b32 s54, s2, 7")
    e("v_add_u32 v10, s54, v10")
    e("v_lshlrev_b32 v10, 7, v10")
    e(f"v_add_u32 v10, {F_U}, v10")
    e("s_cmp_lg_u32 s20, 0")
    e("s_cbranch_scc1 B_UG")
    e.lab("B_UP")
    e(f"buffer_load_dwordx2 v[48:49], v10, s[60:63], 0 offen sc1")
    e("s_waitcnt vmcnt(0)")
    e("v_cmp_ne_u32 vcc, v48, v14")
    e("v_cmp_ne_u32 s[54:55], v49, v15")
    e("s_nop 1")
    e("s_or_b64 vcc, vcc, s[54:55]")
    e("s_cmp_eq_u64 vcc, 0")
    e("s_cbranch_scc1 B_UG")
    e(f"s_sleep {PSL}")
    e("s_branch B_UP")
    e.lab("B_UG")
    e("s_barrier")
    stamp(e, 4, 13)
    if BSTOP == 4: e('s_waitcnt vmcnt(0) lgkmcnt(0)'); e('s_endpgm')
    e("s_lshl_b32 s29, s25, 11")
    e("s_add_u32 s30, s27, s29")
    e("s_add_u32 s31, s28, s29")
    e(f"s_add_u32 m0, s31, {UR}")
    e("s_nop 0")
    e("buffer_load_dwordx4 v1, s[36:39], s30 offen sc1 lds")
    e("buffer_load_dwordx4 v1, s[36:39], s30 offen offset:1024 sc1 lds")
    e("s_waitcnt vmcnt(0) lgkmcnt(0)")
    e("s_barrier")
    stamp(e, 5, 13)
    if BSTOP == 5: e('s_waitcnt vmcnt(0) lgkmcnt(0)'); e('s_endpgm')
    SETS = [64, 128]
    def loads_l(rr):
        b = SETS[rr & 1]
        L = []
        for a in range(8):
            L.append(f"ds_read_b128 v[{b+32+4*a}:{b+35+4*a}], v8 offset:{512*(7-a) + 64*rr}")
            for h in range(2):
                L.append(f"ds_read_b64 v[{b+4*a+2*h}:{b+4*a+2*h+1}], v6 offset:{64*rr + 512*a + 8*h}")
        return L
    for x in loads_l(0): e(x)
    for rr in range(4):
        b = SETS[rr & 1]
        e("s_waitcnt lgkmcnt(0)")
        nxt = loads_l(rr + 1) if rr < 3 else []
        n = 0
        for s in range(8):
            for a in range(s + 1):
                bb = s - a
                d = ACC + 4*s
                e(f"v_mfma_f32_16x16x32_bf16 v[{d}:{d+3}], v[{b+4*a}:{b+4*a+3}], v[{b+32+4*bb}:{b+35+4*bb}], v[{d}:{d+3}]")
                if nxt: e(nxt.pop(0))
        assert not nxt
    e("s_nop 7")
    stamp(e, 6, 13)
    if BSTOP == 6: e('s_waitcnt vmcnt(0) lgkmcnt(0)'); e('s_endpgm')
    e(f"s_add_u32 s54, s28, {RED}")
    e("v_add_u32 v9, s54, v1")
    e("s_cmp_eq_u32 s25, 0")
    e("s_cbranch_scc1 CV_X0")
    for nt in range(4):
        e(f"ds_write_b128 v9, v[{ACC+4*nt}:{ACC+4*nt+3}] offset:{1024*nt}")
    e("s_waitcnt lgkmcnt(0)")
    e("s_barrier")
    for nt in range(4):
        e(f"ds_read_b128 v[{64+4*nt}:{67+4*nt}], v9 offset:{1024*(4+nt)}")
    e("s_waitcnt lgkmcnt(0)")
    for i in range(16):
        e(f"v_add_f32 v{64+i}, v{64+i}, v{ACC+16+i}")
    e("s_branch CV_FIN")
    e.lab("CV_X0")
    for nt in range(4):
        e(f"ds_write_b128 v9, v[{ACC+16+4*nt}:{ACC+16+4*nt+3}] offset:{1024*(4+nt)}")
    e("s_waitcnt lgkmcnt(0)")
    e("s_barrier")
    for nt in range(4):
        e(f"ds_read_b128 v[{64+4*nt}:{67+4*nt}], v9 offset:{1024*nt}")
    e("s_waitcnt lgkmcnt(0)")
    for i in range(16):
        e(f"v_add_f32 v{64+i}, v{64+i}, v{ACC+i}")
    e.lab("CV_FIN")
    e("v_lshlrev_b32 v10, 4, v4")
    e("v_lshl_add_u32 v10, v5, 2, v10")
    e("s_lshl_b32 s54, s25, 10")
    e("v_add_u32 v10, s54, v10")
    e(f"s_add_u32 s55, s28, {UR + 2*2044 - 512*3}")
    e("v_lshlrev_b32 v11, 1, v10")
    e("v_sub_u32 v11, s55, v11")
    for t in range(4):
        e(f"ds_read_b64 v[{80+2*t}:{81+2*t}], v11 offset:{512*(3-t)}")
    e("v_lshlrev_b32 v3, 16, v3")
    e("s_mov_b32 s56, 0xffff0000")
    e("v_lshlrev_b32 v12, 1, v10")
    e("v_add_u32 v12, s27, v12")
    e("s_waitcnt lgkmcnt(0)")
    for t in range(4):
        y = 64 + 4*t; kq = 80 + 2*t
        e(f"v_and_b32 v96, s56, v{kq+1}")
        e(f"v_lshlrev_b32 v97, 16, v{kq+1}")
        e(f"v_and_b32 v98, s56, v{kq}")
        e(f"v_lshlrev_b32 v99, 16, v{kq}")
        for i in range(4): e(f"v_mul_f32 v{96+i}, v{96+i}, v3")
        e("v_cvt_pk_bf16_f32 v100, v96, v97")
        e("v_cvt_pk_bf16_f32 v101, v98, v99")
        e(f"v_cvt_pk_bf16_f32 v102, v{y}, v{y+1}")
        e(f"v_cvt_pk_bf16_f32 v103, v{y+2}, v{y+3}")
        for i in range(2):
            e(f"v_lshlrev_b32 v{96+2*i}, 16, v{100+i}")
            e(f"v_and_b32 v{97+2*i}, s56, v{100+i}")
            e(f"v_lshlrev_b32 v{104+2*i}, 16, v{102+i}")
            e(f"v_and_b32 v{105+2*i}, s56, v{102+i}")
        for i in range(4): e(f"v_add_f32 v{96+i}, v{96+i}, v{104+i}")
        e(f"v_cvt_pk_bf16_f32 v{108+2*t}, v96, v97")
        e(f"v_cvt_pk_bf16_f32 v{109+2*t}, v98, v99")
        e(f"buffer_store_dwordx2 v[{108+2*t}:{109+2*t}], v12, s[40:43], 0 offen offset:{512*t} sc1")
    stamp(e, 7, 13)
    if BSTOP == 7: e('s_waitcnt vmcnt(0) lgkmcnt(0)'); e('s_endpgm')
    e("s_waitcnt vmcnt(0)")
    stamp(e, 8, 13)
    if BSTOP == 8: e('s_waitcnt vmcnt(0) lgkmcnt(0)'); e('s_endpgm')
    stamp_store(e, 13, 1, 18)
    e("s_barrier")
    e("s_cmp_lg_u32 s20, 0")
    e("s_cbranch_scc1 F_END")
    e("s_and_b32 s54, s2, 7")
    e("s_lshl_b32 s54, s54, 5")
    e("s_lshr_b32 s55, s2, 3")
    e("s_add_u32 s54, s54, s55")
    e("s_lshl_b32 s54, s54, 7")
    e(f"s_add_u32 s54, s54, {F_Z}")
    e("v_mov_b32 v1, s54")
    e("s_mov_b64 exec, 1")
    e("buffer_store_dwordx2 v[14:15], v1, s[60:63], 0 offen sc1")
    e("s_endpgm")


def gen_fused(e):
    e.lab("fused_kernel")
    if PST and PROF: e("s_memrealtime s[38:39]")
    e("s_cmp_ge_u32 s2, 512")
    e("s_cbranch_scc1 F_END")
    e("v_lshrrev_b32 v1, 6, v0")
    e("v_and_b32 v0, 63, v0")
    e("s_nop 0")
    e("v_readfirstlane_b32 s20, v1")
    if SWAP: e("s_xor_b32 s2, s2, 256")
    e("s_cmp_ge_u32 s2, 256")
    e("s_cbranch_scc1 F_B")
    gen_typeA(e)
    e.lab("F_B")
    gen_typeB(e)
    e.lab("F_END")
    e("s_endpgm")

def kdesc(name, vgpr, sgpr=96):
    return f""".amdhsa_kernel {name}
  .amdhsa_next_free_vgpr {vgpr}
  .amdhsa_next_free_sgpr {sgpr}
  .amdhsa_accum_offset {(vgpr+3)//4*4}
  .amdhsa_group_segment_fixed_size 0
  .amdhsa_kernarg_size 104
  .amdhsa_user_sgpr_count 2
  .amdhsa_user_sgpr_kernarg_segment_ptr 1
  .amdhsa_system_sgpr_workgroup_id_x 1
.end_amdhsa_kernel
"""

def main(out):
    e = E()
    hdr = "; @launch kernel=fused_kernel grid=(512,1,1) block=(256,1,1) lds=81920\n"
    hdr += '.amdgcn_target "amdgcn-amd-amdhsa--gfx950"\n.text\n'
    body = ".globl fused_kernel\n.p2align 8\n.type fused_kernel,@function\n"
    gen_fused(e)
    body += e.text()
    ro = '.section .rodata,"a"\n.p2align 6\n' + kdesc("fused_kernel", 256, 102)
    open(out, "w").write(hdr + body + ro)

if __name__ == "__main__":
    main(sys.argv[1] if len(sys.argv) > 1 else "k.s")
```

```python
import sys

KN = "gated_mix__ssm_conv_h3__dense_activation_relu__prompt"
WS_H = 0
WS_H_SIZE = 64*112*1024
WS_U = 0x800000
WS_G = 0xA00000
WS_Z = 0xB00000

class E:
    def __init__(self): self.l = []
    def __call__(self, s): self.l.append("    " + s)
    def lab(self, s): self.l.append(s + ":")
    def c(self, s): self.l.append("    ; " + s)
    def text(self): return "\n".join(self.l) + "\n"

import os
PROF = int(os.environ.get("PROF", "0"))
WS_P = 0xE00000
def stamp(e, idx, vr):
    if not PROF: return
    e("s_memrealtime s[100:101]")
    e("s_waitcnt lgkmcnt(0)")
    e(f"v_writelane_b32 v{vr}, s100, {idx}")
def stamp_store(e, vr, kidx, ws_lo):
    if not PROF: return
    e("s_getreg_b32 s100, hwreg(HW_REG_HW_ID)")
    e("s_getreg_b32 s101, hwreg(HW_REG_XCC_ID)")
    e(f"v_writelane_b32 v{vr}, s100, 14")
    e(f"v_writelane_b32 v{vr}, s101, 15")
    e(f"s_add_u32 s96, s{ws_lo}, {WS_P + kidx*0x40000:#x}")
    e(f"s_addc_u32 s97, s{ws_lo+1}, 0")
    e("s_mov_b32 s98, 0x40000")
    e("s_mov_b32 s99, 0x00020000")
    e("s_lshl_b32 s100, s2, 8")
    e("s_lshl_b32 s101, s20, 6")
    e("s_add_u32 s100, s100, s101")
    e("v_and_b32 v1, 15, v0")
    e("v_lshlrev_b32 v1, 2, v1")
    e("s_mov_b64 exec, 0xffff")
    e(f"buffer_store_dword v{vr}, v1, s[96:99], s100 offen")
    e("s_mov_b64 exec, -1")

def srd(e, sd, sp, size, off=0):
    if off:
        e(f"s_add_u32 s{sd}, s{sp}, {off:#x}")
        e(f"s_addc_u32 s{sd+1}, s{sp+1}, 0")
    else:
        e(f"s_mov_b32 s{sd}, s{sp}")
        e(f"s_mov_b32 s{sd+1}, s{sp+1}")
    e(f"s_mov_b32 s{sd+2}, {size:#x}")
    e(f"s_mov_b32 s{sd+3}, 0x00020000")

PB = 128
def prep_setup(e):
    P = PB
    e("s_lshr_b32 s60, s2, 3")
    e("s_and_b32 s61, s2, 7")
    srd(e, 64, 6, 2048*1024)
    srd(e, 68, 8, 2048*1024)
    srd(e, 72, 10, 512*8)
    srd(e, 76, 18, 512*4096, WS_U)
    srd(e, 80, 4, 2048*1024)
    srd(e, 84, 16, 1024)
    srd(e, 88, 18, 8192, WS_G)
    e(f"v_and_b32 v{P+1}, 31, v0")
    e(f"v_lshrrev_b32 v{P+2}, 5, v0")
    e("s_lshl_b32 s62, s20, 1")
    e(f"v_add_u32 v{P+2}, s62, v{P+2}")
    e("s_lshl_b32 s62, s60, 6")
    e(f"v_lshl_add_u32 v{P+3}, v{P+2}, 3, s62")
    e(f"v_lshlrev_b32 v{P+4}, 10, v{P+3}")
    e("s_lshl_b32 s63, s61, 7")
    e(f"v_lshl_add_u32 v{P+5}, v{P+1}, 2, s63")
    e(f"v_add_u32 v{P+4}, v{P+4}, v{P+5}")
    for i in range(11):
        e(f"v_add_u32 v{P+6}, {(i-3)*1024 & 0xffffffff:#x}, v{P+4}")
        e(f"buffer_load_dword v{P+16+i}, v{P+6}, s[64:67], 0 offen")
    for i in range(8):
        if i < 4:
            e(f"buffer_load_dword v{P+32+i}, v{P+4}, s[68:71], 0 offen offset:{i*1024}")
        else:
            if i == 4: e(f"v_add_u32 v{P+6}, 4096, v{P+4}")
            e(f"buffer_load_dword v{P+32+i}, v{P+6}, s[68:71], 0 offen offset:{(i-4)*1024}")
    e(f"v_lshlrev_b32 v{P+6}, 2, v{P+5}")
    e(f"buffer_load_dwordx4 v[{P+40}:{P+43}], v{P+6}, s[72:75], 0 offen")
    e("s_lshl_b32 s92, s2, 3")
    e("s_lshl_b32 s93, s20, 1")
    e("s_add_u32 s92, s92, s93")
    e("s_lshl_b32 s93, s92, 10")
    e(f"v_lshlrev_b32 v{P+7}, 4, v0")
    e(f"buffer_load_dwordx4 v[{P+44}:{P+47}], v{P+7}, s[80:83], s93 offen")
    e(f"buffer_load_dwordx4 v[{P+48}:{P+51}], v{P+7}, s[80:83], s93 offen offset:1024")
    e(f"buffer_load_dwordx4 v[{P+52}:{P+55}], v{P+7}, s[84:87], 0 offen")
    e("s_mov_b32 s94, 0xffff0000")
    e("s_mov_b32 s95, 0x05040100")
    e("s_mov_b32 s96, 0x07060302")
    e(f"v_lshlrev_b32 v{P+8}, 1, v{P+1}")
    e("s_lshl_b32 s93, s61, 6")
    e(f"v_add_u32 v{P+8}, s93, v{P+8}")
    e(f"v_lshlrev_b32 v{P+8}, 12, v{P+8}")
    e(f"v_sub_u32 v{P+9}, 2040, v{P+3}")
    e(f"v_lshl_add_u32 v{P+8}, v{P+9}, 1, v{P+8}")
    e(f"v_add_u32 v{P+9}, 4096, v{P+8}")
NPREP_LOADS = 11 + 8 + 1 + 3

def prep_compute():
    P = PB
    L = []
    e = L.append
    for j in range(4):
        for ch in range(2):
            src = P + 40 + 2*ch + (j >> 1)
            if j & 1: e(f"v_and_b32 v{P+56+2*j+ch}, s94, v{src}")
            else:     e(f"v_lshlrev_b32 v{P+56+2*j+ch}, 16, v{src}")
    for i in range(11):
        e(f"v_lshlrev_b32 v{P+64+2*i}, 16, v{P+16+i}")
        e(f"v_and_b32 v{P+65+2*i}, s94, v{P+16+i}")
    def rb(dst, src, tmp):
        e(f"v_cvt_pk_bf16_f32 v{tmp}, v{src}, v{src+1}")
        e(f"v_lshlrev_b32 v{dst}, 16, v{tmp}")
        e(f"v_and_b32 v{dst+1}, s94, v{tmp}")
    for r in range(8):
        S, Q, T = P+88, P+90, P+92
        e(f"v_pk_mul_f32 v[{S}:{S+1}], v[{P+64+2*r}:{P+65+2*r}], v[{P+62}:{P+63}]")
        rb(S, S, T)
        for j in (2, 1, 0):
            e(f"v_pk_mul_f32 v[{Q}:{Q+1}], v[{P+64+2*(r+3-j)}:{P+65+2*(r+3-j)}], v[{P+56+2*j}:{P+57+2*j}]")
            rb(Q, Q, T)
            e(f"v_pk_add_f32 v[{S}:{S+1}], v[{S}:{S+1}], v[{Q}:{Q+1}]")
            rb(S, S, T)
        e(f"v_lshlrev_b32 v{Q}, 16, v{P+32+r}")
        e(f"v_and_b32 v{Q+1}, s94, v{P+32+r}")
        e(f"v_pk_mul_f32 v[{S}:{S+1}], v[{S}:{S+1}], v[{Q}:{Q+1}]")
        e(f"v_cvt_pk_bf16_f32 v{P+96+r}, v{S}, v{S+1}")
    for m in range(4):
        e(f"v_perm_b32 v{P+104+m}, v{P+96+6-2*m}, v{P+96+7-2*m}, s95")
        e(f"v_perm_b32 v{P+108+m}, v{P+96+6-2*m}, v{P+96+7-2*m}, s96")
    e(f"buffer_store_dwordx4 v[{P+104}:{P+107}], v{P+8}, s[76:79], 0 offen sc1")
    e(f"buffer_store_dwordx4 v[{P+108}:{P+111}], v{P+9}, s[76:79], 0 offen sc1")
    return L

def prep_gate(e):
    P = PB
    def rb(dst, src, tmp):
        e(f"v_cvt_pk_bf16_f32 v{tmp}, v{src}, v{src+1}")
        e(f"v_lshlrev_b32 v{dst}, 16, v{tmp}")
        e(f"v_and_b32 v{dst+1}, s94, v{tmp}")
    G = P + 112
    A = P + 120
    X = P + 122; T = P + 124
    for i in range(4):
        e(f"v_lshlrev_b32 v{G+2*i}, 16, v{P+52+i}")
        e(f"v_and_b32 v{G+1+2*i}, s94, v{P+52+i}")
    for row in range(2):
        q = P + 44 + 4*row
        for i in range(4):
            e(f"v_lshlrev_b32 v{X}, 16, v{q+i}")
            e(f"v_and_b32 v{X+1}, s94, v{q+i}")
            e(f"v_pk_mul_f32 v[{X}:{X+1}], v[{X}:{X+1}], v[{G+2*i}:{G+1+2*i}]")
            rb(X, X, T)
            if i == 0: e(f"v_add_f32 v{A+row}, v{X}, v{X+1}")
            else:
                e(f"v_add_f32 v{A+row}, v{A+row}, v{X}")
                e(f"v_add_f32 v{A+row}, v{A+row}, v{X+1}")
    for sh in ("row_shr:1", "row_shr:2", "row_shr:4", "row_shr:8"):
        e("s_nop 1")
        for row in range(2):
            e(f"v_add_f32_dpp v{A+row}, v{A+row}, v{A+row} {sh} bound_ctrl:0")
    e("s_nop 1")
    for row in range(2):
        e(f"v_add_f32_dpp v{A+row}, v{A+row}, v{A+row} row_bcast:15 row_mask:0xa")
    e("s_nop 1")
    for row in range(2):
        e(f"v_add_f32_dpp v{A+row}, v{A+row}, v{A+row} row_bcast:31 row_mask:0xc")
    e("s_nop 1")
    e(f"v_readlane_b32 s98, v{A}, 63")
    e(f"v_readlane_b32 s99, v{A+1}, 63")
    e("s_nop 3")
    e(f"v_mov_b32 v{A}, s98")
    e(f"v_mov_b32 v{A+1}, s99")
    rb(A, A, T)
    e(f"v_mul_f32 v{A}, 0xbfb8aa3b, v{A}")
    e(f"v_mul_f32 v{A+1}, 0xbfb8aa3b, v{A+1}")
    e(f"v_exp_f32 v{A}, v{A}")
    e(f"v_exp_f32 v{A+1}, v{A+1}")
    e("s_nop 0")
    e(f"v_add_f32 v{A}, 1.0, v{A}")
    e(f"v_add_f32 v{A+1}, 1.0, v{A+1}")
    e(f"v_rcp_f32 v{A}, v{A}")
    e(f"v_rcp_f32 v{A+1}, v{A+1}")
    e("s_nop 0")
    rb(A, A, T)
    e("s_lshl_b32 s93, s92, 2")
    e(f"v_mov_b32 v{X}, s93")
    e("v_cmp_eq_u32 vcc, 0, v0")
    e("s_and_saveexec_b64 s[98:99], vcc")
    e(f"buffer_store_dwordx2 v[{A}:{A+1}], v{X}, s[88:91], 0 offen sc1")
    e("s_mov_b64 exec, s[98:99]")

class VM:
    def __init__(s): s.q = []
    def issue(s, tag): s.q.append(tag)
    def need(s, tags):
        idx = max([i for i, t in enumerate(s.q) if t in tags] + [-1])
        return len(s.q) - 1 - idx
    def clear(s): s.q = []

CNT_H, CNT_U, CNT_Z = 0, 32, 48
SWAP = int(os.environ.get('SWAP','0'))
PRIOA = int(os.environ.get('PRIOA','2'))
PRIOB = int(os.environ.get('PRIOB','0'))
PF = int(os.environ.get('PF','1'))
G1ONLY = int(os.environ.get('G1ONLY','0'))
NOTR = int(os.environ.get('NOTR','0'))
NOMF = int(os.environ.get('NOMF','0'))
NOLDS = int(os.environ.get('NOLDS','0'))
NOBAR = int(os.environ.get('NOBAR','0'))
ROT = int(os.environ.get('ROT','1'))
NOVM = int(os.environ.get('NOVM','0'))
NODMA = int(os.environ.get('NODMA','0'))
REP2 = int(os.environ.get('REP2','0'))
G2W = int(os.environ.get('G2W','6'))
EARLYW = int(os.environ.get('EARLYW','1'))
PP = int(os.environ.get('PP','0'))
KLATE = int(os.environ.get('KLATE','0'))
ZE = int(os.environ.get('ZE','1'))
FST = int(os.environ.get('FST','0'))
NQ = int(os.environ.get('NQ','3'))
PST = int(os.environ.get('PST','0'))
UPF = int(os.environ.get('UPF','99'))
UT = int(os.environ.get('UT','1'))
KD = int(os.environ.get('KD','0'))
DBG = int(os.environ.get('DBG','-1'))
PW = int(os.environ.get('PW','1'))
PFD = int(os.environ.get('PFD','0'))
PFSL = int(os.environ.get('PFSL','1'))
MAP2 = int(os.environ.get('MAP2','0'))
BSTOP = int(os.environ.get('BSTOP','0'))
PSL = int(os.environ.get('PSL','8'))
SLEEP0 = int(os.environ.get('SLEEP0','1'))
WS_F = 0xF00000
F_H, F_U, F_Z = 0, 0x8000, 0x10000
SV = 15

def get_nonce(e, lab, dbg, vr, st):
    e.lab(lab)
    e(f"v_mov_b32 v{vr+1}, 0")
    e(f"buffer_load_dwordx2 v[{vr}:{vr+1}], v{vr+1}, s[{dbg}:{dbg+3}], 0 offen sc1")
    e("s_waitcnt vmcnt(0)")
    e(f"v_readfirstlane_b32 s{st}, v{vr}")
    e(f"s_cmp_lg_u32 s{st}, 0")
    e(f"s_cbranch_scc1 {lab}_OK")
    e("s_sleep 4")
    e(f"s_branch {lab}")
    e.lab(lab + "_OK")

def gen_typeA(e):
    e("s_load_dwordx2 s[4:5], s[0:1], 0")
    e("s_load_dwordx2 s[14:15], s[0:1], 56")
    e("s_load_dwordx2 s[18:19], s[0:1], 96")
    e("s_load_dwordx4 s[64:67], s[0:1], 64")
    e("s_load_dwordx4 s[68:71], s[0:1], 80")
    if PRIOA: e(f"s_setprio {PRIOA}")
    e("s_and_b32 s21, s2, 7")
    e("s_lshr_b32 s22, s2, 3")
    if MAP2:
        e("s_mul_i32 s23, s22, 37")
        e("s_lshr_b32 s23, s23, 8")
        e("s_lshr_b32 s25, s21, 1")
        e("s_lshl_b32 s25, s25, 2")
        e("s_add_u32 s25, s25, s23")
        e("s_mul_i32 s23, s23, 7")
        e("s_sub_u32 s26, s22, s23")
        e("s_and_b32 s23, s21, 1")
        e("s_mul_i32 s23, s23, 7")
        e("s_add_u32 s26, s26, s23")
    else:
        e("s_cmp_ge_u32 s22, 14")
        e("s_cselect_b32 s23, 1, 0")
        e("s_lshl_b32 s25, s21, 1")
        e("s_add_u32 s25, s25, s23")
        e("s_mul_i32 s23, s23, 14")
        e("s_sub_u32 s26, s22, s23")
    e("s_lshl_b32 s48, s21, 2")
    e("s_lshr_b32 s49, s22, 3")
    e("s_add_u32 s48, s48, s49")
    e("s_and_b32 s49, s22, 7")
    S = 5
    e("s_mul_i32 s56, s20, %d" % (S*4096))
    e("s_lshl_b32 s57, s48, 1")
    e("s_mul_i32 s57, s57, 112")
    e("s_mul_i32 s58, s20, 28")
    e("s_add_u32 s57, s57, s58")
    e("s_lshl_b32 s57, s57, 10")
    e("s_add_u32 s58, s57, %d" % (112*1024))
    e("s_waitcnt lgkmcnt(0)")
    stamp(e, 0, SV)
    if PST and PROF: e(f"v_writelane_b32 v{SV}, s38, 12")
    srd(e, 28, 4, 2048*1024)
    srd(e, 32, 14, 512*3584)
    srd(e, 72, 64, 1792*1024)
    srd(e, 76, 18, WS_H_SIZE, WS_H)
    srd(e, 80, 18, 512*4096, WS_Z)
    srd(e, 84, 18, 8192, WS_G)
    srd(e, 88, 4, 2048*1024)
    srd(e, 92, 70, 256)
    srd(e, 96, 68, 2048*1024)
    srd(e, 52, 18, 0x18000, WS_F)
    e("v_mov_b32 v1, 0")
    e("s_or_b32 s46, s2, s20")
    e("s_cmp_lg_u32 s46, 0")
    e("s_cbranch_scc1 A_NOPUB")
    e("s_memrealtime s[46:47]")
    e("s_waitcnt lgkmcnt(0)")
    e("s_or_b32 s46, s46, 1")
    e("v_mov_b32 v2, s46")
    e("v_mov_b32 v3, s47")
    e("s_mov_b64 exec, 1")
    e("buffer_store_dwordx2 v[2:3], v1, s[92:95], 0 offen sc1")
    e("s_mov_b64 exec, -1")
    e.lab("A_NOPUB")
    e("v_mov_b32 v1, 0")
    e("buffer_load_dwordx2 v[22:23], v1, s[92:95], 0 offen sc1")
    if PF & 1:
        e("s_lshr_b32 s46, s2, 3")
        e("s_lshl_b32 s46, s46, 2")
        e("s_add_u32 s46, s46, s20")
        e("s_lshl_b32 s46, s46, 13")
        e("v_lshlrev_b32 v1, 7, v0")
        e("buffer_load_dword v24, v1, s[32:35], s46 offen")
    if PF & 32:
        srd(e, 60, 18, 16 << 20)
        e("v_lshlrev_b32 v1, 20, v0")
        e("buffer_load_dword v24, v1, s[60:63], 0 offen")
        e("buffer_load_dword v24, v1, s[72:75], 0 offen")
        e("buffer_load_dword v24, v1, s[96:99], 0 offen")
    if PF & 4:
        e("s_lshr_b32 s46, s2, 3")
        e("s_cmp_ge_u32 s46, 8")
        e("s_cbranch_scc1 A_NOQPF")
        e("s_lshl_b32 s46, s46, 2")
        e("s_add_u32 s46, s46, s20")
        e("s_lshl_b32 s46, s46, 13")
        e("s_lshl_b32 s47, s21, 18")
        e("s_add_u32 s46, s46, s47")
        e("v_lshlrev_b32 v1, 7, v0")
        e("buffer_load_dword v24, v1, s[28:31], s46 offen")
        e.lab("A_NOQPF")
    e("s_cmp_ge_u32 s2, 224")
    if PF & 8:
        e("s_cbranch_scc0 A_G1")
        for _ in range(PFSL): e("s_sleep 64")
        e("s_sub_u32 s46, s2, 224")
        e("s_lshr_b32 s46, s46, 3")
        e("s_mul_i32 s46, s46, %d" % (3584*128))
        e("s_lshl_b32 s47, s20, 13")
        e("s_add_u32 s46, s46, s47")
        e("v_lshlrev_b32 v1, 7, v0")
        for it in range(14):
            e("buffer_load_dword v24, v1, s[72:75], s46 offen")
            if it < 13: e("s_add_u32 s46, s46, %d" % (256*128))
        e("s_branch A_PRE")
        e.lab("A_G1")
    else:
        e("s_cbranch_scc1 A_PRE_I" if PW else "s_cbranch_scc1 A_PRE")
    vm = VM()
    e("v_lshrrev_b32 v2, 3, v0")
    e("s_lshl_b32 s27, s25, 7")
    e("s_lshl_b32 s40, s20, 5")
    e("s_add_u32 s27, s27, s40")
    e("v_add_u32 v2, s27, v2")
    e("v_lshlrev_b32 v2, 10, v2")
    e("v_and_b32 v3, 7, v0")
    e("v_lshrrev_b32 v4, 4, v0")
    e("v_xor_b32 v3, v3, v4")
    e("v_lshl_add_u32 v2, v3, 4, v2")
    e("v_xor_b32 v3, 64, v2")
    e("s_lshl_b32 s40, s20, 3")
    e("v_add_u32 v5, s40, v4")
    e("s_movk_i32 s41, 3584")
    e("v_mul_lo_u32 v5, v5, s41")
    e("v_and_b32 v6, 15, v0")
    e("v_lshlrev_b32 v7, 2, v4")
    e("v_xor_b32 v6, v6, v7")
    e("v_lshl_add_u32 v5, v6, 4, v5")
    e("s_lshl_b32 s40, s26, 8")
    e("v_add_u32 v5, s40, v5")
    e("s_lshl_b32 s42, s20, 12")
    e("s_lshl_b32 s47, s20, 11")
    WB = NQ*16384
    WR = 128
    NWR = 12
    NW = 3 if NQ == 3 else 2
    def dq(c, j):
        def f():
            e(f"s_add_u32 m0, s42, {(c%NQ)*16384 + j*1024}")
            if ROT:
                e(f"s_add_u32 s43, s50, {c*128}")
                e(f"s_and_b32 s43, s43, 1023")
                e(f"s_add_u32 s43, s43, {j*8192}")
            else:
                e(f"s_mov_b32 s43, {j*8192 + c*128}")
            e(f"buffer_load_dwordx4 v{2 + (j&1)}, s[28:31], s43 offen lds")
            vm.issue(("Q", c))
        return f
    def lw1(hc, j):
        def f():
            r = WR + 8*(hc % NWR) + 4*j
            if ROT:
                e(f"s_add_u32 s43, s51, {hc}")
                e(f"s_and_b32 s43, s43, 15")
                e(f"s_mul_i32 s43, s43, {32*3584}")
                e(f"s_add_u32 s43, s43, {4*j*3584}")
            else:
                e(f"s_mov_b32 s43, {(32*hc + 4*j)*3584}")
            e(f"buffer_load_dwordx4 v[{r}:{r+3}], v5, s[32:35], s43 offen")
            vm.issue(("W", hc))
        return f
    def lw(hc):
        for j in range(2): lw1(hc, j)()
    e("s_and_b32 s51, s26, 7")
    e("s_lshl_b32 s50, s51, 7")
    e("s_lshl_b32 s51, s51, 1")
    if PST: stamp(e, 11, SV)
    if UPF >= 99:
        order = []
        for c in range(NQ): order += [("Q", c), ("W", 2*c), ("W", 2*c+1)]
        order += [("W", hc) for hc in range(2*NQ, NWR)]
    else:
        order = [("Q",0),("W",0),("W",1),("W",2),("W",3),("Q",1),("W",4),("W",5),("Q",2),("W",6),("W",7)]
        if NQ == 4: order += [("Q",3)]
        order += [("W", hc) for hc in range(8, NWR)]
    left = []
    for n, (t, i) in enumerate(order):
        fs = [dq(i, j) for j in range(4)] if t == "Q" else [lw1(i, j) for j in range(2)]
        if n < UPF:
            for f in fs: f()
        else: left += fs
    if PST: stamp(e, 13, SV)
    e("s_and_b32 s44, s20, 1")
    e("s_lshr_b32 s45, s20, 1")
    e("v_and_b32 v6, 31, v0")
    e("v_lshrrev_b32 v7, 5, v0")
    e("v_bfe_u32 v8, v0, 1, 3")
    e("v_xor_b32 v8, v8, v7")
    e("v_lshlrev_b32 v8, 4, v8")
    e("v_lshl_add_u32 v8, v6, 7, v8")
    e("s_lshl_b32 s46, s44, 13")
    e("v_add_u32 v8, s46, v8")
    for k in range(4):
        e(f"v_xor_b32 v{10+k}, {32*k}, v8")
    e("v_bfe_u32 v6, v0, 2, 2")
    e("v_lshrrev_b32 v7, 5, v0")
    e("v_lshl_add_u32 v7, v7, 3, v6")
    e("v_lshlrev_b32 v7, 8, v7")
    e("v_bfe_u32 v9, v0, 4, 1")
    e("v_lshl_add_u32 v7, v9, 5, v7")
    e("v_and_b32 v9, 3, v0")
    e("v_lshl_add_u32 v7, v9, 3, v7")
    e(f"v_add_u32 v7, {WB}, v7")
    e("s_lshl_b32 s46, s45, 1")
    e("v_xor_b32 v9, s46, v6")
    e("v_lshl_add_u32 v18, v9, 6, v7")
    e("v_xor_b32 v19, 64, v18")
    e("v_lshlrev_b32 v20, 4, v0")
    e("v_add_u32 v20, s47, v20")
    e(f"v_add_u32 v20, {WB}, v20")
    ACC = 64
    for i in range(64):
        e(f"v_mov_b32 v{ACC+i}, 0")
    FR = [32, 48, 224]
    lg = VM()
    def ww_l(hc):
        L = []
        for j in range(2):
            def f(j=j):
                r = WR + 8*(hc % NWR) + 4*j
                e(f"ds_write_b128 v20, v[{r}:{r+3}] offset:{(hc%NW)*8192 + j*1024}")
                lg.issue(("w", hc))
            L.append(f)
        return L
    def ww(hc):
        for f in ww_l(hc): f()
    def rf_l(step):
        if NOLDS: return []
        c, k, hc, kk = step >> 2, step & 3, step >> 1, step & 1
        b = FR[step % 3]
        LQ = []; LW = []
        for tj in range(2):
            def f(tj=tj):
                e(f"ds_read_b128 v[{b+8+4*tj}:{b+11+4*tj}], v{10+k} offset:{(c%NQ)*16384 + tj*4096}")
                lg.issue(("r", step))
            LQ.append(f)
        for fi in range(2):
            for h in range(2):
                def f(fi=fi, h=h):
                    e(f"ds_read_b64_tr_b16 v[{b+4*fi+2*h}:{b+4*fi+2*h+1}], v{18+fi} offset:{(hc%NW)*8192 + kk*4096 + h*1024}")
                    lg.issue(("rw", step))
                LW.append(f)
        return (LQ + LW) if NW == 3 else (LW + LQ)
    def read_frags(step):
        for f in rf_l(step): f()
    pend = list(left)
    def mfmas(step, ldsops):
        b = FR[step % 3]
        n = 0
        per = (len(ldsops) + 3) // 4
        for fi in range(2):
            for tj in range(2):
                d = ACC + 16*(2*fi+tj)
                if not NOMF: e(f"v_mfma_f32_32x32x16_bf16 v[{d}:{d+15}], v[{b+4*fi}:{b+4*fi+3}], v[{b+8+4*tj}:{b+8+4*tj+3}], v[{d}:{d+15}]")
                for _ in range(per):
                    if ldsops: ldsops.pop(0)()
                if pend:
                    f = pend.pop(0)
                    if not NODMA: f()
    stamp(e, 1, SV)
    e(f"s_waitcnt vmcnt({vm.need([('Q',0),('W',0),('W',1)])})")
    ww(0); ww(1)
    e("s_waitcnt lgkmcnt(0)")
    lg.clear()
    if REP2:
        e("s_mov_b32 s46, 0")
        e.lab("A_REP")
    stamp(e, 2, SV)
    if G1ONLY:
        e("s_memtime s[100:101]"); e("s_waitcnt lgkmcnt(0)"); e(f"v_writelane_b32 v{SV}, s100, 10")
    e("s_barrier")
    read_frags(0); read_frags(1)
    NS = 32
    for step in range(NS):
        hc, c = step >> 1, step >> 2
        e(f"s_waitcnt lgkmcnt({lg.need([('r', step), ('rw', step)] + ([('rw', step+1)] if (NW == 2 and step & 1 == 0) else []))})")
        ops = []
        if step & 1 == 0:
            tags = []
            if hc >= 1:
                if hc & 1 and (hc+1) >> 1 < 8: tags.append(("Q", (hc+1) >> 1))
            if hc + 2 < 16: tags.append(("W", hc+2))
            if hc == 0: tags.append(("Q", 0))
            for t in tags: assert vm.q.count(t) == (4 if t[0] == "Q" else 2), (t, step)
            if tags and not NOVM: e(f"s_waitcnt vmcnt({min(63, vm.need(tags))})")
            if hc >= 1 or NW == 2:
                if not NOBAR: e("s_barrier")
                if hc in (4, 8, 12):
                    stamp(e, 2 + hc//4, SV); lg.clear()
            if hc + 2 < 16: ops += ww_l(hc + 2)
            if hc + NWR - 0 < 16 and hc >= 0:
                for j in range(2): pend.append(lw1(hc + NWR, j))
            if hc >= 2 and hc & 1 == 0 and (hc - 2)//2 + NQ < 8:
                for j in range(4): pend.append(dq((hc-2)//2 + NQ, j))
        if step + 2 < NS: ops = ops + rf_l(step + 2)
        mfmas(step, ops)
    e("s_barrier")
    assert not pend
    stamp(e, 6, SV)
    if G1ONLY:
        e("s_memtime s[100:101]"); e("s_waitcnt lgkmcnt(0)"); e(f"v_writelane_b32 v{SV}, s100, 11")
    if REP2:
        e("s_add_u32 s46, s46, 1")
        e("s_cmp_lt_u32 s46, 2")
        e("s_cbranch_scc1 A_REP")
    def issue(ci):
        sl = ci % S
        for jj in range(4):
            e(f"s_add_u32 m0, s56, {sl*4096 + jj*1024}")
            e(f"s_mov_b32 s59, {(32*ci + 8*jj)*1024}")
            e(f"buffer_load_dwordx4 v208, s[72:75], s59 offen lds")
            vm.issue(("w2", ci))
    def pre_issue():
        e("v_lshrrev_b32 v2, 3, v0")
        e("s_mul_i32 s46, s20, 448")
        e("v_add_u32 v2, s46, v2")
        e("v_lshlrev_b32 v2, 10, v2")
        e("v_and_b32 v3, 7, v0")
        e("v_bfe_u32 v4, v0, 4, 1")
        e("v_lshlrev_b32 v4, 2, v4")
        e("v_xor_b32 v3, v3, v4")
        e("v_lshl_add_u32 v2, v3, 4, v2")
        e("s_lshl_b32 s46, s49, 7")
        e("v_add_u32 v208, s46, v2")
        e("v_lshlrev_b32 v209, 4, v0")
        for ci in range(S): issue(ci)
    if EARLYW: pre_issue()
    e("v_lshlrev_b32 v209, 4, v0")
    e("s_lshl_b32 s46, s25, 2")
    e("s_lshl_b32 s47, s44, 1")
    e("s_add_u32 s46, s46, s47")
    e("s_mul_i32 s46, s46, 112")
    e("s_lshl_b32 s47, s26, 3")
    e("s_add_u32 s46, s46, s47")
    e("s_lshl_b32 s47, s45, 2")
    e("s_add_u32 s46, s46, s47")
    e("s_lshl_b32 s46, s46, 10")
    e("v_add_u32 v2, s46, v209")
    e("v_add_u32 v3, 112*1024, v2")
    for fi in range(2):
        for tj in range(2):
            d = ACC + 16*(2*fi+tj)
            for kq in range(2):
                p = 32 + 4*((2*tj+kq) & 3)
                for x in range(4):
                    i0 = d + 8*kq + 2*x
                    e(f"v_max_f32 v{i0}, 0, v{i0}")
                    e(f"v_max_f32 v{i0+1}, 0, v{i0+1}")
                for x in range(4):
                    i0 = d + 8*kq + 2*x
                    e(f"v_cvt_pk_bf16_f32 v{p+x}, v{i0}, v{i0+1}")
                e("s_nop 1")
                e(f"v_permlane32_swap_b32 v{p}, v{p+2}")
                e(f"v_permlane32_swap_b32 v{p+1}, v{p+3}")
                e(f"buffer_store_dwordx4 v[{p}:{p+3}], v{2+tj}, s[76:79], 0 offen offset:{(2*fi+kq)*1024} sc1")
    stamp(e, 7, SV)
    e("s_waitcnt vmcnt(0)")
    e("s_barrier")
    stamp(e, 8, SV)
    e("s_cmp_lg_u32 s20, 0")
    e("s_cbranch_scc1 A_PRE")
    e("v_mov_b32 v220, v22")
    e("v_mov_b32 v221, v23")
    e("v_readfirstlane_b32 s46, v22")
    e("s_cmp_lg_u32 s46, 0")
    e("s_cbranch_scc1 A_N1_OK")
    get_nonce(e, "A_N1", 92, 220, 46)
    e("s_lshl_b32 s46, s25, 4")
    e("s_add_u32 s46, s46, s26")
    e("s_lshl_b32 s46, s46, 7")
    e("v_mov_b32 v1, s46")
    e("s_mov_b64 exec, 1")
    e(f"buffer_store_dwordx2 v[220:221], v1, s[52:55], 0 offen offset:{F_H} sc1")
    e("s_mov_b64 exec, -1")
    if EARLYW: e("s_branch A_PRE2")
    if PW:
        e("s_branch A_PRE")
        e.lab("A_PRE_I")
        e("s_waitcnt vmcnt(0)")
    e.lab("A_PRE")
    pre_issue()
    e.lab("A_PRE2")
    if PW:
        e("s_cmp_eq_u32 s20, 0")
        e("s_cselect_b32 s47, s2, 255")
        e("s_cmp_lt_u32 s47, 224")
        e("s_cbranch_scc1 A_N3_OK")
        e("v_mov_b32 v220, v22")
        e("v_mov_b32 v221, v23")
        e("v_readfirstlane_b32 s46, v22")
        e("s_cmp_lg_u32 s46, 0")
        e("s_cbranch_scc1 A_N3_OK")
        get_nonce(e, "A_N3", 92, 220, 46)
    e.lab("A_POLL")
    if G1ONLY:
        stamp_store(e, SV, 0, 18)
        e("s_endpgm")
    HB = 128
    BLK = [16, 32, 48, 128, 144, 160, 176, 192, 224, 240]
    def issue_h(ci):
        sl = ci % S
        e(f"s_add_u32 s59, s57, {ci*2048}")
        e(f"s_add_u32 s60, s58, {ci*2048}")
        for kl in range(2):
            for tj in range(2):
                r = HB + 16*sl + 8*kl + 4*tj
                e(f"buffer_load_dwordx4 v[{r}:{r+3}], v209, s[76:79], s{59+tj} offen offset:{kl*1024}")
                vm.issue(("h", ci))
    e("v_bfe_u32 v6, v0, 2, 2")
    e("v_lshrrev_b32 v7, 5, v0")
    e("v_lshl_add_u32 v7, v7, 3, v6")
    e("v_lshlrev_b32 v7, 7, v7")
    e("v_bfe_u32 v9, v0, 4, 1")
    e("v_lshl_add_u32 v7, v9, 5, v7")
    e("v_and_b32 v9, 3, v0")
    e("v_lshl_add_u32 v7, v9, 3, v7")
    e("v_lshrrev_b32 v9, 1, v6")
    e("v_lshl_add_u32 v8, v9, 6, v7")
    e("v_add_u32 v8, s56, v8")
    e("v_xor_b32 v9, 64, v8")
    e("v_and_b32 v10, 15, v0")
    e("v_lshrrev_b32 v11, 4, v0")
    e("s_lshl_b32 s59, s48, 6")
    e("s_lshl_b32 s60, s20, 4")
    e("s_add_u32 s59, s59, s60")
    e("v_add_u32 v12, s59, v10")
    e("v_lshlrev_b32 v13, 10, v12")
    e("v_lshl_add_u32 v13, v11, 4, v13")
    e("s_lshl_b32 s60, s49, 7")
    e("v_add_u32 v13, s60, v13")
    e("buffer_load_dwordx4 v[212:215], v13, s[88:91], 0 offen"); vm.issue(("q", 0))
    e("buffer_load_dwordx4 v[216:219], v13, s[88:91], 0 offen offset:64"); vm.issue(("q", 1))
    e("v_lshlrev_b32 v14, 2, v12")
    ACC = 64
    def treads(ci, b):
        sl = ci % S
        L = []
        for kl in range(2):
            for di in range(2):
                for h in range(2):
                    r = b + 8*kl + 4*di + 2*h
                    L.append(f"ds_read_b64_tr_b16 v[{r}:{r+1}], v{8+di} offset:{sl*4096 + kl*2048 + h*512}")
        return L
    for ci in range(G2W):
        e(f"s_waitcnt vmcnt({vm.need([('w2', ci)])})")
        for x in treads(ci, BLK[ci]): e(x)
        e("s_waitcnt lgkmcnt(0)")
        issue(ci + S)
    e("s_lshr_b32 s60, s48, 1")
    e("s_lshl_b32 s60, s60, 4")
    if PW:
        e("s_mul_i32 s61, s20, 7")
        e("s_lshr_b32 s61, s61, 1")
        e("s_add_u32 s60, s60, s61")
        e("v_min_u32 v6, 3, v0")
        e("v_add_u32 v6, s60, v6")
        e("v_lshlrev_b32 v6, 7, v6")
    else:
        e("v_min_u32 v6, 13, v0")
        e("v_add_u32 v6, s60, v6")
        e("v_lshlrev_b32 v6, 7, v6")
        e("s_cmp_lg_u32 s20, 0")
        e("s_cbranch_scc1 A_HG")
        e("s_cmp_lt_u32 s2, 224")
        e("s_cbranch_scc1 A_HP")
        for _ in range(SLEEP0): e("s_sleep 64")
        get_nonce(e, "A_N2", 92, 220, 46)
    e.lab("A_HP")
    if PP:
        R = [222, 210, 2, 4]
        for k in range(3):
            e(f"buffer_load_dwordx2 v[{R[k]}:{R[k]+1}], v6, s[52:55], 0 offen offset:{F_H} sc1")
            e(f"s_sleep {PP}")
        e.lab("A_HPL")
        for k in range(4):
            n = R[(k + 3) % 4]; o = R[k]
            e(f"buffer_load_dwordx2 v[{n}:{n+1}], v6, s[52:55], 0 offen offset:{F_H} sc1")
            e("s_waitcnt vmcnt(3)")
            e(f"v_cmp_ne_u32 vcc, v{o}, v220")
            e(f"v_cmp_ne_u32 s[60:61], v{o+1}, v221")
            e("s_nop 1")
            e("s_or_b64 vcc, vcc, s[60:61]")
            e("s_cmp_eq_u64 vcc, 0")
            e("s_cbranch_scc1 A_HG2")
            e(f"s_sleep {PP}")
        e("s_branch A_HPL")
    else:
        e(f"buffer_load_dwordx2 v[222:223], v6, s[52:55], 0 offen offset:{F_H} sc1")
        e("s_waitcnt vmcnt(0)")
        e("v_cmp_ne_u32 vcc, v222, v220")
        e("v_cmp_ne_u32 s[60:61], v223, v221")
        e("s_nop 1")
        e("s_or_b64 vcc, vcc, s[60:61]")
        e("s_cmp_eq_u64 vcc, 0")
        e("s_cbranch_scc1 A_HG")
        e(f"s_sleep {PSL}")
        e("s_branch A_HP")
    e.lab("A_HG")
    e("s_waitcnt vmcnt(0)")
    e.lab("A_HG2")
    vm.clear()
    if not PW:
        e("s_barrier")
        e("v_mov_b32 v1, 0")
        e("buffer_load_dwordx2 v[220:221], v1, s[92:95], 0 offen sc1")
        vm.issue(("nonce", 0))
    def issue_hb_l(ci, b):
        L = []
        for kl in range(2):
            for tj in range(2):
                def f(kl=kl, tj=tj):
                    r = b + 8*kl + 4*tj
                    e(f"s_add_u32 s60, s{57+tj}, {ci*2048}")
                    e(f"buffer_load_dwordx4 v[{r}:{r+3}], v209, s[76:79], s60 offen offset:{kl*1024}")
                    vm.issue(("h", ci))
                L.append(f)
        return L
    if G2W:
        Wb = {c: BLK[c] for c in range(G2W)}
        Hb = {}
        free = BLK[G2W:]
        nh = 0
        while free:
            Hb[nh] = free.pop(0)
            for f in issue_hb_l(nh, Hb[nh]): f()
            nh += 1
    else:
        for ci in range(S): issue_h(ci)
    stamp(e, 9, SV)
    for i in range(64): e(f"v_mov_b32 v{ACC+i}, 0")
    e("s_lshl_b32 s60, s49, 5")
    e("v_add_u32 v6, s60, v0")
    e("v_lshlrev_b32 v6, 7, v6")
    e(f"v_add_u32 v6, {F_Z}, v6")
    e("v_and_b32 v7, 7, v0")
    e("s_lshl_b32 s60, s48, 3")
    e("v_add_u32 v7, s60, v7")
    e("v_lshlrev_b32 v7, 7, v7")
    e(f"v_add_u32 v7, {F_U}, v7")
    e("v_cmp_gt_u32 vcc, 32, v0")
    e("v_cndmask_b32 v6, v7, v6, vcc")
    e("s_lshl_b32 s60, s49, 6")
    e("v_lshl_add_u32 v7, v11, 3, s60")
    e("v_lshlrev_b32 v7, 12, v7")
    e("v_lshl_add_u32 v7, v12, 1, v7")
    ZB, GV = 32, 210
    def zloads_l(track):
        L = []
        for p in range(2):
            for i in range(8):
                def f(p=p, i=i):
                    e(f"s_mov_b32 s60, {(32*p + i)*4096}")
                    e(f"buffer_load_ushort v{ZB+8*p+i}, v7, s[80:83], s60 offen sc1")
                    if track: vm.issue(("z", 0))
                L.append(f)
        def f():
            e(f"buffer_load_dword v{GV}, v14, s[84:87], 0 offen sc1")
            if track: vm.issue(("z", 0))
        L.append(f)
        return L
    ZS = 8
    FR = [16, 32]
    def reads_l(ci):
        b = FR[ci & 1]; sl = ci % S
        L = []
        for kl in range(2):
            for di in range(2):
                for h in range(2):
                    r = b + 8*kl + 4*di + 2*h
                    L.append(f"ds_read_b64_tr_b16 v[{r}:{r+1}], v{8+di} offset:{sl*4096 + kl*2048 + h*512}")
        return L
    def issue_l(ci):
        L = []
        sl = ci % S
        for jj in range(4):
            def f(jj=jj):
                e(f"s_add_u32 m0, s56, {sl*4096 + jj*1024}")
                e(f"s_mov_b32 s59, {(32*ci + 8*jj)*1024}")
                e(f"buffer_load_dwordx4 v208, s[72:75], s59 offen lds")
                vm.issue(("w2", ci))
            L.append(f)
        return L
    def issue_h_l(ci):
        L = []
        sl = ci % S
        for kl in range(2):
            for tj in range(2):
                def f(kl=kl, tj=tj):
                    r = HB + 16*sl + 8*kl + 4*tj
                    e(f"s_add_u32 s60, s{57+tj}, {ci*2048}")
                    e(f"buffer_load_dwordx4 v[{r}:{r+3}], v209, s[76:79], s60 offen offset:{kl*1024}")
                    vm.issue(("h", ci))
                L.append(f)
        return L
    NCH = 14
    if G2W:
        for ci in range(NCH):
            tags = [("h", ci)] + ([("w2", ci+1)] if (ci + 1 < NCH and ci + 1 >= G2W + S) else [])
            if ZE and ci == ZS + 2: tags.append(("zf", 0))
            e(f"s_waitcnt vmcnt({vm.need(tags)}) lgkmcnt(0)")
            rl = []; dl = []
            if ZE and ci == ZS + 2:
                e("v_cmp_ne_u32 vcc, v222, v220")
                e("v_cmp_ne_u32 s[60:61], v223, v221")
                e("s_nop 1")
                e("s_or_b64 s[62:63], vcc, s[60:61]")
                dl += zloads_l(True)
            if ci + 1 < NCH and ci + 1 >= G2W:
                Wb[ci+1] = free.pop(0)
                rl = treads(ci + 1, Wb[ci+1])
            while free and nh < NCH:
                Hb[nh] = free.pop(0)
                dl += issue_hb_l(nh, Hb[nh]); nh += 1
            if ci >= G2W and ci + S < NCH: dl += issue_l(ci + S)
            if ci == (ZS if ZE else 10):
                e("buffer_load_dwordx2 v[222:223], v6, s[52:55], 0 offen sc1"); vm.issue(("zf",0))
            per = max(2, (len(dl) + 7) // 8)
            for kl in range(2):
                for di in range(2):
                    for tj in range(2):
                        d = ACC + 16*(2*di+tj)
                        a = Wb[ci] + 8*kl + 4*di
                        hr = Hb[ci] + 8*kl + 4*tj
                        e(f"v_mfma_f32_32x32x16_bf16 v[{d}:{d+15}], v[{a}:{a+3}], v[{hr}:{hr+3}], v[{d}:{d+15}]")
                        for _ in range(2):
                            if rl: e(rl.pop(0))
                        for _ in range(per):
                            if dl: dl.pop(0)()
            assert not rl and not dl
            free += [Wb[ci], Hb[ci]]
            if ZE and ci == ZS:
                ZB = Hb[ci]; free.remove(ZB)
        assert nh == NCH
    else:
      for x in reads_l(0): e(x)
    hq = []
    for ci in range(0 if G2W else NCH):
        tags = [("h", ci)] + ([("w2", ci+1)] if ci + 1 < NCH else [])
        e(f"s_waitcnt vmcnt({vm.need(tags)}) lgkmcnt(0)")
        rl = reads_l(ci + 1) if ci + 1 < NCH else []
        dl = issue_l(ci + S) if ci + S < NCH else []
        dl = hq + dl
        hq = issue_h_l(ci + S) if ci + S < NCH else []
        if ci == 10:
            e("buffer_load_dwordx2 v[222:223], v6, s[52:55], 0 offen sc1"); vm.issue(("zf",0))
        b = FR[ci & 1]; sl = ci % S
        for kl in range(2):
            for di in range(2):
                for tj in range(2):
                    d = ACC + 16*(2*di+tj)
                    a = b + 8*kl + 4*di
                    hr = HB + 16*sl + 8*kl + 4*tj
                    e(f"v_mfma_f32_32x32x16_bf16 v[{d}:{d+15}], v[{a}:{a+3}], v[{hr}:{hr+3}], v[{d}:{d+15}]")
                    if rl: e(rl.pop(0))
                    if rl: e(rl.pop(0))
                    if dl: dl.pop(0)()
        assert not rl and not dl
    assert not hq
    stamp(e, 10, SV)
    if ZE and G2W:
        e("s_cmp_eq_u64 s[62:63], 0")
        e("s_cbranch_scc1 G2_ZOK")
    e("s_waitcnt vmcnt(0)")
    e("s_branch G2_CHK")
    e.lab("G2_POLL")
    e(f"s_sleep {PSL}")
    e("buffer_load_dwordx2 v[222:223], v6, s[52:55], 0 offen sc1")
    e("s_waitcnt vmcnt(0)")
    e.lab("G2_CHK")
    e("v_cmp_ne_u32 vcc, v222, v220")
    e("v_cmp_ne_u32 s[60:61], v223, v221")
    e("s_nop 1")
    e("s_or_b64 vcc, vcc, s[60:61]")
    e("s_cmp_eq_u64 vcc, 0")
    e("s_cbranch_scc0 G2_POLL")
    e.lab("G2_GO")
    if not FST and not PST: stamp(e, 11, SV)
    for f in zloads_l(False): f()
    e.lab("G2_ZOK")
    e("v_and_b32 v4, 31, v0")
    e("s_movk_i32 s60, 272")
    e("v_mul_lo_u32 v4, v4, s60")
    e("v_lshrrev_b32 v5, 5, v0")
    e("v_lshl_add_u32 v4, v5, 4, v4")
    e("v_add_u32 v4, s56, v4")
    for di in range(2):
        for tj in range(2):
            d = ACC + 16*(2*di+tj)
            for q in range(4):
                e(f"ds_write_b128 v4, v[{d+4*q}:{d+4*q+3}] offset:{tj*32*272 + di*128 + q*32}")
    e("s_waitcnt lgkmcnt(0)")
    e("s_barrier")
    if FST: stamp(e, 11, SV)
    e("s_lshl_b32 s60, s20, 4")
    e("v_add_u32 v5, s60, v10")
    e("s_movk_i32 s60, 272")
    e("v_mul_lo_u32 v5, v5, s60")
    e("v_lshl_add_u32 v5, v11, 5, v5")
    for pw in range(4):
        for p in range(2):
            for hh in range(2):
                r = 64 + 16*pw + 8*p + 4*hh
                e(f"ds_read_b128 v[{r}:{r+3}], v5 offset:{pw*S*4096 + p*128 + hh*16}")
    e("s_waitcnt lgkmcnt(0)")
    for i in range(16):
        e(f"v_add_f32 v{64+i}, v{64+i}, v{80+i}")
        e(f"v_add_f32 v{96+i}, v{96+i}, v{112+i}")
    for i in range(16):
        e(f"v_add_f32 v{64+i}, v{64+i}, v{96+i}")
    if FST: stamp(e, 13, SV)
    e("s_mov_b32 s62, 0xffff0000")
    def rb(a, t):
        e(f"v_cvt_pk_bf16_f32 v{t}, v{a}, v{a+1}")
        e(f"v_lshlrev_b32 v{a}, 16, v{t}")
        e(f"v_and_b32 v{a+1}, s62, v{t}")
    for i in range(8): rb(64+2*i, 25)
    e("s_waitcnt vmcnt(0)")
    e(f"v_sub_f32 v26, 1.0, v{GV}")
    e("v_mov_b32 v27, v26")
    rb(26, 25)
    for i in range(16): e(f"v_mul_f32 v{64+i}, v{64+i}, v26")
    for i in range(8): rb(64+2*i, 25)
    for p in range(2):
        for i in range(4):
            qv = 212 + 4*p + i
            z0 = ZB + 8*p + 2*i
            e(f"v_lshlrev_b32 v96, 16, v{qv}")
            e(f"v_and_b32 v97, s62, v{qv}")
            e(f"v_lshlrev_b32 v98, 16, v{z0}")
            e(f"v_lshlrev_b32 v99, 16, v{z0+1}")
            e("v_mul_f32 v96, v96, v98")
            e("v_mul_f32 v97, v97, v99")
            rb(96, 25)
            e(f"v_mul_f32 v96, v96, v{GV}")
            e(f"v_mul_f32 v97, v97, v{GV}")
            rb(96, 25)
            o = 64 + 8*p + 2*i
            e(f"v_add_f32 v96, v96, v{o}")
            e(f"v_add_f32 v97, v97, v{o+1}")
            e(f"v_cvt_pk_bf16_f32 v{100+4*p+i}, v96, v97")
        e(f"buffer_store_dwordx4 v[{100+4*p}:{103+4*p}], v13, s[96:99], 0 offen offset:{64*p} sc1 nt")
    if not PST: stamp(e, 12, SV)
    if PROF and not FST: e("s_waitcnt vmcnt(0)")
    if not FST and not PST: stamp(e, 13, SV)
    stamp_store(e, SV, 0, 18)
    if DBG >= 0:
        e(f"s_cmp_lg_u32 s2, {DBG}")
        e("s_cbranch_scc1 A_DBGX")
        e("s_cmp_lg_u32 s20, 0")
        e("s_cbranch_scc1 A_DBGX")
        e("v_lshlrev_b32 v1, 2, v0")
        e("v_add_u32 v1, 8, v1")
        e("s_mov_b64 exec, 0x3fff")
        e(f"buffer_store_dword v{SV}, v1, s[92:95], 0 offen")
        e.lab("A_DBGX")
    e("s_endpgm")

def gen_typeB(e):
    CH = 29440
    KC, UR, RED = 0, 16640, 21248
    e("s_sub_u32 s2, s2, 256")
    if G1ONLY and not BSTOP: e("s_endpgm")
    e("s_load_dwordx4 s[4:7], s[0:1], 0")
    e("s_load_dwordx4 s[8:11], s[0:1], 16")
    e("s_load_dwordx4 s[12:15], s[0:1], 32")
    e("s_load_dwordx2 s[16:17], s[0:1], 72")
    e("s_load_dwordx2 s[22:23], s[0:1], 88")
    e("s_load_dwordx2 s[18:19], s[0:1], 96")
    e("s_load_dwordx4 s[56:59], s[0:1], 56")
    if PRIOB: e(f"s_setprio {PRIOB}")
    e("s_lshr_b32 s24, s20, 1")
    e("s_and_b32 s25, s20, 1")
    e("s_and_b32 s26, s2, 7")
    e("s_lshl_b32 s26, s26, 6")
    e("s_lshr_b32 s27, s2, 3")
    e("s_lshl_b32 s27, s27, 1")
    e("s_add_u32 s26, s26, s27")
    e("s_add_u32 s26, s26, s24")
    e("s_lshl_b32 s27, s26, 12")
    e("s_mul_i32 s28, s24, %d" % CH)
    e("v_lshlrev_b32 v1, 4, v0")
    e("s_waitcnt lgkmcnt(0)")
    stamp(e, 0, 13)
    prep_setup(e)
    e("s_lshr_b32 s29, s2, 3")
    e("s_lshl_b32 s29, s29, 2")
    e("s_add_u32 s29, s29, s20")
    e("s_lshl_b32 s21, s29, 13")
    if PF & 1:
        srd(e, 52, 56, 512*3584)
        e("s_lshr_b32 s29, s2, 3")
        e("s_lshl_b32 s29, s29, 2")
        e("s_add_u32 s29, s29, s20")
        e("s_lshl_b32 s21, s29, 13")
        e("s_add_u32 s29, s21, %d" % (128*8192))
        e("v_lshlrev_b32 v2, 7, v0")
        e("buffer_load_dword v12, v2, s[52:55], s29 offen")
        e("s_and_b32 s30, s2, 7")
        e("s_lshl_b32 s30, s30, 18")
        e("s_add_u32 s30, s30, s21")
        e("s_sub_u32 s30, s30, %d" % (96*8192))
        e("s_cmp_lt_u32 s21, %d" % (96*8192))
        e("s_cbranch_scc1 B_NOQ")
        e("buffer_load_dword v12, v2, s[80:83], s30 offen")
        e.lab("B_NOQ")
    e("s_add_u32 s32, s12, s27"); e("s_addc_u32 s33, s13, 0"); e("s_mov_b32 s34, 4096"); e("s_mov_b32 s35, 0x00020000")
    srd(e, 36, 18, 512*4096, WS_U)
    srd(e, 40, 18, 512*4096, WS_Z)
    srd(e, 44, 14, 1024)
    srd(e, 48, 22, 256)
    srd(e, 60, 18, 0x18000, WS_F)
    def kloads():
        e("s_lshl_b32 s29, s26, 1")
        e("v_mov_b32 v2, s29")
        e("buffer_load_ushort v3, v2, s[44:47], 0 offen")
        if KD:
            KR, KRS = 68608, 4224
            e("s_mul_i32 s29, s24, %d" % KRS)
            e(f"s_add_u32 s29, s29, {KR}")
            e("s_lshl_b32 s30, s25, 11")
            e("s_add_u32 s31, s29, s30")
            e("s_add_u32 m0, s31, 32")
            e("s_nop 0")
            e("buffer_load_dwordx4 v1, s[32:35], s30 offen lds")
            e("s_add_u32 m0, s31, 1056")
            e("s_nop 0")
            e("buffer_load_dwordx4 v1, s[32:35], s30 offen offset:1024 lds")
            e("v_and_b32 v4, 1, v0")
            e("v_lshlrev_b32 v4, 4, v4")
            e("v_add_u32 v5, 4128, v1")
            e("s_cmp_eq_u32 s25, 0")
            e("s_cselect_b64 vcc, -1, 0")
            e("v_cndmask_b32 v4, v5, v4, vcc")
            e("v_add_u32 v4, s29, v4")
            for i in range(4): e(f"v_mov_b32 v{8+i}, 0")
            e("v_cmp_gt_u32 vcc, 4, v0")
            e("s_and_saveexec_b64 s[52:53], vcc")
            e("ds_write_b128 v4, v[8:11]")
            e("s_mov_b64 exec, s[52:53]")
            e("s_lshl_b32 s30, s25, 10")
            e("s_add_u32 s30, s30, s29")
            e("v_add_u32 v4, s30, v1")
        else:
            e("s_lshl_b32 s29, s25, 10")
            e("v_add_u32 v4, s29, v1")
            for n in range(3):
                e(f"v_add_u32 v5, {(2048*n - 32) & 0xffffffff:#x}, v4")
                e(f"v_add_u32 v6, {(2048*n - 16) & 0xffffffff:#x}, v4")
                e(f"buffer_load_dwordx4 v[{16+8*n}:{19+8*n}], v5, s[32:35], 0 offen")
                e(f"buffer_load_dwordx4 v[{20+8*n}:{23+8*n}], v6, s[32:35], 0 offen")
    if not KLATE: kloads()
    if PRIOB: e(f"s_setprio {int(os.environ.get('PRIOB2','0'))}")
    e("s_waitcnt vmcnt(%d)" % (0 if KLATE else (3 if KD else 7)))
    stamp(e, 1, 13)
    if KLATE: kloads()
    if BSTOP == 1: e('s_waitcnt vmcnt(0) lgkmcnt(0)'); e('s_endpgm')
    if PF & 2:
        srd(e, 52, 58, 1792*1024)
        e("v_lshlrev_b32 v2, 7, v0")
        e("buffer_load_dword v12, v2, s[52:55], s21 offen")
        e("s_add_u32 s21, s21, %d" % (128*8192))
        e("buffer_load_dword v12, v2, s[52:55], s21 offen")
    pc = prep_compute()
    stamp(e, 9, 13)
    for ins in pc[:-2]: e(ins)
    stamp(e, 10, 13)
    if UT:
        UST, RS = 59392, 144
        P = 128
        e(f"v_mul_u32_u24 v{P+16}, {2*RS}, v{P+1}")
        e(f"v_lshlrev_b32 v{P+17}, 4, v{P+2}")
        e(f"v_sub_u32 v{P+16}, v{P+16}, v{P+17}")
        e(f"v_add_u32 v{P+16}, 112, v{P+16}")
        e(f"ds_write_b128 v{P+16}, v[{P+104}:{P+107}] offset:{UST}")
        e(f"ds_write_b128 v{P+16}, v[{P+108}:{P+111}] offset:{UST + RS}")
        e(f"v_lshrrev_b32 v{P+17}, 3, v0")
        e("s_lshl_b32 s97, s20, 4")
        e(f"v_add_u32 v{P+17}, s97, v{P+17}")
        e(f"v_and_b32 v{P+18}, 7, v0")
        e(f"v_lshlrev_b32 v{P+18}, 4, v{P+18}")
        e(f"v_mul_u32_u24 v{P+19}, {RS}, v{P+17}")
        e(f"v_add_u32 v{P+19}, v{P+19}, v{P+18}")
        e("s_and_b32 s97, s2, 7")
        e("s_lshl_b32 s97, s97, 18")
        e("s_lshr_b32 s98, s2, 3")
        e("s_lshl_b32 s98, s98, 7")
        e("s_sub_u32 s97, s97, s98")
        e("s_add_u32 s97, s97, 3968")
        e(f"v_lshl_add_u32 v{P+20}, v{P+17}, 12, v{P+18}")
        e("s_waitcnt lgkmcnt(0)")
        e("s_barrier")
        e(f"ds_read_b128 v[{P+104}:{P+107}], v{P+19} offset:{UST}")
        e(f"ds_read_b128 v[{P+108}:{P+111}], v{P+19} offset:{UST + 8*RS}")
        e("s_add_u32 s98, s97, 32768")
        e("s_waitcnt lgkmcnt(1)")
        e(f"buffer_store_dwordx4 v[{P+104}:{P+107}], v{P+20}, s[76:79], s97 offen sc1")
        e("s_waitcnt lgkmcnt(0)")
        e(f"buffer_store_dwordx4 v[{P+108}:{P+111}], v{P+20}, s[76:79], s98 offen sc1")
    else:
        for ins in pc[-2:]: e(ins)
    stamp(e, 11, 13)
    prep_gate(e)
    stamp(e, 2, 13)
    if BSTOP == 2: e('s_waitcnt vmcnt(0) lgkmcnt(0)'); e('s_endpgm')
    for i in range(4): e(f"v_mov_b32 v{8+i}, 0")
    e(f"v_add_u32 v7, s28, v1")
    e("v_cmp_gt_u32 vcc, 32, v0")
    e("s_and_saveexec_b64 s[52:53], vcc")
    e(f"ds_write_b128 v7, v[8:11] offset:{UR+4096}")
    e("s_mov_b64 exec, s[52:53]")
    e("v_add_u32 v7, s29, v7")
    e("s_waitcnt vmcnt(0) lgkmcnt(0)")
    e("s_barrier")
    if KD:
        for n in range(3):
            e(f"ds_read_b128 v[{16+8*n}:{19+8*n}], v4 offset:{2048*n}")
            e(f"ds_read_b128 v[{20+8*n}:{23+8*n}], v4 offset:{2048*n + 16}")
    e("s_cmp_lg_u32 s20, 0")
    e("s_cbranch_scc1 B_NOSIG")
    get_nonce(e, "B_N1", 48, 14, 54)
    e("s_lshl_b32 s54, s2, 7")
    e(f"s_add_u32 s54, s54, {F_U}")
    e("v_mov_b32 v8, s54")
    e("s_mov_b64 exec, 1")
    e(f"buffer_store_dwordx2 v[14:15], v8, s[60:63], 0 offen sc1")
    e("s_mov_b64 exec, -1")
    e.lab("B_NOSIG")
    def touches():
        if PF & 16:
            srd(e, 52, 58, 1792*1024)
            e("v_lshlrev_b32 v2, 7, v0")
            e("buffer_load_dword v200, v2, s[52:55], s21 offen")
            e("s_add_u32 s21, s21, %d" % (128*8192))
            e("buffer_load_dword v200, v2, s[52:55], s21 offen")
    if not PFD: touches()
    if KD: e("s_waitcnt lgkmcnt(0)")
    stamp(e, 3, 13)
    if BSTOP == 3: e('s_waitcnt vmcnt(0) lgkmcnt(0)'); e('s_endpgm')
    for n in range(3):
        b = 16 + 8*n
        if n == 2:
            e("s_lshl_b32 s54, s25, 6")
            e("v_add_u32 v12, s54, v0")
            e("v_cmp_gt_u32 vcc, 4, v12")
            e("s_and_saveexec_b64 s[52:53], vcc")
            e("s_cbranch_execz CV_SKIPK")
        for i in range(5):
            e(f"v_alignbit_b32 v{48+i}, v{b+i+1}, v{b+i}, 16")
        for i in range(4):
            e(f"v_mov_b32 v{56+i}, v{49+i}")
            e(f"v_mov_b32 v{60+i}, v{b+1+i}")
        o = 2048*n
        e(f"ds_write_b128 v7, v[48:51] offset:{KC + 0*4160 + o}")
        e(f"ds_write_b128 v7, v[60:63] offset:{KC + 1*4160 + o}")
        e(f"ds_write_b128 v7, v[56:59] offset:{KC + 2*4160 + o}")
        e(f"ds_write_b128 v7, v[{b+2}:{b+5}] offset:{KC + 3*4160 + o}")
        if n == 2:
            e.lab("CV_SKIPK")
            e("s_mov_b64 exec, s[52:53]")
    e("v_and_b32 v4, 15, v0")
    e("v_lshrrev_b32 v5, 4, v0")
    e("v_and_b32 v6, 3, v0")
    e("s_movk_i32 s54, 4160")
    e("v_mul_lo_u32 v6, v6, s54")
    e("v_lshl_add_u32 v6, v5, 4, v6")
    e("v_and_b32 v8, 12, v0")
    e("v_lshl_add_u32 v6, v8, 1, v6")
    e("s_lshl_b32 s54, s25, 8")
    e("s_add_u32 s54, s54, s28")
    e("v_add_u32 v6, s54, v6")
    e("v_lshlrev_b32 v8, 5, v4")
    e("v_lshlrev_b32 v9, 4, v5")
    e("v_sub_u32 v8, v9, v8")
    e(f"s_add_u32 s54, s54, {UR + 4064 - 3584}")
    e("v_add_u32 v8, s54, v8")
    ACC = 224
    for i in range(32): e(f"v_mov_b32 v{ACC+i}, 0")
    e("v_and_b32 v10, 31, v0")
    e("v_lshlrev_b32 v10, 3, v10")
    e("s_and_b32 s54, s2, 7")
    e("v_add_u32 v10, s54, v10")
    e("v_lshlrev_b32 v10, 7, v10")
    e(f"v_add_u32 v10, {F_U}, v10")
    if PFD:
        for _ in range(PFD): e("s_sleep 16")
        touches()
    e("s_cmp_lg_u32 s20, 0")
    e("s_cbranch_scc1 B_UG")
    e.lab("B_UP")
    e(f"buffer_load_dwordx2 v[48:49], v10, s[60:63], 0 offen sc1")
    e("s_waitcnt vmcnt(0)")
    e("v_cmp_ne_u32 vcc, v48, v14")
    e("v_cmp_ne_u32 s[54:55], v49, v15")
    e("s_nop 1")
    e("s_or_b64 vcc, vcc, s[54:55]")
    e("s_cmp_eq_u64 vcc, 0")
    e("s_cbranch_scc1 B_UG")
    e(f"s_sleep {PSL}")
    e("s_branch B_UP")
    e.lab("B_UG")
    e("s_barrier")
    stamp(e, 4, 13)
    if BSTOP == 4: e('s_waitcnt vmcnt(0) lgkmcnt(0)'); e('s_endpgm')
    e("s_lshl_b32 s29, s25, 11")
    e("s_add_u32 s30, s27, s29")
    e("s_add_u32 s31, s28, s29")
    e(f"s_add_u32 m0, s31, {UR}")
    e("s_nop 0")
    e("buffer_load_dwordx4 v1, s[36:39], s30 offen sc1 lds")
    e("buffer_load_dwordx4 v1, s[36:39], s30 offen offset:1024 sc1 lds")
    e("s_waitcnt vmcnt(0) lgkmcnt(0)")
    e("s_barrier")
    stamp(e, 5, 13)
    if BSTOP == 5: e('s_waitcnt vmcnt(0) lgkmcnt(0)'); e('s_endpgm')
    SETS = [64, 128]
    def loads_l(rr):
        b = SETS[rr & 1]
        L = []
        for a in range(8):
            L.append(f"ds_read_b128 v[{b+32+4*a}:{b+35+4*a}], v8 offset:{512*(7-a) + 64*rr}")
            for h in range(2):
                L.append(f"ds_read_b64 v[{b+4*a+2*h}:{b+4*a+2*h+1}], v6 offset:{64*rr + 512*a + 8*h}")
        return L
    for x in loads_l(0): e(x)
    for rr in range(4):
        b = SETS[rr & 1]
        e("s_waitcnt lgkmcnt(0)")
        nxt = loads_l(rr + 1) if rr < 3 else []
        n = 0
        for s in range(8):
            for a in range(s + 1):
                bb = s - a
                d = ACC + 4*s
                e(f"v_mfma_f32_16x16x32_bf16 v[{d}:{d+3}], v[{b+4*a}:{b+4*a+3}], v[{b+32+4*bb}:{b+35+4*bb}], v[{d}:{d+3}]")
                if nxt: e(nxt.pop(0))
        assert not nxt
    e("s_nop 7")
    stamp(e, 6, 13)
    if BSTOP == 6: e('s_waitcnt vmcnt(0) lgkmcnt(0)'); e('s_endpgm')
    e(f"s_add_u32 s54, s28, {RED}")
    e("v_add_u32 v9, s54, v1")
    e("s_cmp_eq_u32 s25, 0")
    e("s_cbranch_scc1 CV_X0")
    for nt in range(4):
        e(f"ds_write_b128 v9, v[{ACC+4*nt}:{ACC+4*nt+3}] offset:{1024*nt}")
    e("s_waitcnt lgkmcnt(0)")
    e("s_barrier")
    for nt in range(4):
        e(f"ds_read_b128 v[{64+4*nt}:{67+4*nt}], v9 offset:{1024*(4+nt)}")
    e("s_waitcnt lgkmcnt(0)")
    for i in range(16):
        e(f"v_add_f32 v{64+i}, v{64+i}, v{ACC+16+i}")
    e("s_branch CV_FIN")
    e.lab("CV_X0")
    for nt in range(4):
        e(f"ds_write_b128 v9, v[{ACC+16+4*nt}:{ACC+16+4*nt+3}] offset:{1024*(4+nt)}")
    e("s_waitcnt lgkmcnt(0)")
    e("s_barrier")
    for nt in range(4):
        e(f"ds_read_b128 v[{64+4*nt}:{67+4*nt}], v9 offset:{1024*nt}")
    e("s_waitcnt lgkmcnt(0)")
    for i in range(16):
        e(f"v_add_f32 v{64+i}, v{64+i}, v{ACC+i}")
    e.lab("CV_FIN")
    e("v_lshlrev_b32 v10, 4, v4")
    e("v_lshl_add_u32 v10, v5, 2, v10")
    e("s_lshl_b32 s54, s25, 10")
    e("v_add_u32 v10, s54, v10")
    e(f"s_add_u32 s55, s28, {UR + 2*2044 - 512*3}")
    e("v_lshlrev_b32 v11, 1, v10")
    e("v_sub_u32 v11, s55, v11")
    for t in range(4):
        e(f"ds_read_b64 v[{80+2*t}:{81+2*t}], v11 offset:{512*(3-t)}")
    e("v_lshlrev_b32 v3, 16, v3")
    e("s_mov_b32 s56, 0xffff0000")
    e("v_lshlrev_b32 v12, 1, v10")
    e("v_add_u32 v12, s27, v12")
    e("s_waitcnt lgkmcnt(0)")
    for t in range(4):
        y = 64 + 4*t; kq = 80 + 2*t
        e(f"v_and_b32 v96, s56, v{kq+1}")
        e(f"v_lshlrev_b32 v97, 16, v{kq+1}")
        e(f"v_and_b32 v98, s56, v{kq}")
        e(f"v_lshlrev_b32 v99, 16, v{kq}")
        for i in range(4): e(f"v_mul_f32 v{96+i}, v{96+i}, v3")
        e("v_cvt_pk_bf16_f32 v100, v96, v97")
        e("v_cvt_pk_bf16_f32 v101, v98, v99")
        e(f"v_cvt_pk_bf16_f32 v102, v{y}, v{y+1}")
        e(f"v_cvt_pk_bf16_f32 v103, v{y+2}, v{y+3}")
        for i in range(2):
            e(f"v_lshlrev_b32 v{96+2*i}, 16, v{100+i}")
            e(f"v_and_b32 v{97+2*i}, s56, v{100+i}")
            e(f"v_lshlrev_b32 v{104+2*i}, 16, v{102+i}")
            e(f"v_and_b32 v{105+2*i}, s56, v{102+i}")
        for i in range(4): e(f"v_add_f32 v{96+i}, v{96+i}, v{104+i}")
        e(f"v_cvt_pk_bf16_f32 v{108+2*t}, v96, v97")
        e(f"v_cvt_pk_bf16_f32 v{109+2*t}, v98, v99")
        e(f"buffer_store_dwordx2 v[{108+2*t}:{109+2*t}], v12, s[40:43], 0 offen offset:{512*t} sc1")
    stamp(e, 7, 13)
    if BSTOP == 7: e('s_waitcnt vmcnt(0) lgkmcnt(0)'); e('s_endpgm')
    e("s_waitcnt vmcnt(0)")
    stamp(e, 8, 13)
    if BSTOP == 8: e('s_waitcnt vmcnt(0) lgkmcnt(0)'); e('s_endpgm')
    stamp_store(e, 13, 1, 18)
    e("s_barrier")
    e("s_cmp_lg_u32 s20, 0")
    e("s_cbranch_scc1 F_END")
    e("s_and_b32 s54, s2, 7")
    e("s_lshl_b32 s54, s54, 5")
    e("s_lshr_b32 s55, s2, 3")
    e("s_add_u32 s54, s54, s55")
    e("s_lshl_b32 s54, s54, 7")
    e(f"s_add_u32 s54, s54, {F_Z}")
    e("v_mov_b32 v1, s54")
    e("s_mov_b64 exec, 1")
    e("buffer_store_dwordx2 v[14:15], v1, s[60:63], 0 offen sc1")
    e("s_endpgm")


def gen_fused(e):
    e.lab("fused_kernel")
    if PST and PROF: e("s_memrealtime s[38:39]")
    e("s_cmp_ge_u32 s2, 512")
    e("s_cbranch_scc1 F_END")
    e("v_lshrrev_b32 v1, 6, v0")
    e("v_and_b32 v0, 63, v0")
    e("s_nop 0")
    e("v_readfirstlane_b32 s20, v1")
    if SWAP: e("s_xor_b32 s2, s2, 256")
    e("s_cmp_ge_u32 s2, 256")
    e("s_cbranch_scc1 F_B")
    gen_typeA(e)
    e.lab("F_B")
    gen_typeB(e)
    e.lab("F_END")
    e("s_endpgm")

def kdesc(name, vgpr, sgpr=96):
    return f""".amdhsa_kernel {name}
  .amdhsa_next_free_vgpr {vgpr}
  .amdhsa_next_free_sgpr {sgpr}
  .amdhsa_accum_offset {(vgpr+3)//4*4}
  .amdhsa_group_segment_fixed_size 0
  .amdhsa_kernarg_size 104
  .amdhsa_user_sgpr_count 2
  .amdhsa_user_sgpr_kernarg_segment_ptr 1
  .amdhsa_system_sgpr_workgroup_id_x 1
.end_amdhsa_kernel
"""

def main(out):
    e = E()
    hdr = "; @launch kernel=fused_kernel grid=(512,1,1) block=(256,1,1) lds=81920\n"
    hdr += '.amdgcn_target "amdgcn-amd-amdhsa--gfx950"\n.text\n'
    body = ".globl fused_kernel\n.p2align 8\n.type fused_kernel,@function\n"
    gen_fused(e)
    body += e.text()
    ro = '.section .rodata,"a"\n.p2align 6\n' + kdesc("fused_kernel", 256, 102)
    open(out, "w").write(hdr + body + ro)

if __name__ == "__main__":
    main(sys.argv[1] if len(sys.argv) > 1 else "k.s")
```

```python
import sys

KN = "gated_mix__ssm_conv_h3__dense_activation_relu__prompt"
WS_H = 0
WS_H_SIZE = 64*112*1024
WS_U = 0x800000
WS_G = 0xA00000
WS_Z = 0xB00000

class E:
    def __init__(self): self.l = []
    def __call__(self, s): self.l.append("    " + s)
    def lab(self, s): self.l.append(s + ":")
    def c(self, s): self.l.append("    ; " + s)
    def text(self): return "\n".join(self.l) + "\n"

import os
PROF = int(os.environ.get("PROF", "0"))
WS_P = 0xE00000
def stamp(e, idx, vr):
    if not PROF: return
    e("s_memrealtime s[100:101]")
    e("s_waitcnt lgkmcnt(0)")
    e(f"v_writelane_b32 v{vr}, s100, {idx}")
def stamp_store(e, vr, kidx, ws_lo):
    if not PROF: return
    e("s_getreg_b32 s100, hwreg(HW_REG_HW_ID)")
    e("s_getreg_b32 s101, hwreg(HW_REG_XCC_ID)")
    e(f"v_writelane_b32 v{vr}, s100, 14")
    e(f"v_writelane_b32 v{vr}, s101, 15")
    e(f"s_add_u32 s96, s{ws_lo}, {WS_P + kidx*0x40000:#x}")
    e(f"s_addc_u32 s97, s{ws_lo+1}, 0")
    e("s_mov_b32 s98, 0x40000")
    e("s_mov_b32 s99, 0x00020000")
    e("s_lshl_b32 s100, s2, 8")
    e("s_lshl_b32 s101, s20, 6")
    e("s_add_u32 s100, s100, s101")
    e("v_and_b32 v1, 15, v0")
    e("v_lshlrev_b32 v1, 2, v1")
    e("s_mov_b64 exec, 0xffff")
    e(f"buffer_store_dword v{vr}, v1, s[96:99], s100 offen")
    e("s_mov_b64 exec, -1")

def srd(e, sd, sp, size, off=0):
    if off:
        e(f"s_add_u32 s{sd}, s{sp}, {off:#x}")
        e(f"s_addc_u32 s{sd+1}, s{sp+1}, 0")
    else:
        e(f"s_mov_b32 s{sd}, s{sp}")
        e(f"s_mov_b32 s{sd+1}, s{sp+1}")
    e(f"s_mov_b32 s{sd+2}, {size:#x}")
    e(f"s_mov_b32 s{sd+3}, 0x00020000")

PB = 128
def prep_setup(e):
    P = PB
    e("s_lshr_b32 s60, s2, 3")
    e("s_and_b32 s61, s2, 7")
    srd(e, 64, 6, 2048*1024)
    srd(e, 68, 8, 2048*1024)
    srd(e, 72, 10, 512*8)
    srd(e, 76, 18, 512*4096, WS_U)
    srd(e, 80, 4, 2048*1024)
    srd(e, 84, 16, 1024)
    srd(e, 88, 18, 8192, WS_G)
    e(f"v_and_b32 v{P+1}, 31, v0")
    e(f"v_lshrrev_b32 v{P+2}, 5, v0")
    e("s_lshl_b32 s62, s20, 1")
    e(f"v_add_u32 v{P+2}, s62, v{P+2}")
    e("s_lshl_b32 s62, s60, 6")
    e(f"v_lshl_add_u32 v{P+3}, v{P+2}, 3, s62")
    e(f"v_lshlrev_b32 v{P+4}, 10, v{P+3}")
    e("s_lshl_b32 s63, s61, 7")
    e(f"v_lshl_add_u32 v{P+5}, v{P+1}, 2, s63")
    e(f"v_add_u32 v{P+4}, v{P+4}, v{P+5}")
    for i in range(11):
        e(f"v_add_u32 v{P+6}, {(i-3)*1024 & 0xffffffff:#x}, v{P+4}")
        e(f"buffer_load_dword v{P+16+i}, v{P+6}, s[64:67], 0 offen")
    for i in range(8):
        if i < 4:
            e(f"buffer_load_dword v{P+32+i}, v{P+4}, s[68:71], 0 offen offset:{i*1024}")
        else:
            if i == 4: e(f"v_add_u32 v{P+6}, 4096, v{P+4}")
            e(f"buffer_load_dword v{P+32+i}, v{P+6}, s[68:71], 0 offen offset:{(i-4)*1024}")
    e(f"v_lshlrev_b32 v{P+6}, 2, v{P+5}")
    e(f"buffer_load_dwordx4 v[{P+40}:{P+43}], v{P+6}, s[72:75], 0 offen")
    e("s_lshl_b32 s92, s2, 3")
    e("s_lshl_b32 s93, s20, 1")
    e("s_add_u32 s92, s92, s93")
    e("s_lshl_b32 s93, s92, 10")
    e(f"v_lshlrev_b32 v{P+7}, 4, v0")
    e(f"buffer_load_dwordx4 v[{P+44}:{P+47}], v{P+7}, s[80:83], s93 offen")
    e(f"buffer_load_dwordx4 v[{P+48}:{P+51}], v{P+7}, s[80:83], s93 offen offset:1024")
    e(f"buffer_load_dwordx4 v[{P+52}:{P+55}], v{P+7}, s[84:87], 0 offen")
    e("s_mov_b32 s94, 0xffff0000")
    e("s_mov_b32 s95, 0x05040100")
    e("s_mov_b32 s96, 0x07060302")
    e(f"v_lshlrev_b32 v{P+8}, 1, v{P+1}")
    e("s_lshl_b32 s93, s61, 6")
    e(f"v_add_u32 v{P+8}, s93, v{P+8}")
    e(f"v_lshlrev_b32 v{P+8}, 12, v{P+8}")
    e(f"v_sub_u32 v{P+9}, 2040, v{P+3}")
    e(f"v_lshl_add_u32 v{P+8}, v{P+9}, 1, v{P+8}")
    e(f"v_add_u32 v{P+9}, 4096, v{P+8}")
NPREP_LOADS = 11 + 8 + 1 + 3

def prep_compute():
    P = PB
    L = []
    e = L.append
    for j in range(4):
        for ch in range(2):
            src = P + 40 + 2*ch + (j >> 1)
            if j & 1: e(f"v_and_b32 v{P+56+2*j+ch}, s94, v{src}")
            else:     e(f"v_lshlrev_b32 v{P+56+2*j+ch}, 16, v{src}")
    for i in range(11):
        e(f"v_lshlrev_b32 v{P+64+2*i}, 16, v{P+16+i}")
        e(f"v_and_b32 v{P+65+2*i}, s94, v{P+16+i}")
    def rb(dst, src, tmp):
        e(f"v_cvt_pk_bf16_f32 v{tmp}, v{src}, v{src+1}")
        e(f"v_lshlrev_b32 v{dst}, 16, v{tmp}")
        e(f"v_and_b32 v{dst+1}, s94, v{tmp}")
    for r in range(8):
        S, Q, T = P+88, P+90, P+92
        e(f"v_pk_mul_f32 v[{S}:{S+1}], v[{P+64+2*r}:{P+65+2*r}], v[{P+62}:{P+63}]")
        rb(S, S, T)
        for j in (2, 1, 0):
            e(f"v_pk_mul_f32 v[{Q}:{Q+1}], v[{P+64+2*(r+3-j)}:{P+65+2*(r+3-j)}], v[{P+56+2*j}:{P+57+2*j}]")
            rb(Q, Q, T)
            e(f"v_pk_add_f32 v[{S}:{S+1}], v[{S}:{S+1}], v[{Q}:{Q+1}]")
            rb(S, S, T)
        e(f"v_lshlrev_b32 v{Q}, 16, v{P+32+r}")
        e(f"v_and_b32 v{Q+1}, s94, v{P+32+r}")
        e(f"v_pk_mul_f32 v[{S}:{S+1}], v[{S}:{S+1}], v[{Q}:{Q+1}]")
        e(f"v_cvt_pk_bf16_f32 v{P+96+r}, v{S}, v{S+1}")
    for m in range(4):
        e(f"v_perm_b32 v{P+104+m}, v{P+96+6-2*m}, v{P+96+7-2*m}, s95")
        e(f"v_perm_b32 v{P+108+m}, v{P+96+6-2*m}, v{P+96+7-2*m}, s96")
    e(f"buffer_store_dwordx4 v[{P+104}:{P+107}], v{P+8}, s[76:79], 0 offen sc1")
    e(f"buffer_store_dwordx4 v[{P+108}:{P+111}], v{P+9}, s[76:79], 0 offen sc1")
    return L

def prep_gate(e):
    P = PB
    def rb(dst, src, tmp):
        e(f"v_cvt_pk_bf16_f32 v{tmp}, v{src}, v{src+1}")
        e(f"v_lshlrev_b32 v{dst}, 16, v{tmp}")
        e(f"v_and_b32 v{dst+1}, s94, v{tmp}")
    G = P + 112
    A = P + 120
    X = P + 122; T = P + 124
    for i in range(4):
        e(f"v_lshlrev_b32 v{G+2*i}, 16, v{P+52+i}")
        e(f"v_and_b32 v{G+1+2*i}, s94, v{P+52+i}")
    for row in range(2):
        q = P + 44 + 4*row
        for i in range(4):
            e(f"v_lshlrev_b32 v{X}, 16, v{q+i}")
            e(f"v_and_b32 v{X+1}, s94, v{q+i}")
            e(f"v_pk_mul_f32 v[{X}:{X+1}], v[{X}:{X+1}], v[{G+2*i}:{G+1+2*i}]")
            rb(X, X, T)
            if i == 0: e(f"v_add_f32 v{A+row}, v{X}, v{X+1}")
            else:
                e(f"v_add_f32 v{A+row}, v{A+row}, v{X}")
                e(f"v_add_f32 v{A+row}, v{A+row}, v{X+1}")
    for sh in ("row_shr:1", "row_shr:2", "row_shr:4", "row_shr:8"):
        e("s_nop 1")
        for row in range(2):
            e(f"v_add_f32_dpp v{A+row}, v{A+row}, v{A+row} {sh} bound_ctrl:0")
    e("s_nop 1")
    for row in range(2):
        e(f"v_add_f32_dpp v{A+row}, v{A+row}, v{A+row} row_bcast:15 row_mask:0xa")
    e("s_nop 1")
    for row in range(2):
        e(f"v_add_f32_dpp v{A+row}, v{A+row}, v{A+row} row_bcast:31 row_mask:0xc")
    e("s_nop 1")
    e(f"v_readlane_b32 s98, v{A}, 63")
    e(f"v_readlane_b32 s99, v{A+1}, 63")
    e("s_nop 3")
    e(f"v_mov_b32 v{A}, s98")
    e(f"v_mov_b32 v{A+1}, s99")
    rb(A, A, T)
    e(f"v_mul_f32 v{A}, 0xbfb8aa3b, v{A}")
    e(f"v_mul_f32 v{A+1}, 0xbfb8aa3b, v{A+1}")
    e(f"v_exp_f32 v{A}, v{A}")
    e(f"v_exp_f32 v{A+1}, v{A+1}")
    e("s_nop 0")
    e(f"v_add_f32 v{A}, 1.0, v{A}")
    e(f"v_add_f32 v{A+1}, 1.0, v{A+1}")
    e(f"v_rcp_f32 v{A}, v{A}")
    e(f"v_rcp_f32 v{A+1}, v{A+1}")
    e("s_nop 0")
    rb(A, A, T)
    e("s_lshl_b32 s93, s92, 2")
    e(f"v_mov_b32 v{X}, s93")
    e("v_cmp_eq_u32 vcc, 0, v0")
    e("s_and_saveexec_b64 s[98:99], vcc")
    e(f"buffer_store_dwordx2 v[{A}:{A+1}], v{X}, s[88:91], 0 offen sc1")
    e("s_mov_b64 exec, s[98:99]")

class VM:
    def __init__(s): s.q = []
    def issue(s, tag): s.q.append(tag)
    def need(s, tags):
        idx = max([i for i, t in enumerate(s.q) if t in tags] + [-1])
        return len(s.q) - 1 - idx
    def clear(s): s.q = []

CNT_H, CNT_U, CNT_Z = 0, 32, 48
SWAP = int(os.environ.get('SWAP','0'))
PRIOA = int(os.environ.get('PRIOA','2'))
PRIOB = int(os.environ.get('PRIOB','0'))
PF = int(os.environ.get('PF','1'))
G1ONLY = int(os.environ.get('G1ONLY','0'))
NOTR = int(os.environ.get('NOTR','0'))
NOMF = int(os.environ.get('NOMF','0'))
NOLDS = int(os.environ.get('NOLDS','0'))
NOBAR = int(os.environ.get('NOBAR','0'))
ROT = int(os.environ.get('ROT','1'))
NOVM = int(os.environ.get('NOVM','0'))
NODMA = int(os.environ.get('NODMA','0'))
REP2 = int(os.environ.get('REP2','0'))
G2W = int(os.environ.get('G2W','6'))
EARLYW = int(os.environ.get('EARLYW','1'))
PP = int(os.environ.get('PP','0'))
KLATE = int(os.environ.get('KLATE','0'))
ZE = int(os.environ.get('ZE','1'))
FST = int(os.environ.get('FST','0'))
NQ = int(os.environ.get('NQ','3'))
PST = int(os.environ.get('PST','0'))
UPF = int(os.environ.get('UPF','99'))
UT = int(os.environ.get('UT','1'))
KD = int(os.environ.get('KD','0'))
DBG = int(os.environ.get('DBG','-1'))
PW = int(os.environ.get('PW','1'))
PFD = int(os.environ.get('PFD','0'))
GL = int(os.environ.get('GL','1'))
PRIOB3 = int(os.environ.get('PRIOB3','-1'))
PFSL = int(os.environ.get('PFSL','1'))
MAP2 = int(os.environ.get('MAP2','0'))
BSTOP = int(os.environ.get('BSTOP','0'))
PSL = int(os.environ.get('PSL','8'))
SLEEP0 = int(os.environ.get('SLEEP0','1'))
WS_F = 0xF00000
F_H, F_U, F_Z = 0, 0x8000, 0x10000
SV = 15

def get_nonce(e, lab, dbg, vr, st):
    e.lab(lab)
    e(f"v_mov_b32 v{vr+1}, 0")
    e(f"buffer_load_dwordx2 v[{vr}:{vr+1}], v{vr+1}, s[{dbg}:{dbg+3}], 0 offen sc1")
    e("s_waitcnt vmcnt(0)")
    e(f"v_readfirstlane_b32 s{st}, v{vr}")
    e(f"s_cmp_lg_u32 s{st}, 0")
    e(f"s_cbranch_scc1 {lab}_OK")
    e("s_sleep 4")
    e(f"s_branch {lab}")
    e.lab(lab + "_OK")

def gen_typeA(e):
    e("s_load_dwordx2 s[4:5], s[0:1], 0")
    e("s_load_dwordx2 s[14:15], s[0:1], 56")
    e("s_load_dwordx2 s[18:19], s[0:1], 96")
    e("s_load_dwordx4 s[64:67], s[0:1], 64")
    e("s_load_dwordx4 s[68:71], s[0:1], 80")
    if PRIOA: e(f"s_setprio {PRIOA}")
    e("s_and_b32 s21, s2, 7")
    e("s_lshr_b32 s22, s2, 3")
    if MAP2:
        e("s_mul_i32 s23, s22, 37")
        e("s_lshr_b32 s23, s23, 8")
        e("s_lshr_b32 s25, s21, 1")
        e("s_lshl_b32 s25, s25, 2")
        e("s_add_u32 s25, s25, s23")
        e("s_mul_i32 s23, s23, 7")
        e("s_sub_u32 s26, s22, s23")
        e("s_and_b32 s23, s21, 1")
        e("s_mul_i32 s23, s23, 7")
        e("s_add_u32 s26, s26, s23")
    else:
        e("s_cmp_ge_u32 s22, 14")
        e("s_cselect_b32 s23, 1, 0")
        e("s_lshl_b32 s25, s21, 1")
        e("s_add_u32 s25, s25, s23")
        e("s_mul_i32 s23, s23, 14")
        e("s_sub_u32 s26, s22, s23")
    e("s_lshl_b32 s48, s21, 2")
    e("s_lshr_b32 s49, s22, 3")
    e("s_add_u32 s48, s48, s49")
    e("s_and_b32 s49, s22, 7")
    S = 5
    e("s_mul_i32 s56, s20, %d" % (S*4096))
    e("s_lshl_b32 s57, s48, 1")
    e("s_mul_i32 s57, s57, 112")
    e("s_mul_i32 s58, s20, 28")
    e("s_add_u32 s57, s57, s58")
    e("s_lshl_b32 s57, s57, 10")
    e("s_add_u32 s58, s57, %d" % (112*1024))
    e("s_waitcnt lgkmcnt(0)")
    stamp(e, 0, SV)
    if PST and PROF: e(f"v_writelane_b32 v{SV}, s38, 12")
    srd(e, 28, 4, 2048*1024)
    srd(e, 32, 14, 512*3584)
    srd(e, 72, 64, 1792*1024)
    srd(e, 76, 18, WS_H_SIZE, WS_H)
    srd(e, 80, 18, 512*4096, WS_Z)
    srd(e, 84, 18, 8192, WS_G)
    srd(e, 88, 4, 2048*1024)
    srd(e, 92, 70, 256)
    srd(e, 96, 68, 2048*1024)
    srd(e, 52, 18, 0x18000, WS_F)
    e("v_mov_b32 v1, 0")
    e("s_or_b32 s46, s2, s20")
    e("s_cmp_lg_u32 s46, 0")
    e("s_cbranch_scc1 A_NOPUB")
    e("s_memrealtime s[46:47]")
    e("s_waitcnt lgkmcnt(0)")
    e("s_or_b32 s46, s46, 1")
    e("v_mov_b32 v2, s46")
    e("v_mov_b32 v3, s47")
    e("s_mov_b64 exec, 1")
    e("buffer_store_dwordx2 v[2:3], v1, s[92:95], 0 offen sc1")
    e("s_mov_b64 exec, -1")
    e.lab("A_NOPUB")
    e("v_mov_b32 v1, 0")
    e("buffer_load_dwordx2 v[22:23], v1, s[92:95], 0 offen sc1")
    if PF & 1:
        e("s_lshr_b32 s46, s2, 3")
        e("s_lshl_b32 s46, s46, 2")
        e("s_add_u32 s46, s46, s20")
        e("s_lshl_b32 s46, s46, 13")
        e("v_lshlrev_b32 v1, 7, v0")
        e("buffer_load_dword v24, v1, s[32:35], s46 offen")
    if PF & 32:
        srd(e, 60, 18, 16 << 20)
        e("v_lshlrev_b32 v1, 20, v0")
        e("buffer_load_dword v24, v1, s[60:63], 0 offen")
        e("buffer_load_dword v24, v1, s[72:75], 0 offen")
        e("buffer_load_dword v24, v1, s[96:99], 0 offen")
    if PF & 4:
        e("s_lshr_b32 s46, s2, 3")
        e("s_cmp_ge_u32 s46, 8")
        e("s_cbranch_scc1 A_NOQPF")
        e("s_lshl_b32 s46, s46, 2")
        e("s_add_u32 s46, s46, s20")
        e("s_lshl_b32 s46, s46, 13")
        e("s_lshl_b32 s47, s21, 18")
        e("s_add_u32 s46, s46, s47")
        e("v_lshlrev_b32 v1, 7, v0")
        e("buffer_load_dword v24, v1, s[28:31], s46 offen")
        e.lab("A_NOQPF")
    e("s_cmp_ge_u32 s2, 224")
    if PF & 8:
        e("s_cbranch_scc0 A_G1")
        for _ in range(PFSL): e("s_sleep 64")
        e("s_sub_u32 s46, s2, 224")
        e("s_lshr_b32 s46, s46, 3")
        e("s_mul_i32 s46, s46, %d" % (3584*128))
        e("s_lshl_b32 s47, s20, 13")
        e("s_add_u32 s46, s46, s47")
        e("v_lshlrev_b32 v1, 7, v0")
        for it in range(14):
            e("buffer_load_dword v24, v1, s[72:75], s46 offen")
            if it < 13: e("s_add_u32 s46, s46, %d" % (256*128))
        e("s_branch A_PRE")
        e.lab("A_G1")
    else:
        e("s_cbranch_scc1 A_PRE_I" if PW else "s_cbranch_scc1 A_PRE")
    vm = VM()
    e("v_lshrrev_b32 v2, 3, v0")
    e("s_lshl_b32 s27, s25, 7")
    e("s_lshl_b32 s40, s20, 5")
    e("s_add_u32 s27, s27, s40")
    e("v_add_u32 v2, s27, v2")
    e("v_lshlrev_b32 v2, 10, v2")
    e("v_and_b32 v3, 7, v0")
    e("v_lshrrev_b32 v4, 4, v0")
    e("v_xor_b32 v3, v3, v4")
    e("v_lshl_add_u32 v2, v3, 4, v2")
    e("v_xor_b32 v3, 64, v2")
    e("s_lshl_b32 s40, s20, 3")
    e("v_add_u32 v5, s40, v4")
    e("s_movk_i32 s41, 3584")
    e("v_mul_lo_u32 v5, v5, s41")
    e("v_and_b32 v6, 15, v0")
    e("v_lshlrev_b32 v7, 2, v4")
    e("v_xor_b32 v6, v6, v7")
    e("v_lshl_add_u32 v5, v6, 4, v5")
    e("s_lshl_b32 s40, s26, 8")
    e("v_add_u32 v5, s40, v5")
    e("s_lshl_b32 s42, s20, 12")
    e("s_lshl_b32 s47, s20, 11")
    WB = NQ*16384
    WR = 128
    NWR = 12
    NW = 3 if NQ == 3 else 2
    def dq(c, j):
        def f():
            e(f"s_add_u32 m0, s42, {(c%NQ)*16384 + j*1024}")
            if ROT:
                e(f"s_add_u32 s43, s50, {c*128}")
                e(f"s_and_b32 s43, s43, 1023")
                e(f"s_add_u32 s43, s43, {j*8192}")
            else:
                e(f"s_mov_b32 s43, {j*8192 + c*128}")
            e(f"buffer_load_dwordx4 v{2 + (j&1)}, s[28:31], s43 offen lds")
            vm.issue(("Q", c))
        return f
    def lw1(hc, j):
        def f():
            r = WR + 8*(hc % NWR) + 4*j
            if ROT:
                e(f"s_add_u32 s43, s51, {hc}")
                e(f"s_and_b32 s43, s43, 15")
                e(f"s_mul_i32 s43, s43, {32*3584}")
                e(f"s_add_u32 s43, s43, {4*j*3584}")
            else:
                e(f"s_mov_b32 s43, {(32*hc + 4*j)*3584}")
            e(f"buffer_load_dwordx4 v[{r}:{r+3}], v5, s[32:35], s43 offen")
            vm.issue(("W", hc))
        return f
    def lw(hc):
        for j in range(2): lw1(hc, j)()
    e("s_and_b32 s51, s26, 7")
    e("s_lshl_b32 s50, s51, 7")
    e("s_lshl_b32 s51, s51, 1")
    if PST: stamp(e, 11, SV)
    if UPF >= 99:
        order = []
        for c in range(NQ): order += [("Q", c), ("W", 2*c), ("W", 2*c+1)]
        order += [("W", hc) for hc in range(2*NQ, NWR)]
    else:
        order = [("Q",0),("W",0),("W",1),("W",2),("W",3),("Q",1),("W",4),("W",5),("Q",2),("W",6),("W",7)]
        if NQ == 4: order += [("Q",3)]
        order += [("W", hc) for hc in range(8, NWR)]
    left = []
    for n, (t, i) in enumerate(order):
        fs = [dq(i, j) for j in range(4)] if t == "Q" else [lw1(i, j) for j in range(2)]
        if n < UPF:
            for f in fs: f()
        else: left += fs
    if PST: stamp(e, 13, SV)
    e("s_and_b32 s44, s20, 1")
    e("s_lshr_b32 s45, s20, 1")
    e("v_and_b32 v6, 31, v0")
    e("v_lshrrev_b32 v7, 5, v0")
    e("v_bfe_u32 v8, v0, 1, 3")
    e("v_xor_b32 v8, v8, v7")
    e("v_lshlrev_b32 v8, 4, v8")
    e("v_lshl_add_u32 v8, v6, 7, v8")
    e("s_lshl_b32 s46, s44, 13")
    e("v_add_u32 v8, s46, v8")
    for k in range(4):
        e(f"v_xor_b32 v{10+k}, {32*k}, v8")
    e("v_bfe_u32 v6, v0, 2, 2")
    e("v_lshrrev_b32 v7, 5, v0")
    e("v_lshl_add_u32 v7, v7, 3, v6")
    e("v_lshlrev_b32 v7, 8, v7")
    e("v_bfe_u32 v9, v0, 4, 1")
    e("v_lshl_add_u32 v7, v9, 5, v7")
    e("v_and_b32 v9, 3, v0")
    e("v_lshl_add_u32 v7, v9, 3, v7")
    e(f"v_add_u32 v7, {WB}, v7")
    e("s_lshl_b32 s46, s45, 1")
    e("v_xor_b32 v9, s46, v6")
    e("v_lshl_add_u32 v18, v9, 6, v7")
    e("v_xor_b32 v19, 64, v18")
    e("v_lshlrev_b32 v20, 4, v0")
    e("v_add_u32 v20, s47, v20")
    e(f"v_add_u32 v20, {WB}, v20")
    ACC = 64
    for i in range(64):
        e(f"v_mov_b32 v{ACC+i}, 0")
    FR = [32, 48, 224]
    lg = VM()
    def ww_l(hc):
        L = []
        for j in range(2):
            def f(j=j):
                r = WR + 8*(hc % NWR) + 4*j
                e(f"ds_write_b128 v20, v[{r}:{r+3}] offset:{(hc%NW)*8192 + j*1024}")
                lg.issue(("w", hc))
            L.append(f)
        return L
    def ww(hc):
        for f in ww_l(hc): f()
    def rf_l(step):
        if NOLDS: return []
        c, k, hc, kk = step >> 2, step & 3, step >> 1, step & 1
        b = FR[step % 3]
        LQ = []; LW = []
        for tj in range(2):
            def f(tj=tj):
                e(f"ds_read_b128 v[{b+8+4*tj}:{b+11+4*tj}], v{10+k} offset:{(c%NQ)*16384 + tj*4096}")
                lg.issue(("r", step))
            LQ.append(f)
        for fi in range(2):
            for h in range(2):
                def f(fi=fi, h=h):
                    e(f"ds_read_b64_tr_b16 v[{b+4*fi+2*h}:{b+4*fi+2*h+1}], v{18+fi} offset:{(hc%NW)*8192 + kk*4096 + h*1024}")
                    lg.issue(("rw", step))
                LW.append(f)
        return (LQ + LW) if NW == 3 else (LW + LQ)
    def read_frags(step):
        for f in rf_l(step): f()
    pend = list(left)
    def mfmas(step, ldsops):
        b = FR[step % 3]
        n = 0
        per = (len(ldsops) + 3) // 4
        for fi in range(2):
            for tj in range(2):
                d = ACC + 16*(2*fi+tj)
                if not NOMF: e(f"v_mfma_f32_32x32x16_bf16 v[{d}:{d+15}], v[{b+4*fi}:{b+4*fi+3}], v[{b+8+4*tj}:{b+8+4*tj+3}], v[{d}:{d+15}]")
                for _ in range(per):
                    if ldsops: ldsops.pop(0)()
                if pend:
                    f = pend.pop(0)
                    if not NODMA: f()
    stamp(e, 1, SV)
    e(f"s_waitcnt vmcnt({vm.need([('Q',0),('W',0),('W',1)])})")
    ww(0); ww(1)
    e("s_waitcnt lgkmcnt(0)")
    lg.clear()
    if REP2:
        e("s_mov_b32 s46, 0")
        e.lab("A_REP")
    stamp(e, 2, SV)
    if G1ONLY:
        e("s_memtime s[100:101]"); e("s_waitcnt lgkmcnt(0)"); e(f"v_writelane_b32 v{SV}, s100, 10")
    e("s_barrier")
    read_frags(0); read_frags(1)
    NS = 32
    for step in range(NS):
        hc, c = step >> 1, step >> 2
        e(f"s_waitcnt lgkmcnt({lg.need([('r', step), ('rw', step)] + ([('rw', step+1)] if (NW == 2 and step & 1 == 0) else []))})")
        ops = []
        if step & 1 == 0:
            tags = []
            if hc >= 1:
                if hc & 1 and (hc+1) >> 1 < 8: tags.append(("Q", (hc+1) >> 1))
            if hc + 2 < 16: tags.append(("W", hc+2))
            if hc == 0: tags.append(("Q", 0))
            for t in tags: assert vm.q.count(t) == (4 if t[0] == "Q" else 2), (t, step)
            if tags and not NOVM: e(f"s_waitcnt vmcnt({min(63, vm.need(tags))})")
            if hc >= 1 or NW == 2:
                if not NOBAR: e("s_barrier")
                if hc in (4, 8, 12):
                    stamp(e, 2 + hc//4, SV); lg.clear()
            if hc + 2 < 16: ops += ww_l(hc + 2)
            if hc + NWR - 0 < 16 and hc >= 0:
                for j in range(2): pend.append(lw1(hc + NWR, j))
            if hc >= 2 and hc & 1 == 0 and (hc - 2)//2 + NQ < 8:
                for j in range(4): pend.append(dq((hc-2)//2 + NQ, j))
        if step + 2 < NS: ops = ops + rf_l(step + 2)
        mfmas(step, ops)
    e("s_barrier")
    assert not pend
    stamp(e, 6, SV)
    if G1ONLY:
        e("s_memtime s[100:101]"); e("s_waitcnt lgkmcnt(0)"); e(f"v_writelane_b32 v{SV}, s100, 11")
    if REP2:
        e("s_add_u32 s46, s46, 1")
        e("s_cmp_lt_u32 s46, 2")
        e("s_cbranch_scc1 A_REP")
    def issue(ci):
        sl = ci % S
        for jj in range(4):
            e(f"s_add_u32 m0, s56, {sl*4096 + jj*1024}")
            e(f"s_mov_b32 s59, {(32*ci + 8*jj)*1024}")
            e(f"buffer_load_dwordx4 v208, s[72:75], s59 offen lds")
            vm.issue(("w2", ci))
    def pre_issue():
        e("v_lshrrev_b32 v2, 3, v0")
        e("s_mul_i32 s46, s20, 448")
        e("v_add_u32 v2, s46, v2")
        e("v_lshlrev_b32 v2, 10, v2")
        e("v_and_b32 v3, 7, v0")
        e("v_bfe_u32 v4, v0, 4, 1")
        e("v_lshlrev_b32 v4, 2, v4")
        e("v_xor_b32 v3, v3, v4")
        e("v_lshl_add_u32 v2, v3, 4, v2")
        e("s_lshl_b32 s46, s49, 7")
        e("v_add_u32 v208, s46, v2")
        e("v_lshlrev_b32 v209, 4, v0")
        for ci in range(S): issue(ci)
    if EARLYW: pre_issue()
    e("v_lshlrev_b32 v209, 4, v0")
    e("s_lshl_b32 s46, s25, 2")
    e("s_lshl_b32 s47, s44, 1")
    e("s_add_u32 s46, s46, s47")
    e("s_mul_i32 s46, s46, 112")
    e("s_lshl_b32 s47, s26, 3")
    e("s_add_u32 s46, s46, s47")
    e("s_lshl_b32 s47, s45, 2")
    e("s_add_u32 s46, s46, s47")
    e("s_lshl_b32 s46, s46, 10")
    e("v_add_u32 v2, s46, v209")
    e("v_add_u32 v3, 112*1024, v2")
    for fi in range(2):
        for tj in range(2):
            d = ACC + 16*(2*fi+tj)
            for kq in range(2):
                p = 32 + 4*((2*tj+kq) & 3)
                for x in range(4):
                    i0 = d + 8*kq + 2*x
                    e(f"v_max_f32 v{i0}, 0, v{i0}")
                    e(f"v_max_f32 v{i0+1}, 0, v{i0+1}")
                for x in range(4):
                    i0 = d + 8*kq + 2*x
                    e(f"v_cvt_pk_bf16_f32 v{p+x}, v{i0}, v{i0+1}")
                e("s_nop 1")
                e(f"v_permlane32_swap_b32 v{p}, v{p+2}")
                e(f"v_permlane32_swap_b32 v{p+1}, v{p+3}")
                e(f"buffer_store_dwordx4 v[{p}:{p+3}], v{2+tj}, s[76:79], 0 offen offset:{(2*fi+kq)*1024} sc1")
    stamp(e, 7, SV)
    e("s_waitcnt vmcnt(0)")
    e("s_barrier")
    stamp(e, 8, SV)
    e("s_cmp_lg_u32 s20, 0")
    e("s_cbranch_scc1 A_PRE")
    e("v_mov_b32 v220, v22")
    e("v_mov_b32 v221, v23")
    e("v_readfirstlane_b32 s46, v22")
    e("s_cmp_lg_u32 s46, 0")
    e("s_cbranch_scc1 A_N1_OK")
    get_nonce(e, "A_N1", 92, 220, 46)
    e("s_lshl_b32 s46, s25, 4")
    e("s_add_u32 s46, s46, s26")
    e("s_lshl_b32 s46, s46, 7")
    e("v_mov_b32 v1, s46")
    e("s_mov_b64 exec, 1")
    e(f"buffer_store_dwordx2 v[220:221], v1, s[52:55], 0 offen offset:{F_H} sc1")
    e("s_mov_b64 exec, -1")
    if EARLYW: e("s_branch A_PRE2")
    if PW:
        e("s_branch A_PRE")
        e.lab("A_PRE_I")
        e("s_waitcnt vmcnt(0)")
    e.lab("A_PRE")
    pre_issue()
    e.lab("A_PRE2")
    if PW:
        e("s_cmp_eq_u32 s20, 0")
        e("s_cselect_b32 s47, s2, 255")
        e("s_cmp_lt_u32 s47, 224")
        e("s_cbranch_scc1 A_N3_OK")
        e("v_mov_b32 v220, v22")
        e("v_mov_b32 v221, v23")
        e("v_readfirstlane_b32 s46, v22")
        e("s_cmp_lg_u32 s46, 0")
        e("s_cbranch_scc1 A_N3_OK")
        get_nonce(e, "A_N3", 92, 220, 46)
    e.lab("A_POLL")
    if G1ONLY:
        stamp_store(e, SV, 0, 18)
        e("s_endpgm")
    HB = 128
    BLK = [16, 32, 48, 128, 144, 160, 176, 192, 224, 240]
    def issue_h(ci):
        sl = ci % S
        e(f"s_add_u32 s59, s57, {ci*2048}")
        e(f"s_add_u32 s60, s58, {ci*2048}")
        for kl in range(2):
            for tj in range(2):
                r = HB + 16*sl + 8*kl + 4*tj
                e(f"buffer_load_dwordx4 v[{r}:{r+3}], v209, s[76:79], s{59+tj} offen offset:{kl*1024}")
                vm.issue(("h", ci))
    e("v_bfe_u32 v6, v0, 2, 2")
    e("v_lshrrev_b32 v7, 5, v0")
    e("v_lshl_add_u32 v7, v7, 3, v6")
    e("v_lshlrev_b32 v7, 7, v7")
    e("v_bfe_u32 v9, v0, 4, 1")
    e("v_lshl_add_u32 v7, v9, 5, v7")
    e("v_and_b32 v9, 3, v0")
    e("v_lshl_add_u32 v7, v9, 3, v7")
    e("v_lshrrev_b32 v9, 1, v6")
    e("v_lshl_add_u32 v8, v9, 6, v7")
    e("v_add_u32 v8, s56, v8")
    e("v_xor_b32 v9, 64, v8")
    e("v_and_b32 v10, 15, v0")
    e("v_lshrrev_b32 v11, 4, v0")
    e("s_lshl_b32 s59, s48, 6")
    e("s_lshl_b32 s60, s20, 4")
    e("s_add_u32 s59, s59, s60")
    e("v_add_u32 v12, s59, v10")
    e("v_lshlrev_b32 v13, 10, v12")
    e("v_lshl_add_u32 v13, v11, 4, v13")
    e("s_lshl_b32 s60, s49, 7")
    e("v_add_u32 v13, s60, v13")
    e("buffer_load_dwordx4 v[212:215], v13, s[88:91], 0 offen"); vm.issue(("q", 0))
    e("buffer_load_dwordx4 v[216:219], v13, s[88:91], 0 offen offset:64"); vm.issue(("q", 1))
    e("v_lshlrev_b32 v14, 2, v12")
    ACC = 64
    def treads(ci, b):
        sl = ci % S
        L = []
        for kl in range(2):
            for di in range(2):
                for h in range(2):
                    r = b + 8*kl + 4*di + 2*h
                    L.append(f"ds_read_b64_tr_b16 v[{r}:{r+1}], v{8+di} offset:{sl*4096 + kl*2048 + h*512}")
        return L
    for ci in range(G2W):
        e(f"s_waitcnt vmcnt({vm.need([('w2', ci)])})")
        for x in treads(ci, BLK[ci]): e(x)
        e("s_waitcnt lgkmcnt(0)")
        issue(ci + S)
    e("s_lshr_b32 s60, s48, 1")
    e("s_lshl_b32 s60, s60, 4")
    if PW:
        e("s_mul_i32 s61, s20, 7")
        e("s_lshr_b32 s61, s61, 1")
        e("s_add_u32 s60, s60, s61")
        e("v_min_u32 v6, 3, v0")
        e("v_add_u32 v6, s60, v6")
        e("v_lshlrev_b32 v6, 7, v6")
    else:
        e("v_min_u32 v6, 13, v0")
        e("v_add_u32 v6, s60, v6")
        e("v_lshlrev_b32 v6, 7, v6")
        e("s_cmp_lg_u32 s20, 0")
        e("s_cbranch_scc1 A_HG")
        e("s_cmp_lt_u32 s2, 224")
        e("s_cbranch_scc1 A_HP")
        for _ in range(SLEEP0): e("s_sleep 64")
        get_nonce(e, "A_N2", 92, 220, 46)
    e.lab("A_HP")
    if PP:
        R = [222, 210, 2, 4]
        for k in range(3):
            e(f"buffer_load_dwordx2 v[{R[k]}:{R[k]+1}], v6, s[52:55], 0 offen offset:{F_H} sc1")
            e(f"s_sleep {PP}")
        e.lab("A_HPL")
        for k in range(4):
            n = R[(k + 3) % 4]; o = R[k]
            e(f"buffer_load_dwordx2 v[{n}:{n+1}], v6, s[52:55], 0 offen offset:{F_H} sc1")
            e("s_waitcnt vmcnt(3)")
            e(f"v_cmp_ne_u32 vcc, v{o}, v220")
            e(f"v_cmp_ne_u32 s[60:61], v{o+1}, v221")
            e("s_nop 1")
            e("s_or_b64 vcc, vcc, s[60:61]")
            e("s_cmp_eq_u64 vcc, 0")
            e("s_cbranch_scc1 A_HG2")
            e(f"s_sleep {PP}")
        e("s_branch A_HPL")
    else:
        e(f"buffer_load_dwordx2 v[222:223], v6, s[52:55], 0 offen offset:{F_H} sc1")
        e("s_waitcnt vmcnt(0)")
        e("v_cmp_ne_u32 vcc, v222, v220")
        e("v_cmp_ne_u32 s[60:61], v223, v221")
        e("s_nop 1")
        e("s_or_b64 vcc, vcc, s[60:61]")
        e("s_cmp_eq_u64 vcc, 0")
        e("s_cbranch_scc1 A_HG")
        e(f"s_sleep {PSL}")
        e("s_branch A_HP")
    e.lab("A_HG")
    e("s_waitcnt vmcnt(0)")
    e.lab("A_HG2")
    vm.clear()
    if not PW:
        e("s_barrier")
        e("v_mov_b32 v1, 0")
        e("buffer_load_dwordx2 v[220:221], v1, s[92:95], 0 offen sc1")
        vm.issue(("nonce", 0))
    def issue_hb_l(ci, b):
        L = []
        for kl in range(2):
            for tj in range(2):
                def f(kl=kl, tj=tj):
                    r = b + 8*kl + 4*tj
                    e(f"s_add_u32 s60, s{57+tj}, {ci*2048}")
                    e(f"buffer_load_dwordx4 v[{r}:{r+3}], v209, s[76:79], s60 offen offset:{kl*1024}")
                    vm.issue(("h", ci))
                L.append(f)
        return L
    if G2W:
        Wb = {c: BLK[c] for c in range(G2W)}
        Hb = {}
        free = BLK[G2W:]
        nh = 0
        while free:
            Hb[nh] = free.pop(0)
            for f in issue_hb_l(nh, Hb[nh]): f()
            nh += 1
    else:
        for ci in range(S): issue_h(ci)
    stamp(e, 9, SV)
    for i in range(64): e(f"v_mov_b32 v{ACC+i}, 0")
    e("s_lshl_b32 s60, s49, 5")
    e("v_add_u32 v6, s60, v0")
    e("v_lshlrev_b32 v6, 7, v6")
    e(f"v_add_u32 v6, {F_Z}, v6")
    e("v_and_b32 v7, 7, v0")
    if GL:
        e("v_lshlrev_b32 v7, 5, v7")
        e("v_add_u32 v7, s48, v7")
        e("v_lshlrev_b32 v7, 7, v7")
        e(f"v_add_u32 v7, {F_Z}, v7")
    else:
        e("s_lshl_b32 s60, s48, 3")
        e("v_add_u32 v7, s60, v7")
        e("v_lshlrev_b32 v7, 7, v7")
        e(f"v_add_u32 v7, {F_U}, v7")
    e("v_cmp_gt_u32 vcc, 32, v0")
    e("v_cndmask_b32 v6, v7, v6, vcc")
    e("s_lshl_b32 s60, s49, 6")
    e("v_lshl_add_u32 v7, v11, 3, s60")
    e("v_lshlrev_b32 v7, 12, v7")
    e("v_lshl_add_u32 v7, v12, 1, v7")
    ZB, GV = 32, 210
    def zloads_l(track):
        L = []
        for p in range(2):
            for i in range(8):
                def f(p=p, i=i):
                    e(f"s_mov_b32 s60, {(32*p + i)*4096}")
                    e(f"buffer_load_ushort v{ZB+8*p+i}, v7, s[80:83], s60 offen sc1")
                    if track: vm.issue(("z", 0))
                L.append(f)
        def f():
            e(f"buffer_load_dword v{GV}, v14, s[84:87], 0 offen sc1")
            if track: vm.issue(("z", 0))
        L.append(f)
        return L
    ZS = 8
    FR = [16, 32]
    def reads_l(ci):
        b = FR[ci & 1]; sl = ci % S
        L = []
        for kl in range(2):
            for di in range(2):
                for h in range(2):
                    r = b + 8*kl + 4*di + 2*h
                    L.append(f"ds_read_b64_tr_b16 v[{r}:{r+1}], v{8+di} offset:{sl*4096 + kl*2048 + h*512}")
        return L
    def issue_l(ci):
        L = []
        sl = ci % S
        for jj in range(4):
            def f(jj=jj):
                e(f"s_add_u32 m0, s56, {sl*4096 + jj*1024}")
                e(f"s_mov_b32 s59, {(32*ci + 8*jj)*1024}")
                e(f"buffer_load_dwordx4 v208, s[72:75], s59 offen lds")
                vm.issue(("w2", ci))
            L.append(f)
        return L
    def issue_h_l(ci):
        L = []
        sl = ci % S
        for kl in range(2):
            for tj in range(2):
                def f(kl=kl, tj=tj):
                    r = HB + 16*sl + 8*kl + 4*tj
                    e(f"s_add_u32 s60, s{57+tj}, {ci*2048}")
                    e(f"buffer_load_dwordx4 v[{r}:{r+3}], v209, s[76:79], s60 offen offset:{kl*1024}")
                    vm.issue(("h", ci))
                L.append(f)
        return L
    NCH = 14
    if G2W:
        for ci in range(NCH):
            tags = [("h", ci)] + ([("w2", ci+1)] if (ci + 1 < NCH and ci + 1 >= G2W + S) else [])
            if ZE and ci == ZS + 2: tags.append(("zf", 0))
            e(f"s_waitcnt vmcnt({vm.need(tags)}) lgkmcnt(0)")
            rl = []; dl = []
            if ZE and ci == ZS + 2:
                e("v_cmp_ne_u32 vcc, v222, v220")
                e("v_cmp_ne_u32 s[60:61], v223, v221")
                e("s_nop 1")
                e("s_or_b64 s[62:63], vcc, s[60:61]")
                dl += zloads_l(True)
            if ci + 1 < NCH and ci + 1 >= G2W:
                Wb[ci+1] = free.pop(0)
                rl = treads(ci + 1, Wb[ci+1])
            while free and nh < NCH:
                Hb[nh] = free.pop(0)
                dl += issue_hb_l(nh, Hb[nh]); nh += 1
            if ci >= G2W and ci + S < NCH: dl += issue_l(ci + S)
            if ci == (ZS if ZE else 10):
                e("buffer_load_dwordx2 v[222:223], v6, s[52:55], 0 offen sc1"); vm.issue(("zf",0))
            per = max(2, (len(dl) + 7) // 8)
            for kl in range(2):
                for di in range(2):
                    for tj in range(2):
                        d = ACC + 16*(2*di+tj)
                        a = Wb[ci] + 8*kl + 4*di
                        hr = Hb[ci] + 8*kl + 4*tj
                        e(f"v_mfma_f32_32x32x16_bf16 v[{d}:{d+15}], v[{a}:{a+3}], v[{hr}:{hr+3}], v[{d}:{d+15}]")
                        for _ in range(2):
                            if rl: e(rl.pop(0))
                        for _ in range(per):
                            if dl: dl.pop(0)()
            assert not rl and not dl
            free += [Wb[ci], Hb[ci]]
            if ZE and ci == ZS:
                ZB = Hb[ci]; free.remove(ZB)
        assert nh == NCH
    else:
      for x in reads_l(0): e(x)
    hq = []
    for ci in range(0 if G2W else NCH):
        tags = [("h", ci)] + ([("w2", ci+1)] if ci + 1 < NCH else [])
        e(f"s_waitcnt vmcnt({vm.need(tags)}) lgkmcnt(0)")
        rl = reads_l(ci + 1) if ci + 1 < NCH else []
        dl = issue_l(ci + S) if ci + S < NCH else []
        dl = hq + dl
        hq = issue_h_l(ci + S) if ci + S < NCH else []
        if ci == 10:
            e("buffer_load_dwordx2 v[222:223], v6, s[52:55], 0 offen sc1"); vm.issue(("zf",0))
        b = FR[ci & 1]; sl = ci % S
        for kl in range(2):
            for di in range(2):
                for tj in range(2):
                    d = ACC + 16*(2*di+tj)
                    a = b + 8*kl + 4*di
                    hr = HB + 16*sl + 8*kl + 4*tj
                    e(f"v_mfma_f32_32x32x16_bf16 v[{d}:{d+15}], v[{a}:{a+3}], v[{hr}:{hr+3}], v[{d}:{d+15}]")
                    if rl: e(rl.pop(0))
                    if rl: e(rl.pop(0))
                    if dl: dl.pop(0)()
        assert not rl and not dl
    assert not hq
    stamp(e, 10, SV)
    if ZE and G2W:
        e("s_cmp_eq_u64 s[62:63], 0")
        e("s_cbranch_scc1 G2_ZOK")
    e("s_waitcnt vmcnt(0)")
    e("s_branch G2_CHK")
    e.lab("G2_POLL")
    e(f"s_sleep {PSL}")
    e("buffer_load_dwordx2 v[222:223], v6, s[52:55], 0 offen sc1")
    e("s_waitcnt vmcnt(0)")
    e.lab("G2_CHK")
    e("v_cmp_ne_u32 vcc, v222, v220")
    e("v_cmp_ne_u32 s[60:61], v223, v221")
    e("s_nop 1")
    e("s_or_b64 vcc, vcc, s[60:61]")
    e("s_cmp_eq_u64 vcc, 0")
    e("s_cbranch_scc0 G2_POLL")
    e.lab("G2_GO")
    if not FST and not PST: stamp(e, 11, SV)
    for f in zloads_l(False): f()
    e.lab("G2_ZOK")
    e("v_and_b32 v4, 31, v0")
    e("s_movk_i32 s60, 272")
    e("v_mul_lo_u32 v4, v4, s60")
    e("v_lshrrev_b32 v5, 5, v0")
    e("v_lshl_add_u32 v4, v5, 4, v4")
    e("v_add_u32 v4, s56, v4")
    for di in range(2):
        for tj in range(2):
            d = ACC + 16*(2*di+tj)
            for q in range(4):
                e(f"ds_write_b128 v4, v[{d+4*q}:{d+4*q+3}] offset:{tj*32*272 + di*128 + q*32}")
    e("s_waitcnt lgkmcnt(0)")
    e("s_barrier")
    if FST: stamp(e, 11, SV)
    e("s_lshl_b32 s60, s20, 4")
    e("v_add_u32 v5, s60, v10")
    e("s_movk_i32 s60, 272")
    e("v_mul_lo_u32 v5, v5, s60")
    e("v_lshl_add_u32 v5, v11, 5, v5")
    for pw in range(4):
        for p in range(2):
            for hh in range(2):
                r = 64 + 16*pw + 8*p + 4*hh
                e(f"ds_read_b128 v[{r}:{r+3}], v5 offset:{pw*S*4096 + p*128 + hh*16}")
    e("s_waitcnt lgkmcnt(0)")
    for i in range(16):
        e(f"v_add_f32 v{64+i}, v{64+i}, v{80+i}")
        e(f"v_add_f32 v{96+i}, v{96+i}, v{112+i}")
    for i in range(16):
        e(f"v_add_f32 v{64+i}, v{64+i}, v{96+i}")
    if FST: stamp(e, 13, SV)
    e("s_mov_b32 s62, 0xffff0000")
    def rb(a, t):
        e(f"v_cvt_pk_bf16_f32 v{t}, v{a}, v{a+1}")
        e(f"v_lshlrev_b32 v{a}, 16, v{t}")
        e(f"v_and_b32 v{a+1}, s62, v{t}")
    for i in range(8): rb(64+2*i, 25)
    e("s_waitcnt vmcnt(0)")
    e(f"v_sub_f32 v26, 1.0, v{GV}")
    e("v_mov_b32 v27, v26")
    rb(26, 25)
    for i in range(16): e(f"v_mul_f32 v{64+i}, v{64+i}, v26")
    for i in range(8): rb(64+2*i, 25)
    for p in range(2):
        for i in range(4):
            qv = 212 + 4*p + i
            z0 = ZB + 8*p + 2*i
            e(f"v_lshlrev_b32 v96, 16, v{qv}")
            e(f"v_and_b32 v97, s62, v{qv}")
            e(f"v_lshlrev_b32 v98, 16, v{z0}")
            e(f"v_lshlrev_b32 v99, 16, v{z0+1}")
            e("v_mul_f32 v96, v96, v98")
            e("v_mul_f32 v97, v97, v99")
            rb(96, 25)
            e(f"v_mul_f32 v96, v96, v{GV}")
            e(f"v_mul_f32 v97, v97, v{GV}")
            rb(96, 25)
            o = 64 + 8*p + 2*i
            e(f"v_add_f32 v96, v96, v{o}")
            e(f"v_add_f32 v97, v97, v{o+1}")
            e(f"v_cvt_pk_bf16_f32 v{100+4*p+i}, v96, v97")
        e(f"buffer_store_dwordx4 v[{100+4*p}:{103+4*p}], v13, s[96:99], 0 offen offset:{64*p} sc1 nt")
    if not PST: stamp(e, 12, SV)
    if PROF and not FST: e("s_waitcnt vmcnt(0)")
    if not FST and not PST: stamp(e, 13, SV)
    stamp_store(e, SV, 0, 18)
    if DBG >= 0:
        e(f"s_cmp_lg_u32 s2, {DBG}")
        e("s_cbranch_scc1 A_DBGX")
        e("s_cmp_lg_u32 s20, 0")
        e("s_cbranch_scc1 A_DBGX")
        e("v_lshlrev_b32 v1, 2, v0")
        e("v_add_u32 v1, 8, v1")
        e("s_mov_b64 exec, 0x3fff")
        e(f"buffer_store_dword v{SV}, v1, s[92:95], 0 offen")
        e.lab("A_DBGX")
    e("s_endpgm")

def gen_typeB(e):
    CH = 29440
    KC, UR, RED = 0, 16640, 21248
    e("s_sub_u32 s2, s2, 256")
    if G1ONLY and not BSTOP: e("s_endpgm")
    e("s_load_dwordx4 s[4:7], s[0:1], 0")
    e("s_load_dwordx4 s[8:11], s[0:1], 16")
    e("s_load_dwordx4 s[12:15], s[0:1], 32")
    e("s_load_dwordx2 s[16:17], s[0:1], 72")
    e("s_load_dwordx2 s[22:23], s[0:1], 88")
    e("s_load_dwordx2 s[18:19], s[0:1], 96")
    e("s_load_dwordx4 s[56:59], s[0:1], 56")
    if PRIOB: e(f"s_setprio {PRIOB}")
    e("s_lshr_b32 s24, s20, 1")
    e("s_and_b32 s25, s20, 1")
    e("s_and_b32 s26, s2, 7")
    e("s_lshl_b32 s26, s26, 6")
    e("s_lshr_b32 s27, s2, 3")
    e("s_lshl_b32 s27, s27, 1")
    e("s_add_u32 s26, s26, s27")
    e("s_add_u32 s26, s26, s24")
    e("s_lshl_b32 s27, s26, 12")
    e("s_mul_i32 s28, s24, %d" % CH)
    e("v_lshlrev_b32 v1, 4, v0")
    e("s_waitcnt lgkmcnt(0)")
    stamp(e, 0, 13)
    prep_setup(e)
    e("s_lshr_b32 s29, s2, 3")
    e("s_lshl_b32 s29, s29, 2")
    e("s_add_u32 s29, s29, s20")
    e("s_lshl_b32 s21, s29, 13")
    if PF & 1:
        srd(e, 52, 56, 512*3584)
        e("s_lshr_b32 s29, s2, 3")
        e("s_lshl_b32 s29, s29, 2")
        e("s_add_u32 s29, s29, s20")
        e("s_lshl_b32 s21, s29, 13")
        e("s_add_u32 s29, s21, %d" % (128*8192))
        e("v_lshlrev_b32 v2, 7, v0")
        e("buffer_load_dword v12, v2, s[52:55], s29 offen")
        e("s_and_b32 s30, s2, 7")
        e("s_lshl_b32 s30, s30, 18")
        e("s_add_u32 s30, s30, s21")
        e("s_sub_u32 s30, s30, %d" % (96*8192))
        e("s_cmp_lt_u32 s21, %d" % (96*8192))
        e("s_cbranch_scc1 B_NOQ")
        e("buffer_load_dword v12, v2, s[80:83], s30 offen")
        e.lab("B_NOQ")
    e("s_add_u32 s32, s12, s27"); e("s_addc_u32 s33, s13, 0"); e("s_mov_b32 s34, 4096"); e("s_mov_b32 s35, 0x00020000")
    srd(e, 36, 18, 512*4096, WS_U)
    srd(e, 40, 18, 512*4096, WS_Z)
    srd(e, 44, 14, 1024)
    srd(e, 48, 22, 256)
    srd(e, 60, 18, 0x18000, WS_F)
    def kloads():
        e("s_lshl_b32 s29, s26, 1")
        e("v_mov_b32 v2, s29")
        e("buffer_load_ushort v3, v2, s[44:47], 0 offen")
        if KD:
            KR, KRS = 68608, 4224
            e("s_mul_i32 s29, s24, %d" % KRS)
            e(f"s_add_u32 s29, s29, {KR}")
            e("s_lshl_b32 s30, s25, 11")
            e("s_add_u32 s31, s29, s30")
            e("s_add_u32 m0, s31, 32")
            e("s_nop 0")
            e("buffer_load_dwordx4 v1, s[32:35], s30 offen lds")
            e("s_add_u32 m0, s31, 1056")
            e("s_nop 0")
            e("buffer_load_dwordx4 v1, s[32:35], s30 offen offset:1024 lds")
            e("v_and_b32 v4, 1, v0")
            e("v_lshlrev_b32 v4, 4, v4")
            e("v_add_u32 v5, 4128, v1")
            e("s_cmp_eq_u32 s25, 0")
            e("s_cselect_b64 vcc, -1, 0")
            e("v_cndmask_b32 v4, v5, v4, vcc")
            e("v_add_u32 v4, s29, v4")
            for i in range(4): e(f"v_mov_b32 v{8+i}, 0")
            e("v_cmp_gt_u32 vcc, 4, v0")
            e("s_and_saveexec_b64 s[52:53], vcc")
            e("ds_write_b128 v4, v[8:11]")
            e("s_mov_b64 exec, s[52:53]")
            e("s_lshl_b32 s30, s25, 10")
            e("s_add_u32 s30, s30, s29")
            e("v_add_u32 v4, s30, v1")
        else:
            e("s_lshl_b32 s29, s25, 10")
            e("v_add_u32 v4, s29, v1")
            for n in range(3):
                e(f"v_add_u32 v5, {(2048*n - 32) & 0xffffffff:#x}, v4")
                e(f"v_add_u32 v6, {(2048*n - 16) & 0xffffffff:#x}, v4")
                e(f"buffer_load_dwordx4 v[{16+8*n}:{19+8*n}], v5, s[32:35], 0 offen")
                e(f"buffer_load_dwordx4 v[{20+8*n}:{23+8*n}], v6, s[32:35], 0 offen")
    if not KLATE: kloads()
    if PRIOB: e(f"s_setprio {int(os.environ.get('PRIOB2','0'))}")
    e("s_waitcnt vmcnt(%d)" % (0 if KLATE else (3 if KD else 7)))
    stamp(e, 1, 13)
    if KLATE: kloads()
    if BSTOP == 1: e('s_waitcnt vmcnt(0) lgkmcnt(0)'); e('s_endpgm')
    if PF & 2:
        srd(e, 52, 58, 1792*1024)
        e("v_lshlrev_b32 v2, 7, v0")
        e("buffer_load_dword v12, v2, s[52:55], s21 offen")
        e("s_add_u32 s21, s21, %d" % (128*8192))
        e("buffer_load_dword v12, v2, s[52:55], s21 offen")
    pc = prep_compute()
    stamp(e, 9, 13)
    for ins in pc[:-2]: e(ins)
    stamp(e, 10, 13)
    if UT:
        UST, RS = 59392, 144
        P = 128
        e(f"v_mul_u32_u24 v{P+16}, {2*RS}, v{P+1}")
        e(f"v_lshlrev_b32 v{P+17}, 4, v{P+2}")
        e(f"v_sub_u32 v{P+16}, v{P+16}, v{P+17}")
        e(f"v_add_u32 v{P+16}, 112, v{P+16}")
        e(f"ds_write_b128 v{P+16}, v[{P+104}:{P+107}] offset:{UST}")
        e(f"ds_write_b128 v{P+16}, v[{P+108}:{P+111}] offset:{UST + RS}")
        e(f"v_lshrrev_b32 v{P+17}, 3, v0")
        e("s_lshl_b32 s97, s20, 4")
        e(f"v_add_u32 v{P+17}, s97, v{P+17}")
        e(f"v_and_b32 v{P+18}, 7, v0")
        e(f"v_lshlrev_b32 v{P+18}, 4, v{P+18}")
        e(f"v_mul_u32_u24 v{P+19}, {RS}, v{P+17}")
        e(f"v_add_u32 v{P+19}, v{P+19}, v{P+18}")
        e("s_and_b32 s97, s2, 7")
        e("s_lshl_b32 s97, s97, 18")
        e("s_lshr_b32 s98, s2, 3")
        e("s_lshl_b32 s98, s98, 7")
        e("s_sub_u32 s97, s97, s98")
        e("s_add_u32 s97, s97, 3968")
        e(f"v_lshl_add_u32 v{P+20}, v{P+17}, 12, v{P+18}")
        e("s_waitcnt lgkmcnt(0)")
        e("s_barrier")
        e(f"ds_read_b128 v[{P+104}:{P+107}], v{P+19} offset:{UST}")
        e(f"ds_read_b128 v[{P+108}:{P+111}], v{P+19} offset:{UST + 8*RS}")
        e("s_add_u32 s98, s97, 32768")
        e("s_waitcnt lgkmcnt(1)")
        e(f"buffer_store_dwordx4 v[{P+104}:{P+107}], v{P+20}, s[76:79], s97 offen sc1")
        e("s_waitcnt lgkmcnt(0)")
        e(f"buffer_store_dwordx4 v[{P+108}:{P+111}], v{P+20}, s[76:79], s98 offen sc1")
    else:
        for ins in pc[-2:]: e(ins)
    stamp(e, 11, 13)
    if not GL: prep_gate(e)
    stamp(e, 2, 13)
    if BSTOP == 2: e('s_waitcnt vmcnt(0) lgkmcnt(0)'); e('s_endpgm')
    for i in range(4): e(f"v_mov_b32 v{8+i}, 0")
    e(f"v_add_u32 v7, s28, v1")
    e("v_cmp_gt_u32 vcc, 32, v0")
    e("s_and_saveexec_b64 s[52:53], vcc")
    e(f"ds_write_b128 v7, v[8:11] offset:{UR+4096}")
    e("s_mov_b64 exec, s[52:53]")
    e("v_add_u32 v7, s29, v7")
    e("s_waitcnt vmcnt(0) lgkmcnt(0)")
    e("s_barrier")
    if KD:
        for n in range(3):
            e(f"ds_read_b128 v[{16+8*n}:{19+8*n}], v4 offset:{2048*n}")
            e(f"ds_read_b128 v[{20+8*n}:{23+8*n}], v4 offset:{2048*n + 16}")
    e("s_cmp_lg_u32 s20, 0")
    e("s_cbranch_scc1 B_NOSIG")
    get_nonce(e, "B_N1", 48, 14, 54)
    e("s_lshl_b32 s54, s2, 7")
    e(f"s_add_u32 s54, s54, {F_U}")
    e("v_mov_b32 v8, s54")
    e("s_mov_b64 exec, 1")
    e(f"buffer_store_dwordx2 v[14:15], v8, s[60:63], 0 offen sc1")
    e("s_mov_b64 exec, -1")
    e.lab("B_NOSIG")
    if GL: prep_gate(e)
    def touches():
        if PF & 16:
            srd(e, 52, 58, 1792*1024)
            e("v_lshlrev_b32 v2, 7, v0")
            e("buffer_load_dword v200, v2, s[52:55], s21 offen")
            e("s_add_u32 s21, s21, %d" % (128*8192))
            e("buffer_load_dword v200, v2, s[52:55], s21 offen")
    if not PFD: touches()
    if KD: e("s_waitcnt lgkmcnt(0)")
    stamp(e, 3, 13)
    if BSTOP == 3: e('s_waitcnt vmcnt(0) lgkmcnt(0)'); e('s_endpgm')
    for n in range(3):
        b = 16 + 8*n
        if n == 2:
            e("s_lshl_b32 s54, s25, 6")
            e("v_add_u32 v12, s54, v0")
            e("v_cmp_gt_u32 vcc, 4, v12")
            e("s_and_saveexec_b64 s[52:53], vcc")
            e("s_cbranch_execz CV_SKIPK")
        for i in range(5):
            e(f"v_alignbit_b32 v{48+i}, v{b+i+1}, v{b+i}, 16")
        for i in range(4):
            e(f"v_mov_b32 v{56+i}, v{49+i}")
            e(f"v_mov_b32 v{60+i}, v{b+1+i}")
        o = 2048*n
        e(f"ds_write_b128 v7, v[48:51] offset:{KC + 0*4160 + o}")
        e(f"ds_write_b128 v7, v[60:63] offset:{KC + 1*4160 + o}")
        e(f"ds_write_b128 v7, v[56:59] offset:{KC + 2*4160 + o}")
        e(f"ds_write_b128 v7, v[{b+2}:{b+5}] offset:{KC + 3*4160 + o}")
        if n == 2:
            e.lab("CV_SKIPK")
            e("s_mov_b64 exec, s[52:53]")
    e("v_and_b32 v4, 15, v0")
    e("v_lshrrev_b32 v5, 4, v0")
    e("v_and_b32 v6, 3, v0")
    e("s_movk_i32 s54, 4160")
    e("v_mul_lo_u32 v6, v6, s54")
    e("v_lshl_add_u32 v6, v5, 4, v6")
    e("v_and_b32 v8, 12, v0")
    e("v_lshl_add_u32 v6, v8, 1, v6")
    e("s_lshl_b32 s54, s25, 8")
    e("s_add_u32 s54, s54, s28")
    e("v_add_u32 v6, s54, v6")
    e("v_lshlrev_b32 v8, 5, v4")
    e("v_lshlrev_b32 v9, 4, v5")
    e("v_sub_u32 v8, v9, v8")
    e(f"s_add_u32 s54, s54, {UR + 4064 - 3584}")
    e("v_add_u32 v8, s54, v8")
    ACC = 224
    for i in range(32): e(f"v_mov_b32 v{ACC+i}, 0")
    e("v_and_b32 v10, 31, v0")
    e("v_lshlrev_b32 v10, 3, v10")
    e("s_and_b32 s54, s2, 7")
    e("v_add_u32 v10, s54, v10")
    e("v_lshlrev_b32 v10, 7, v10")
    e(f"v_add_u32 v10, {F_U}, v10")
    if PFD:
        for _ in range(PFD): e("s_sleep 16")
        touches()
    e("s_cmp_lg_u32 s20, 0")
    e("s_cbranch_scc1 B_UG")
    e.lab("B_UP")
    e(f"buffer_load_dwordx2 v[48:49], v10, s[60:63], 0 offen sc1")
    e("s_waitcnt vmcnt(0)")
    e("v_cmp_ne_u32 vcc, v48, v14")
    e("v_cmp_ne_u32 s[54:55], v49, v15")
    e("s_nop 1")
    e("s_or_b64 vcc, vcc, s[54:55]")
    e("s_cmp_eq_u64 vcc, 0")
    e("s_cbranch_scc1 B_UG")
    e(f"s_sleep {PSL}")
    e("s_branch B_UP")
    e.lab("B_UG")
    if PRIOB3 >= 0: e(f"s_setprio {PRIOB3}")
    e("s_barrier")
    stamp(e, 4, 13)
    if BSTOP == 4: e('s_waitcnt vmcnt(0) lgkmcnt(0)'); e('s_endpgm')
    e("s_lshl_b32 s29, s25, 11")
    e("s_add_u32 s30, s27, s29")
    e("s_add_u32 s31, s28, s29")
    e(f"s_add_u32 m0, s31, {UR}")
    e("s_nop 0")
    e("buffer_load_dwordx4 v1, s[36:39], s30 offen sc1 lds")
    e("buffer_load_dwordx4 v1, s[36:39], s30 offen offset:1024 sc1 lds")
    e("s_waitcnt vmcnt(0) lgkmcnt(0)")
    e("s_barrier")
    stamp(e, 5, 13)
    if BSTOP == 5: e('s_waitcnt vmcnt(0) lgkmcnt(0)'); e('s_endpgm')
    SETS = [64, 128]
    def loads_l(rr):
        b = SETS[rr & 1]
        L = []
        for a in range(8):
            L.append(f"ds_read_b128 v[{b+32+4*a}:{b+35+4*a}], v8 offset:{512*(7-a) + 64*rr}")
            for h in range(2):
                L.append(f"ds_read_b64 v[{b+4*a+2*h}:{b+4*a+2*h+1}], v6 offset:{64*rr + 512*a + 8*h}")
        return L
    for x in loads_l(0): e(x)
    for rr in range(4):
        b = SETS[rr & 1]
        e("s_waitcnt lgkmcnt(0)")
        nxt = loads_l(rr + 1) if rr < 3 else []
        n = 0
        for s in range(8):
            for a in range(s + 1):
                bb = s - a
                d = ACC + 4*s
                e(f"v_mfma_f32_16x16x32_bf16 v[{d}:{d+3}], v[{b+4*a}:{b+4*a+3}], v[{b+32+4*bb}:{b+35+4*bb}], v[{d}:{d+3}]")
                if nxt: e(nxt.pop(0))
        assert not nxt
    e("s_nop 7")
    stamp(e, 6, 13)
    if BSTOP == 6: e('s_waitcnt vmcnt(0) lgkmcnt(0)'); e('s_endpgm')
    e(f"s_add_u32 s54, s28, {RED}")
    e("v_add_u32 v9, s54, v1")
    e("s_cmp_eq_u32 s25, 0")
    e("s_cbranch_scc1 CV_X0")
    for nt in range(4):
        e(f"ds_write_b128 v9, v[{ACC+4*nt}:{ACC+4*nt+3}] offset:{1024*nt}")
    e("s_waitcnt lgkmcnt(0)")
    e("s_barrier")
    for nt in range(4):
        e(f"ds_read_b128 v[{64+4*nt}:{67+4*nt}], v9 offset:{1024*(4+nt)}")
    e("s_waitcnt lgkmcnt(0)")
    for i in range(16):
        e(f"v_add_f32 v{64+i}, v{64+i}, v{ACC+16+i}")
    e("s_branch CV_FIN")
    e.lab("CV_X0")
    for nt in range(4):
        e(f"ds_write_b128 v9, v[{ACC+16+4*nt}:{ACC+16+4*nt+3}] offset:{1024*(4+nt)}")
    e("s_waitcnt lgkmcnt(0)")
    e("s_barrier")
    for nt in range(4):
        e(f"ds_read_b128 v[{64+4*nt}:{67+4*nt}], v9 offset:{1024*nt}")
    e("s_waitcnt lgkmcnt(0)")
    for i in range(16):
        e(f"v_add_f32 v{64+i}, v{64+i}, v{ACC+i}")
    e.lab("CV_FIN")
    e("v_lshlrev_b32 v10, 4, v4")
    e("v_lshl_add_u32 v10, v5, 2, v10")
    e("s_lshl_b32 s54, s25, 10")
    e("v_add_u32 v10, s54, v10")
    e(f"s_add_u32 s55, s28, {UR + 2*2044 - 512*3}")
    e("v_lshlrev_b32 v11, 1, v10")
    e("v_sub_u32 v11, s55, v11")
    for t in range(4):
        e(f"ds_read_b64 v[{80+2*t}:{81+2*t}], v11 offset:{512*(3-t)}")
    e("v_lshlrev_b32 v3, 16, v3")
    e("s_mov_b32 s56, 0xffff0000")
    e("v_lshlrev_b32 v12, 1, v10")
    e("v_add_u32 v12, s27, v12")
    e("s_waitcnt lgkmcnt(0)")
    for t in range(4):
        y = 64 + 4*t; kq = 80 + 2*t
        e(f"v_and_b32 v96, s56, v{kq+1}")
        e(f"v_lshlrev_b32 v97, 16, v{kq+1}")
        e(f"v_and_b32 v98, s56, v{kq}")
        e(f"v_lshlrev_b32 v99, 16, v{kq}")
        for i in range(4): e(f"v_mul_f32 v{96+i}, v{96+i}, v3")
        e("v_cvt_pk_bf16_f32 v100, v96, v97")
        e("v_cvt_pk_bf16_f32 v101, v98, v99")
        e(f"v_cvt_pk_bf16_f32 v102, v{y}, v{y+1}")
        e(f"v_cvt_pk_bf16_f32 v103, v{y+2}, v{y+3}")
        for i in range(2):
            e(f"v_lshlrev_b32 v{96+2*i}, 16, v{100+i}")
            e(f"v_and_b32 v{97+2*i}, s56, v{100+i}")
            e(f"v_lshlrev_b32 v{104+2*i}, 16, v{102+i}")
            e(f"v_and_b32 v{105+2*i}, s56, v{102+i}")
        for i in range(4): e(f"v_add_f32 v{96+i}, v{96+i}, v{104+i}")
        e(f"v_cvt_pk_bf16_f32 v{108+2*t}, v96, v97")
        e(f"v_cvt_pk_bf16_f32 v{109+2*t}, v98, v99")
        e(f"buffer_store_dwordx2 v[{108+2*t}:{109+2*t}], v12, s[40:43], 0 offen offset:{512*t} sc1")
    stamp(e, 7, 13)
    if BSTOP == 7: e('s_waitcnt vmcnt(0) lgkmcnt(0)'); e('s_endpgm')
    e("s_waitcnt vmcnt(0)")
    stamp(e, 8, 13)
    if BSTOP == 8: e('s_waitcnt vmcnt(0) lgkmcnt(0)'); e('s_endpgm')
    stamp_store(e, 13, 1, 18)
    e("s_barrier")
    e("s_cmp_lg_u32 s20, 0")
    e("s_cbranch_scc1 F_END")
    e("s_and_b32 s54, s2, 7")
    e("s_lshl_b32 s54, s54, 5")
    e("s_lshr_b32 s55, s2, 3")
    e("s_add_u32 s54, s54, s55")
    e("s_lshl_b32 s54, s54, 7")
    e(f"s_add_u32 s54, s54, {F_Z}")
    e("v_mov_b32 v1, s54")
    e("s_mov_b64 exec, 1")
    e("buffer_store_dwordx2 v[14:15], v1, s[60:63], 0 offen sc1")
    e("s_endpgm")


def gen_fused(e):
    e.lab("fused_kernel")
    if PST and PROF: e("s_memrealtime s[38:39]")
    e("s_cmp_ge_u32 s2, 512")
    e("s_cbranch_scc1 F_END")
    e("v_lshrrev_b32 v1, 6, v0")
    e("v_and_b32 v0, 63, v0")
    e("s_nop 0")
    e("v_readfirstlane_b32 s20, v1")
    if SWAP: e("s_xor_b32 s2, s2, 256")
    e("s_cmp_ge_u32 s2, 256")
    e("s_cbranch_scc1 F_B")
    gen_typeA(e)
    e.lab("F_B")
    gen_typeB(e)
    e.lab("F_END")
    e("s_endpgm")

def kdesc(name, vgpr, sgpr=96):
    return f""".amdhsa_kernel {name}
  .amdhsa_next_free_vgpr {vgpr}
  .amdhsa_next_free_sgpr {sgpr}
  .amdhsa_accum_offset {(vgpr+3)//4*4}
  .amdhsa_group_segment_fixed_size 0
  .amdhsa_kernarg_size 104
  .amdhsa_user_sgpr_count 2
  .amdhsa_user_sgpr_kernarg_segment_ptr 1
  .amdhsa_system_sgpr_workgroup_id_x 1
.end_amdhsa_kernel
"""

def main(out):
    e = E()
    hdr = "; @launch kernel=fused_kernel grid=(512,1,1) block=(256,1,1) lds=81920\n"
    hdr += '.amdgcn_target "amdgcn-amd-amdhsa--gfx950"\n.text\n'
    body = ".globl fused_kernel\n.p2align 8\n.type fused_kernel,@function\n"
    gen_fused(e)
    body += e.text()
    ro = '.section .rodata,"a"\n.p2align 6\n' + kdesc("fused_kernel", 256, 102)
    open(out, "w").write(hdr + body + ro)

if __name__ == "__main__":
    main(sys.argv[1] if len(sys.argv) > 1 else "k.s")
```

```python
import sys

KN = "gated_mix__ssm_conv_h3__dense_activation_relu__prompt"
WS_H = 0
WS_H_SIZE = 64*112*1024
WS_U = 0x800000
WS_G = 0xA00000
WS_Z = 0xB00000

class E:
    def __init__(self): self.l = []
    def __call__(self, s): self.l.append("    " + s)
    def lab(self, s): self.l.append(s + ":")
    def c(self, s): self.l.append("    ; " + s)
    def text(self): return "\n".join(self.l) + "\n"

import os
PROF = int(os.environ.get("PROF", "0"))
WS_P = 0xE00000
def stamp(e, idx, vr):
    if not PROF: return
    e("s_memrealtime s[100:101]")
    e("s_waitcnt lgkmcnt(0)")
    e(f"v_writelane_b32 v{vr}, s100, {idx}")
def stamp_store(e, vr, kidx, ws_lo):
    if not PROF: return
    e("s_getreg_b32 s100, hwreg(HW_REG_HW_ID)")
    e("s_getreg_b32 s101, hwreg(HW_REG_XCC_ID)")
    e(f"v_writelane_b32 v{vr}, s100, 14")
    e(f"v_writelane_b32 v{vr}, s101, 15")
    e(f"s_add_u32 s96, s{ws_lo}, {WS_P + kidx*0x40000:#x}")
    e(f"s_addc_u32 s97, s{ws_lo+1}, 0")
    e("s_mov_b32 s98, 0x40000")
    e("s_mov_b32 s99, 0x00020000")
    e("s_lshl_b32 s100, s2, 8")
    e("s_lshl_b32 s101, s20, 6")
    e("s_add_u32 s100, s100, s101")
    e("v_and_b32 v1, 15, v0")
    e("v_lshlrev_b32 v1, 2, v1")
    e("s_mov_b64 exec, 0xffff")
    e(f"buffer_store_dword v{vr}, v1, s[96:99], s100 offen")
    e("s_mov_b64 exec, -1")

def srd(e, sd, sp, size, off=0):
    if off:
        e(f"s_add_u32 s{sd}, s{sp}, {off:#x}")
        e(f"s_addc_u32 s{sd+1}, s{sp+1}, 0")
    else:
        e(f"s_mov_b32 s{sd}, s{sp}")
        e(f"s_mov_b32 s{sd+1}, s{sp+1}")
    e(f"s_mov_b32 s{sd+2}, {size:#x}")
    e(f"s_mov_b32 s{sd+3}, 0x00020000")

PB = 128
def prep_setup(e):
    P = PB
    e("s_lshr_b32 s60, s2, 3")
    e("s_and_b32 s61, s2, 7")
    srd(e, 64, 6, 2048*1024)
    srd(e, 68, 8, 2048*1024)
    srd(e, 72, 10, 512*8)
    srd(e, 76, 18, 512*4096, WS_U)
    srd(e, 80, 4, 2048*1024)
    srd(e, 84, 16, 1024)
    srd(e, 88, 18, 8192, WS_G)
    e(f"v_and_b32 v{P+1}, 31, v0")
    e(f"v_lshrrev_b32 v{P+2}, 5, v0")
    e("s_lshl_b32 s62, s20, 1")
    e(f"v_add_u32 v{P+2}, s62, v{P+2}")
    e("s_lshl_b32 s62, s60, 6")
    e(f"v_lshl_add_u32 v{P+3}, v{P+2}, 3, s62")
    e(f"v_lshlrev_b32 v{P+4}, 10, v{P+3}")
    e("s_lshl_b32 s63, s61, 7")
    e(f"v_lshl_add_u32 v{P+5}, v{P+1}, 2, s63")
    e(f"v_add_u32 v{P+4}, v{P+4}, v{P+5}")
    for i in range(11):
        e(f"v_add_u32 v{P+6}, {(i-3)*1024 & 0xffffffff:#x}, v{P+4}")
        e(f"buffer_load_dword v{P+16+i}, v{P+6}, s[64:67], 0 offen")
    for i in range(8):
        if i < 4:
            e(f"buffer_load_dword v{P+32+i}, v{P+4}, s[68:71], 0 offen offset:{i*1024}")
        else:
            if i == 4: e(f"v_add_u32 v{P+6}, 4096, v{P+4}")
            e(f"buffer_load_dword v{P+32+i}, v{P+6}, s[68:71], 0 offen offset:{(i-4)*1024}")
    e(f"v_lshlrev_b32 v{P+6}, 2, v{P+5}")
    e(f"buffer_load_dwordx4 v[{P+40}:{P+43}], v{P+6}, s[72:75], 0 offen")
    e("s_lshl_b32 s92, s2, 3")
    e("s_lshl_b32 s93, s20, 1")
    e("s_add_u32 s92, s92, s93")
    e("s_lshl_b32 s93, s92, 10")
    e(f"v_lshlrev_b32 v{P+7}, 4, v0")
    e(f"buffer_load_dwordx4 v[{P+44}:{P+47}], v{P+7}, s[80:83], s93 offen")
    e(f"buffer_load_dwordx4 v[{P+48}:{P+51}], v{P+7}, s[80:83], s93 offen offset:1024")
    e(f"buffer_load_dwordx4 v[{P+52}:{P+55}], v{P+7}, s[84:87], 0 offen")
    e("s_mov_b32 s94, 0xffff0000")
    e("s_mov_b32 s95, 0x05040100")
    e("s_mov_b32 s96, 0x07060302")
    e(f"v_lshlrev_b32 v{P+8}, 1, v{P+1}")
    e("s_lshl_b32 s93, s61, 6")
    e(f"v_add_u32 v{P+8}, s93, v{P+8}")
    e(f"v_lshlrev_b32 v{P+8}, 12, v{P+8}")
    e(f"v_sub_u32 v{P+9}, 2040, v{P+3}")
    e(f"v_lshl_add_u32 v{P+8}, v{P+9}, 1, v{P+8}")
    e(f"v_add_u32 v{P+9}, 4096, v{P+8}")
NPREP_LOADS = 11 + 8 + 1 + 3

def prep_compute():
    P = PB
    L = []
    e = L.append
    for j in range(4):
        for ch in range(2):
            src = P + 40 + 2*ch + (j >> 1)
            if j & 1: e(f"v_and_b32 v{P+56+2*j+ch}, s94, v{src}")
            else:     e(f"v_lshlrev_b32 v{P+56+2*j+ch}, 16, v{src}")
    for i in range(11):
        e(f"v_lshlrev_b32 v{P+64+2*i}, 16, v{P+16+i}")
        e(f"v_and_b32 v{P+65+2*i}, s94, v{P+16+i}")
    def rb(dst, src, tmp):
        e(f"v_cvt_pk_bf16_f32 v{tmp}, v{src}, v{src+1}")
        e(f"v_lshlrev_b32 v{dst}, 16, v{tmp}")
        e(f"v_and_b32 v{dst+1}, s94, v{tmp}")
    for r in range(8):
        S, Q, T = P+88, P+90, P+92
        e(f"v_pk_mul_f32 v[{S}:{S+1}], v[{P+64+2*r}:{P+65+2*r}], v[{P+62}:{P+63}]")
        rb(S, S, T)
        for j in (2, 1, 0):
            e(f"v_pk_mul_f32 v[{Q}:{Q+1}], v[{P+64+2*(r+3-j)}:{P+65+2*(r+3-j)}], v[{P+56+2*j}:{P+57+2*j}]")
            rb(Q, Q, T)
            e(f"v_pk_add_f32 v[{S}:{S+1}], v[{S}:{S+1}], v[{Q}:{Q+1}]")
            rb(S, S, T)
        e(f"v_lshlrev_b32 v{Q}, 16, v{P+32+r}")
        e(f"v_and_b32 v{Q+1}, s94, v{P+32+r}")
        e(f"v_pk_mul_f32 v[{S}:{S+1}], v[{S}:{S+1}], v[{Q}:{Q+1}]")
        e(f"v_cvt_pk_bf16_f32 v{P+96+r}, v{S}, v{S+1}")
    for m in range(4):
        e(f"v_perm_b32 v{P+104+m}, v{P+96+6-2*m}, v{P+96+7-2*m}, s95")
        e(f"v_perm_b32 v{P+108+m}, v{P+96+6-2*m}, v{P+96+7-2*m}, s96")
    e(f"buffer_store_dwordx4 v[{P+104}:{P+107}], v{P+8}, s[76:79], 0 offen sc1")
    e(f"buffer_store_dwordx4 v[{P+108}:{P+111}], v{P+9}, s[76:79], 0 offen sc1")
    return L

def prep_gate(e):
    P = PB
    def rb(dst, src, tmp):
        e(f"v_cvt_pk_bf16_f32 v{tmp}, v{src}, v{src+1}")
        e(f"v_lshlrev_b32 v{dst}, 16, v{tmp}")
        e(f"v_and_b32 v{dst+1}, s94, v{tmp}")
    G = P + 112
    A = P + 120
    X = P + 122; T = P + 124
    for i in range(4):
        e(f"v_lshlrev_b32 v{G+2*i}, 16, v{P+52+i}")
        e(f"v_and_b32 v{G+1+2*i}, s94, v{P+52+i}")
    for row in range(2):
        q = P + 44 + 4*row
        for i in range(4):
            e(f"v_lshlrev_b32 v{X}, 16, v{q+i}")
            e(f"v_and_b32 v{X+1}, s94, v{q+i}")
            e(f"v_pk_mul_f32 v[{X}:{X+1}], v[{X}:{X+1}], v[{G+2*i}:{G+1+2*i}]")
            rb(X, X, T)
            if i == 0: e(f"v_add_f32 v{A+row}, v{X}, v{X+1}")
            else:
                e(f"v_add_f32 v{A+row}, v{A+row}, v{X}")
                e(f"v_add_f32 v{A+row}, v{A+row}, v{X+1}")
    for sh in ("row_shr:1", "row_shr:2", "row_shr:4", "row_shr:8"):
        e("s_nop 1")
        for row in range(2):
            e(f"v_add_f32_dpp v{A+row}, v{A+row}, v{A+row} {sh} bound_ctrl:0")
    e("s_nop 1")
    for row in range(2):
        e(f"v_add_f32_dpp v{A+row}, v{A+row}, v{A+row} row_bcast:15 row_mask:0xa")
    e("s_nop 1")
    for row in range(2):
        e(f"v_add_f32_dpp v{A+row}, v{A+row}, v{A+row} row_bcast:31 row_mask:0xc")
    e("s_nop 1")
    e(f"v_readlane_b32 s98, v{A}, 63")
    e(f"v_readlane_b32 s99, v{A+1}, 63")
    e("s_nop 3")
    e(f"v_mov_b32 v{A}, s98")
    e(f"v_mov_b32 v{A+1}, s99")
    rb(A, A, T)
    e(f"v_mul_f32 v{A}, 0xbfb8aa3b, v{A}")
    e(f"v_mul_f32 v{A+1}, 0xbfb8aa3b, v{A+1}")
    e(f"v_exp_f32 v{A}, v{A}")
    e(f"v_exp_f32 v{A+1}, v{A+1}")
    e("s_nop 0")
    e(f"v_add_f32 v{A}, 1.0, v{A}")
    e(f"v_add_f32 v{A+1}, 1.0, v{A+1}")
    e(f"v_rcp_f32 v{A}, v{A}")
    e(f"v_rcp_f32 v{A+1}, v{A+1}")
    e("s_nop 0")
    rb(A, A, T)
    e("s_lshl_b32 s93, s92, 2")
    e(f"v_mov_b32 v{X}, s93")
    e("v_cmp_eq_u32 vcc, 0, v0")
    e("s_and_saveexec_b64 s[98:99], vcc")
    e(f"buffer_store_dwordx2 v[{A}:{A+1}], v{X}, s[88:91], 0 offen sc1")
    e("s_mov_b64 exec, s[98:99]")

class VM:
    def __init__(s): s.q = []
    def issue(s, tag): s.q.append(tag)
    def need(s, tags):
        idx = max([i for i, t in enumerate(s.q) if t in tags] + [-1])
        return len(s.q) - 1 - idx
    def clear(s): s.q = []

CNT_H, CNT_U, CNT_Z = 0, 32, 48
SWAP = int(os.environ.get('SWAP','0'))
PRIOA = int(os.environ.get('PRIOA','2'))
PRIOB = int(os.environ.get('PRIOB','0'))
PF = int(os.environ.get('PF','1'))
G1ONLY = int(os.environ.get('G1ONLY','0'))
NOTR = int(os.environ.get('NOTR','0'))
NOMF = int(os.environ.get('NOMF','0'))
NOLDS = int(os.environ.get('NOLDS','0'))
NOBAR = int(os.environ.get('NOBAR','0'))
ROT = int(os.environ.get('ROT','1'))
NOVM = int(os.environ.get('NOVM','0'))
NODMA = int(os.environ.get('NODMA','0'))
REP2 = int(os.environ.get('REP2','0'))
G2W = int(os.environ.get('G2W','6'))
EARLYW = int(os.environ.get('EARLYW','1'))
PP = int(os.environ.get('PP','0'))
KLATE = int(os.environ.get('KLATE','0'))
ZE = int(os.environ.get('ZE','1'))
FST = int(os.environ.get('FST','0'))
NQ = int(os.environ.get('NQ','3'))
PST = int(os.environ.get('PST','0'))
UPF = int(os.environ.get('UPF','99'))
UT = int(os.environ.get('UT','1'))
KD = int(os.environ.get('KD','0'))
DBG = int(os.environ.get('DBG','-1'))
PW = int(os.environ.get('PW','1'))
PFD = int(os.environ.get('PFD','0'))
GL = int(os.environ.get('GL','1'))
PRIOB3 = int(os.environ.get('PRIOB3','-1'))
WF = int(os.environ.get('WF','0'))
PFSL = int(os.environ.get('PFSL','1'))
MAP2 = int(os.environ.get('MAP2','0'))
BSTOP = int(os.environ.get('BSTOP','0'))
PSL = int(os.environ.get('PSL','8'))
SLEEP0 = int(os.environ.get('SLEEP0','1'))
WS_F = 0xF00000
F_H, F_U, F_Z = 0, 0x8000, 0x10000
SV = 15

def get_nonce(e, lab, dbg, vr, st):
    e.lab(lab)
    e(f"v_mov_b32 v{vr+1}, 0")
    e(f"buffer_load_dwordx2 v[{vr}:{vr+1}], v{vr+1}, s[{dbg}:{dbg+3}], 0 offen sc1")
    e("s_waitcnt vmcnt(0)")
    e(f"v_readfirstlane_b32 s{st}, v{vr}")
    e(f"s_cmp_lg_u32 s{st}, 0")
    e(f"s_cbranch_scc1 {lab}_OK")
    e("s_sleep 4")
    e(f"s_branch {lab}")
    e.lab(lab + "_OK")

def gen_typeA(e):
    e("s_load_dwordx2 s[4:5], s[0:1], 0")
    e("s_load_dwordx2 s[14:15], s[0:1], 56")
    e("s_load_dwordx2 s[18:19], s[0:1], 96")
    e("s_load_dwordx4 s[64:67], s[0:1], 64")
    e("s_load_dwordx4 s[68:71], s[0:1], 80")
    if PRIOA: e(f"s_setprio {PRIOA}")
    e("s_and_b32 s21, s2, 7")
    e("s_lshr_b32 s22, s2, 3")
    if MAP2:
        e("s_mul_i32 s23, s22, 37")
        e("s_lshr_b32 s23, s23, 8")
        e("s_lshr_b32 s25, s21, 1")
        e("s_lshl_b32 s25, s25, 2")
        e("s_add_u32 s25, s25, s23")
        e("s_mul_i32 s23, s23, 7")
        e("s_sub_u32 s26, s22, s23")
        e("s_and_b32 s23, s21, 1")
        e("s_mul_i32 s23, s23, 7")
        e("s_add_u32 s26, s26, s23")
    else:
        e("s_cmp_ge_u32 s22, 14")
        e("s_cselect_b32 s23, 1, 0")
        e("s_lshl_b32 s25, s21, 1")
        e("s_add_u32 s25, s25, s23")
        e("s_mul_i32 s23, s23, 14")
        e("s_sub_u32 s26, s22, s23")
    e("s_lshl_b32 s48, s21, 2")
    e("s_lshr_b32 s49, s22, 3")
    e("s_add_u32 s48, s48, s49")
    e("s_and_b32 s49, s22, 7")
    S = 5
    e("s_mul_i32 s56, s20, %d" % (S*4096))
    e("s_lshl_b32 s57, s48, 1")
    e("s_mul_i32 s57, s57, 112")
    e("s_mul_i32 s58, s20, 28")
    e("s_add_u32 s57, s57, s58")
    e("s_lshl_b32 s57, s57, 10")
    e("s_add_u32 s58, s57, %d" % (112*1024))
    e("s_waitcnt lgkmcnt(0)")
    stamp(e, 0, SV)
    if PST and PROF: e(f"v_writelane_b32 v{SV}, s38, 12")
    srd(e, 28, 4, 2048*1024)
    srd(e, 32, 14, 512*3584)
    srd(e, 72, 64, 1792*1024)
    srd(e, 76, 18, WS_H_SIZE, WS_H)
    srd(e, 80, 18, 512*4096, WS_Z)
    srd(e, 84, 18, 8192, WS_G)
    srd(e, 88, 4, 2048*1024)
    srd(e, 92, 70, 256)
    srd(e, 96, 68, 2048*1024)
    srd(e, 52, 18, 0x18000, WS_F)
    e("v_mov_b32 v1, 0")
    e("s_or_b32 s46, s2, s20")
    e("s_cmp_lg_u32 s46, 0")
    e("s_cbranch_scc1 A_NOPUB")
    e("s_memrealtime s[46:47]")
    e("s_waitcnt lgkmcnt(0)")
    e("s_or_b32 s46, s46, 1")
    e("v_mov_b32 v2, s46")
    e("v_mov_b32 v3, s47")
    e("s_mov_b64 exec, 1")
    e("buffer_store_dwordx2 v[2:3], v1, s[92:95], 0 offen sc1")
    e("s_mov_b64 exec, -1")
    e.lab("A_NOPUB")
    e("v_mov_b32 v1, 0")
    e("buffer_load_dwordx2 v[22:23], v1, s[92:95], 0 offen sc1")
    if PF & 1:
        e("s_lshr_b32 s46, s2, 3")
        e("s_lshl_b32 s46, s46, 2")
        e("s_add_u32 s46, s46, s20")
        e("s_lshl_b32 s46, s46, 13")
        e("v_lshlrev_b32 v1, 7, v0")
        e("buffer_load_dword v24, v1, s[32:35], s46 offen")
    if PF & 32:
        srd(e, 60, 18, 16 << 20)
        e("v_lshlrev_b32 v1, 20, v0")
        e("buffer_load_dword v24, v1, s[60:63], 0 offen")
        e("buffer_load_dword v24, v1, s[72:75], 0 offen")
        e("buffer_load_dword v24, v1, s[96:99], 0 offen")
    if PF & 4:
        e("s_lshr_b32 s46, s2, 3")
        e("s_cmp_ge_u32 s46, 8")
        e("s_cbranch_scc1 A_NOQPF")
        e("s_lshl_b32 s46, s46, 2")
        e("s_add_u32 s46, s46, s20")
        e("s_lshl_b32 s46, s46, 13")
        e("s_lshl_b32 s47, s21, 18")
        e("s_add_u32 s46, s46, s47")
        e("v_lshlrev_b32 v1, 7, v0")
        e("buffer_load_dword v24, v1, s[28:31], s46 offen")
        e.lab("A_NOQPF")
    e("s_cmp_ge_u32 s2, 224")
    if PF & 8:
        e("s_cbranch_scc0 A_G1")
        for _ in range(PFSL): e("s_sleep 64")
        e("s_sub_u32 s46, s2, 224")
        e("s_lshr_b32 s46, s46, 3")
        e("s_mul_i32 s46, s46, %d" % (3584*128))
        e("s_lshl_b32 s47, s20, 13")
        e("s_add_u32 s46, s46, s47")
        e("v_lshlrev_b32 v1, 7, v0")
        for it in range(14):
            e("buffer_load_dword v24, v1, s[72:75], s46 offen")
            if it < 13: e("s_add_u32 s46, s46, %d" % (256*128))
        e("s_branch A_PRE")
        e.lab("A_G1")
    else:
        e("s_cbranch_scc1 A_PRE_I" if PW else "s_cbranch_scc1 A_PRE")
    vm = VM()
    e("v_lshrrev_b32 v2, 3, v0")
    e("s_lshl_b32 s27, s25, 7")
    e("s_lshl_b32 s40, s20, 5")
    e("s_add_u32 s27, s27, s40")
    e("v_add_u32 v2, s27, v2")
    e("v_lshlrev_b32 v2, 10, v2")
    e("v_and_b32 v3, 7, v0")
    e("v_lshrrev_b32 v4, 4, v0")
    e("v_xor_b32 v3, v3, v4")
    e("v_lshl_add_u32 v2, v3, 4, v2")
    e("v_xor_b32 v3, 64, v2")
    e("s_lshl_b32 s40, s20, 3")
    e("v_add_u32 v5, s40, v4")
    e("s_movk_i32 s41, 3584")
    e("v_mul_lo_u32 v5, v5, s41")
    e("v_and_b32 v6, 15, v0")
    e("v_lshlrev_b32 v7, 2, v4")
    e("v_xor_b32 v6, v6, v7")
    e("v_lshl_add_u32 v5, v6, 4, v5")
    e("s_lshl_b32 s40, s26, 8")
    e("v_add_u32 v5, s40, v5")
    e("s_lshl_b32 s42, s20, 12")
    e("s_lshl_b32 s47, s20, 11")
    WB = NQ*16384
    WR = 128
    NWR = 12
    NW = 3 if NQ == 3 else 2
    def dq(c, j):
        def f():
            e(f"s_add_u32 m0, s42, {(c%NQ)*16384 + j*1024}")
            if ROT:
                e(f"s_add_u32 s43, s50, {c*128}")
                e(f"s_and_b32 s43, s43, 1023")
                e(f"s_add_u32 s43, s43, {j*8192}")
            else:
                e(f"s_mov_b32 s43, {j*8192 + c*128}")
            e(f"buffer_load_dwordx4 v{2 + (j&1)}, s[28:31], s43 offen lds")
            vm.issue(("Q", c))
        return f
    def lw1(hc, j):
        def f():
            r = WR + 8*(hc % NWR) + 4*j
            if ROT:
                e(f"s_add_u32 s43, s51, {hc}")
                e(f"s_and_b32 s43, s43, 15")
                e(f"s_mul_i32 s43, s43, {32*3584}")
                e(f"s_add_u32 s43, s43, {4*j*3584}")
            else:
                e(f"s_mov_b32 s43, {(32*hc + 4*j)*3584}")
            e(f"buffer_load_dwordx4 v[{r}:{r+3}], v5, s[32:35], s43 offen")
            vm.issue(("W", hc))
        return f
    def lw(hc):
        for j in range(2): lw1(hc, j)()
    e("s_and_b32 s51, s26, 7")
    e("s_lshl_b32 s50, s51, 7")
    e("s_lshl_b32 s51, s51, 1")
    if PST: stamp(e, 11, SV)
    if UPF >= 99:
        order = []
        for c in range(NQ): order += [("Q", c), ("W", 2*c), ("W", 2*c+1)]
        order += [("W", hc) for hc in range(2*NQ, NWR)]
    else:
        order = [("Q",0),("W",0),("W",1),("W",2),("W",3),("Q",1),("W",4),("W",5),("Q",2),("W",6),("W",7)]
        if NQ == 4: order += [("Q",3)]
        order += [("W", hc) for hc in range(8, NWR)]
    left = []
    for n, (t, i) in enumerate(order):
        fs = [dq(i, j) for j in range(4)] if t == "Q" else [lw1(i, j) for j in range(2)]
        if n < UPF:
            for f in fs: f()
        else: left += fs
    if PST: stamp(e, 13, SV)
    e("s_and_b32 s44, s20, 1")
    e("s_lshr_b32 s45, s20, 1")
    e("v_and_b32 v6, 31, v0")
    e("v_lshrrev_b32 v7, 5, v0")
    e("v_bfe_u32 v8, v0, 1, 3")
    e("v_xor_b32 v8, v8, v7")
    e("v_lshlrev_b32 v8, 4, v8")
    e("v_lshl_add_u32 v8, v6, 7, v8")
    e("s_lshl_b32 s46, s44, 13")
    e("v_add_u32 v8, s46, v8")
    for k in range(4):
        e(f"v_xor_b32 v{10+k}, {32*k}, v8")
    e("v_bfe_u32 v6, v0, 2, 2")
    e("v_lshrrev_b32 v7, 5, v0")
    e("v_lshl_add_u32 v7, v7, 3, v6")
    e("v_lshlrev_b32 v7, 8, v7")
    e("v_bfe_u32 v9, v0, 4, 1")
    e("v_lshl_add_u32 v7, v9, 5, v7")
    e("v_and_b32 v9, 3, v0")
    e("v_lshl_add_u32 v7, v9, 3, v7")
    e(f"v_add_u32 v7, {WB}, v7")
    e("s_lshl_b32 s46, s45, 1")
    e("v_xor_b32 v9, s46, v6")
    e("v_lshl_add_u32 v18, v9, 6, v7")
    e("v_xor_b32 v19, 64, v18")
    e("v_lshlrev_b32 v20, 4, v0")
    e("v_add_u32 v20, s47, v20")
    e(f"v_add_u32 v20, {WB}, v20")
    ACC = 64
    for i in range(64):
        e(f"v_mov_b32 v{ACC+i}, 0")
    FR = [32, 48, 224]
    lg = VM()
    def ww_l(hc):
        L = []
        for j in range(2):
            def f(j=j):
                r = WR + 8*(hc % NWR) + 4*j
                e(f"ds_write_b128 v20, v[{r}:{r+3}] offset:{(hc%NW)*8192 + j*1024}")
                lg.issue(("w", hc))
            L.append(f)
        return L
    def ww(hc):
        for f in ww_l(hc): f()
    def rf_l(step):
        if NOLDS: return []
        c, k, hc, kk = step >> 2, step & 3, step >> 1, step & 1
        b = FR[step % 3]
        LQ = []; LW = []
        for tj in range(2):
            def f(tj=tj):
                e(f"ds_read_b128 v[{b+8+4*tj}:{b+11+4*tj}], v{10+k} offset:{(c%NQ)*16384 + tj*4096}")
                lg.issue(("r", step))
            LQ.append(f)
        for fi in range(2):
            for h in range(2):
                def f(fi=fi, h=h):
                    e(f"ds_read_b64_tr_b16 v[{b+4*fi+2*h}:{b+4*fi+2*h+1}], v{18+fi} offset:{(hc%NW)*8192 + kk*4096 + h*1024}")
                    lg.issue(("rw", step))
                LW.append(f)
        return (LQ + LW) if NW == 3 else (LW + LQ)
    def read_frags(step):
        for f in rf_l(step): f()
    pend = list(left)
    def mfmas(step, ldsops):
        b = FR[step % 3]
        n = 0
        per = (len(ldsops) + 3) // 4
        for fi in range(2):
            for tj in range(2):
                d = ACC + 16*(2*fi+tj)
                if not NOMF: e(f"v_mfma_f32_32x32x16_bf16 v[{d}:{d+15}], v[{b+4*fi}:{b+4*fi+3}], v[{b+8+4*tj}:{b+8+4*tj+3}], v[{d}:{d+15}]")
                for _ in range(per):
                    if ldsops: ldsops.pop(0)()
                if pend:
                    f = pend.pop(0)
                    if not NODMA: f()
    stamp(e, 1, SV)
    e(f"s_waitcnt vmcnt({vm.need([('Q',0),('W',0),('W',1)])})")
    ww(0); ww(1)
    e("s_waitcnt lgkmcnt(0)")
    lg.clear()
    if REP2:
        e("s_mov_b32 s46, 0")
        e.lab("A_REP")
    stamp(e, 2, SV)
    if G1ONLY:
        e("s_memtime s[100:101]"); e("s_waitcnt lgkmcnt(0)"); e(f"v_writelane_b32 v{SV}, s100, 10")
    e("s_barrier")
    read_frags(0); read_frags(1)
    NS = 32
    for step in range(NS):
        hc, c = step >> 1, step >> 2
        e(f"s_waitcnt lgkmcnt({lg.need([('r', step), ('rw', step)] + ([('rw', step+1)] if (NW == 2 and step & 1 == 0) else []))})")
        ops = []
        if step & 1 == 0:
            tags = []
            if hc >= 1:
                if hc & 1 and (hc+1) >> 1 < 8: tags.append(("Q", (hc+1) >> 1))
            if hc + 2 < 16: tags.append(("W", hc+2))
            if hc == 0: tags.append(("Q", 0))
            for t in tags: assert vm.q.count(t) == (4 if t[0] == "Q" else 2), (t, step)
            if tags and not NOVM: e(f"s_waitcnt vmcnt({min(63, vm.need(tags))})")
            if hc >= 1 or NW == 2:
                if not NOBAR: e("s_barrier")
                if hc in (4, 8, 12):
                    stamp(e, 2 + hc//4, SV); lg.clear()
            if hc + 2 < 16: ops += ww_l(hc + 2)
            if hc + NWR - 0 < 16 and hc >= 0:
                for j in range(2): pend.append(lw1(hc + NWR, j))
            if hc >= 2 and hc & 1 == 0 and (hc - 2)//2 + NQ < 8:
                for j in range(4): pend.append(dq((hc-2)//2 + NQ, j))
        if step + 2 < NS: ops = ops + rf_l(step + 2)
        mfmas(step, ops)
    e("s_barrier")
    assert not pend
    stamp(e, 6, SV)
    if G1ONLY:
        e("s_memtime s[100:101]"); e("s_waitcnt lgkmcnt(0)"); e(f"v_writelane_b32 v{SV}, s100, 11")
    if REP2:
        e("s_add_u32 s46, s46, 1")
        e("s_cmp_lt_u32 s46, 2")
        e("s_cbranch_scc1 A_REP")
    def issue(ci):
        sl = ci % S
        for jj in range(4):
            e(f"s_add_u32 m0, s56, {sl*4096 + jj*1024}")
            e(f"s_mov_b32 s59, {(32*ci + 8*jj)*1024}")
            e(f"buffer_load_dwordx4 v208, s[72:75], s59 offen lds")
            vm.issue(("w2", ci))
    def pre_issue():
        e("v_lshrrev_b32 v2, 3, v0")
        e("s_mul_i32 s46, s20, 448")
        e("v_add_u32 v2, s46, v2")
        e("v_lshlrev_b32 v2, 10, v2")
        e("v_and_b32 v3, 7, v0")
        e("v_bfe_u32 v4, v0, 4, 1")
        e("v_lshlrev_b32 v4, 2, v4")
        e("v_xor_b32 v3, v3, v4")
        e("v_lshl_add_u32 v2, v3, 4, v2")
        e("s_lshl_b32 s46, s49, 7")
        e("v_add_u32 v208, s46, v2")
        e("v_lshlrev_b32 v209, 4, v0")
        for ci in range(S): issue(ci)
    if EARLYW: pre_issue()
    e("v_lshlrev_b32 v209, 4, v0")
    e("s_lshl_b32 s46, s25, 2")
    e("s_lshl_b32 s47, s44, 1")
    e("s_add_u32 s46, s46, s47")
    e("s_mul_i32 s46, s46, 112")
    e("s_lshl_b32 s47, s26, 3")
    e("s_add_u32 s46, s46, s47")
    e("s_lshl_b32 s47, s45, 2")
    e("s_add_u32 s46, s46, s47")
    e("s_lshl_b32 s46, s46, 10")
    e("v_add_u32 v2, s46, v209")
    e("v_add_u32 v3, 112*1024, v2")
    for fi in range(2):
        for tj in range(2):
            d = ACC + 16*(2*fi+tj)
            for kq in range(2):
                p = 32 + 4*((2*tj+kq) & 3)
                for x in range(4):
                    i0 = d + 8*kq + 2*x
                    e(f"v_max_f32 v{i0}, 0, v{i0}")
                    e(f"v_max_f32 v{i0+1}, 0, v{i0+1}")
                for x in range(4):
                    i0 = d + 8*kq + 2*x
                    e(f"v_cvt_pk_bf16_f32 v{p+x}, v{i0}, v{i0+1}")
                e("s_nop 1")
                e(f"v_permlane32_swap_b32 v{p}, v{p+2}")
                e(f"v_permlane32_swap_b32 v{p+1}, v{p+3}")
                e(f"buffer_store_dwordx4 v[{p}:{p+3}], v{2+tj}, s[76:79], 0 offen offset:{(2*fi+kq)*1024} sc1")
    stamp(e, 7, SV)
    e("s_waitcnt vmcnt(0)")
    if not WF: e("s_barrier")
    stamp(e, 8, SV)
    if not WF:
        e("s_cmp_lg_u32 s20, 0")
        e("s_cbranch_scc1 A_PRE")
    e("v_mov_b32 v220, v22")
    e("v_mov_b32 v221, v23")
    e("v_readfirstlane_b32 s46, v22")
    e("s_cmp_lg_u32 s46, 0")
    e("s_cbranch_scc1 A_N1_OK")
    get_nonce(e, "A_N1", 92, 220, 46)
    e("s_lshl_b32 s46, s25, 4")
    e("s_add_u32 s46, s46, s26")
    e("s_lshl_b32 s46, s46, 7")
    if WF:
        e("s_lshl_b32 s47, s20, 3")
        e("s_add_u32 s46, s46, s47")
    e("v_mov_b32 v1, s46")
    e("s_mov_b64 exec, 1")
    e(f"buffer_store_dwordx2 v[220:221], v1, s[52:55], 0 offen offset:{F_H} sc1")
    e("s_mov_b64 exec, -1")
    if EARLYW: e("s_branch A_PRE2")
    if PW:
        e("s_branch A_PRE")
        e.lab("A_PRE_I")
        e("s_waitcnt vmcnt(0)")
    e.lab("A_PRE")
    pre_issue()
    e.lab("A_PRE2")
    if PW:
        if WF:
            e("s_cmp_lt_u32 s2, 224")
        else:
            e("s_cmp_eq_u32 s20, 0")
            e("s_cselect_b32 s47, s2, 255")
            e("s_cmp_lt_u32 s47, 224")
        e("s_cbranch_scc1 A_N3_OK")
        e("v_mov_b32 v220, v22")
        e("v_mov_b32 v221, v23")
        e("v_readfirstlane_b32 s46, v22")
        e("s_cmp_lg_u32 s46, 0")
        e("s_cbranch_scc1 A_N3_OK")
        get_nonce(e, "A_N3", 92, 220, 46)
    e.lab("A_POLL")
    if G1ONLY:
        stamp_store(e, SV, 0, 18)
        e("s_endpgm")
    HB = 128
    BLK = [16, 32, 48, 128, 144, 160, 176, 192, 224, 240]
    def issue_h(ci):
        sl = ci % S
        e(f"s_add_u32 s59, s57, {ci*2048}")
        e(f"s_add_u32 s60, s58, {ci*2048}")
        for kl in range(2):
            for tj in range(2):
                r = HB + 16*sl + 8*kl + 4*tj
                e(f"buffer_load_dwordx4 v[{r}:{r+3}], v209, s[76:79], s{59+tj} offen offset:{kl*1024}")
                vm.issue(("h", ci))
    e("v_bfe_u32 v6, v0, 2, 2")
    e("v_lshrrev_b32 v7, 5, v0")
    e("v_lshl_add_u32 v7, v7, 3, v6")
    e("v_lshlrev_b32 v7, 7, v7")
    e("v_bfe_u32 v9, v0, 4, 1")
    e("v_lshl_add_u32 v7, v9, 5, v7")
    e("v_and_b32 v9, 3, v0")
    e("v_lshl_add_u32 v7, v9, 3, v7")
    e("v_lshrrev_b32 v9, 1, v6")
    e("v_lshl_add_u32 v8, v9, 6, v7")
    e("v_add_u32 v8, s56, v8")
    e("v_xor_b32 v9, 64, v8")
    e("v_and_b32 v10, 15, v0")
    e("v_lshrrev_b32 v11, 4, v0")
    e("s_lshl_b32 s59, s48, 6")
    e("s_lshl_b32 s60, s20, 4")
    e("s_add_u32 s59, s59, s60")
    e("v_add_u32 v12, s59, v10")
    e("v_lshlrev_b32 v13, 10, v12")
    e("v_lshl_add_u32 v13, v11, 4, v13")
    e("s_lshl_b32 s60, s49, 7")
    e("v_add_u32 v13, s60, v13")
    e("buffer_load_dwordx4 v[212:215], v13, s[88:91], 0 offen"); vm.issue(("q", 0))
    e("buffer_load_dwordx4 v[216:219], v13, s[88:91], 0 offen offset:64"); vm.issue(("q", 1))
    e("v_lshlrev_b32 v14, 2, v12")
    ACC = 64
    def treads(ci, b):
        sl = ci % S
        L = []
        for kl in range(2):
            for di in range(2):
                for h in range(2):
                    r = b + 8*kl + 4*di + 2*h
                    L.append(f"ds_read_b64_tr_b16 v[{r}:{r+1}], v{8+di} offset:{sl*4096 + kl*2048 + h*512}")
        return L
    for ci in range(G2W):
        e(f"s_waitcnt vmcnt({vm.need([('w2', ci)])})")
        for x in treads(ci, BLK[ci]): e(x)
        e("s_waitcnt lgkmcnt(0)")
        issue(ci + S)
    e("s_lshr_b32 s60, s48, 1")
    e("s_lshl_b32 s60, s60, 4")
    if PW:
        e("s_mul_i32 s61, s20, 7")
        e("s_lshr_b32 s61, s61, 1")
        e("s_add_u32 s60, s60, s61")
        if WF:
            e("v_min_u32 v7, 7, v0")
            e("v_lshrrev_b32 v6, 1, v7")
            e("v_add_u32 v6, s60, v6")
            e("v_lshlrev_b32 v6, 7, v6")
            e("v_and_b32 v7, 1, v7")
            e("v_lshl_add_u32 v6, v7, 4, v6")
            e("s_and_b32 s61, s48, 1")
            e("s_lshl_b32 s61, s61, 3")
            e("v_add_u32 v6, s61, v6")
        else:
            e("v_min_u32 v6, 3, v0")
            e("v_add_u32 v6, s60, v6")
            e("v_lshlrev_b32 v6, 7, v6")
    else:
        e("v_min_u32 v6, 13, v0")
        e("v_add_u32 v6, s60, v6")
        e("v_lshlrev_b32 v6, 7, v6")
        e("s_cmp_lg_u32 s20, 0")
        e("s_cbranch_scc1 A_HG")
        e("s_cmp_lt_u32 s2, 224")
        e("s_cbranch_scc1 A_HP")
        for _ in range(SLEEP0): e("s_sleep 64")
        get_nonce(e, "A_N2", 92, 220, 46)
    e.lab("A_HP")
    if PP:
        R = [222, 210, 2, 4]
        for k in range(3):
            e(f"buffer_load_dwordx2 v[{R[k]}:{R[k]+1}], v6, s[52:55], 0 offen offset:{F_H} sc1")
            e(f"s_sleep {PP}")
        e.lab("A_HPL")
        for k in range(4):
            n = R[(k + 3) % 4]; o = R[k]
            e(f"buffer_load_dwordx2 v[{n}:{n+1}], v6, s[52:55], 0 offen offset:{F_H} sc1")
            e("s_waitcnt vmcnt(3)")
            e(f"v_cmp_ne_u32 vcc, v{o}, v220")
            e(f"v_cmp_ne_u32 s[60:61], v{o+1}, v221")
            e("s_nop 1")
            e("s_or_b64 vcc, vcc, s[60:61]")
            e("s_cmp_eq_u64 vcc, 0")
            e("s_cbranch_scc1 A_HG2")
            e(f"s_sleep {PP}")
        e("s_branch A_HPL")
    else:
        e(f"buffer_load_dwordx2 v[222:223], v6, s[52:55], 0 offen offset:{F_H} sc1")
        e("s_waitcnt vmcnt(0)")
        e("v_cmp_ne_u32 vcc, v222, v220")
        e("v_cmp_ne_u32 s[60:61], v223, v221")
        e("s_nop 1")
        e("s_or_b64 vcc, vcc, s[60:61]")
        e("s_cmp_eq_u64 vcc, 0")
        e("s_cbranch_scc1 A_HG")
        e(f"s_sleep {PSL}")
        e("s_branch A_HP")
    e.lab("A_HG")
    e("s_waitcnt vmcnt(0)")
    e.lab("A_HG2")
    vm.clear()
    if not PW:
        e("s_barrier")
        e("v_mov_b32 v1, 0")
        e("buffer_load_dwordx2 v[220:221], v1, s[92:95], 0 offen sc1")
        vm.issue(("nonce", 0))
    def issue_hb_l(ci, b):
        L = []
        for kl in range(2):
            for tj in range(2):
                def f(kl=kl, tj=tj):
                    r = b + 8*kl + 4*tj
                    e(f"s_add_u32 s60, s{57+tj}, {ci*2048}")
                    e(f"buffer_load_dwordx4 v[{r}:{r+3}], v209, s[76:79], s60 offen offset:{kl*1024}")
                    vm.issue(("h", ci))
                L.append(f)
        return L
    if G2W:
        Wb = {c: BLK[c] for c in range(G2W)}
        Hb = {}
        free = BLK[G2W:]
        nh = 0
        while free:
            Hb[nh] = free.pop(0)
            for f in issue_hb_l(nh, Hb[nh]): f()
            nh += 1
    else:
        for ci in range(S): issue_h(ci)
    stamp(e, 9, SV)
    for i in range(64): e(f"v_mov_b32 v{ACC+i}, 0")
    e("s_lshl_b32 s60, s49, 5")
    e("v_add_u32 v6, s60, v0")
    e("v_lshlrev_b32 v6, 7, v6")
    e(f"v_add_u32 v6, {F_Z}, v6")
    e("v_and_b32 v7, 7, v0")
    if GL:
        e("v_lshlrev_b32 v7, 5, v7")
        e("v_add_u32 v7, s48, v7")
        e("v_lshlrev_b32 v7, 7, v7")
        e(f"v_add_u32 v7, {F_Z}, v7")
    else:
        e("s_lshl_b32 s60, s48, 3")
        e("v_add_u32 v7, s60, v7")
        e("v_lshlrev_b32 v7, 7, v7")
        e(f"v_add_u32 v7, {F_U}, v7")
    e("v_cmp_gt_u32 vcc, 32, v0")
    e("v_cndmask_b32 v6, v7, v6, vcc")
    e("s_lshl_b32 s60, s49, 6")
    e("v_lshl_add_u32 v7, v11, 3, s60")
    e("v_lshlrev_b32 v7, 12, v7")
    e("v_lshl_add_u32 v7, v12, 1, v7")
    ZB, GV = 32, 210
    def zloads_l(track):
        L = []
        for p in range(2):
            for i in range(8):
                def f(p=p, i=i):
                    e(f"s_mov_b32 s60, {(32*p + i)*4096}")
                    e(f"buffer_load_ushort v{ZB+8*p+i}, v7, s[80:83], s60 offen sc1")
                    if track: vm.issue(("z", 0))
                L.append(f)
        def f():
            e(f"buffer_load_dword v{GV}, v14, s[84:87], 0 offen sc1")
            if track: vm.issue(("z", 0))
        L.append(f)
        return L
    ZS = 8
    FR = [16, 32]
    def reads_l(ci):
        b = FR[ci & 1]; sl = ci % S
        L = []
        for kl in range(2):
            for di in range(2):
                for h in range(2):
                    r = b + 8*kl + 4*di + 2*h
                    L.append(f"ds_read_b64_tr_b16 v[{r}:{r+1}], v{8+di} offset:{sl*4096 + kl*2048 + h*512}")
        return L
    def issue_l(ci):
        L = []
        sl = ci % S
        for jj in range(4):
            def f(jj=jj):
                e(f"s_add_u32 m0, s56, {sl*4096 + jj*1024}")
                e(f"s_mov_b32 s59, {(32*ci + 8*jj)*1024}")
                e(f"buffer_load_dwordx4 v208, s[72:75], s59 offen lds")
                vm.issue(("w2", ci))
            L.append(f)
        return L
    def issue_h_l(ci):
        L = []
        sl = ci % S
        for kl in range(2):
            for tj in range(2):
                def f(kl=kl, tj=tj):
                    r = HB + 16*sl + 8*kl + 4*tj
                    e(f"s_add_u32 s60, s{57+tj}, {ci*2048}")
                    e(f"buffer_load_dwordx4 v[{r}:{r+3}], v209, s[76:79], s60 offen offset:{kl*1024}")
                    vm.issue(("h", ci))
                L.append(f)
        return L
    NCH = 14
    if G2W:
        for ci in range(NCH):
            tags = [("h", ci)] + ([("w2", ci+1)] if (ci + 1 < NCH and ci + 1 >= G2W + S) else [])
            if ZE and ci == ZS + 2: tags.append(("zf", 0))
            e(f"s_waitcnt vmcnt({vm.need(tags)}) lgkmcnt(0)")
            rl = []; dl = []
            if ZE and ci == ZS + 2:
                e("v_cmp_ne_u32 vcc, v222, v220")
                e("v_cmp_ne_u32 s[60:61], v223, v221")
                e("s_nop 1")
                e("s_or_b64 s[62:63], vcc, s[60:61]")
                dl += zloads_l(True)
            if ci + 1 < NCH and ci + 1 >= G2W:
                Wb[ci+1] = free.pop(0)
                rl = treads(ci + 1, Wb[ci+1])
            while free and nh < NCH:
                Hb[nh] = free.pop(0)
                dl += issue_hb_l(nh, Hb[nh]); nh += 1
            if ci >= G2W and ci + S < NCH: dl += issue_l(ci + S)
            if ci == (ZS if ZE else 10):
                e("buffer_load_dwordx2 v[222:223], v6, s[52:55], 0 offen sc1"); vm.issue(("zf",0))
            per = max(2, (len(dl) + 7) // 8)
            for kl in range(2):
                for di in range(2):
                    for tj in range(2):
                        d = ACC + 16*(2*di+tj)
                        a = Wb[ci] + 8*kl + 4*di
                        hr = Hb[ci] + 8*kl + 4*tj
                        e(f"v_mfma_f32_32x32x16_bf16 v[{d}:{d+15}], v[{a}:{a+3}], v[{hr}:{hr+3}], v[{d}:{d+15}]")
                        for _ in range(2):
                            if rl: e(rl.pop(0))
                        for _ in range(per):
                            if dl: dl.pop(0)()
            assert not rl and not dl
            free += [Wb[ci], Hb[ci]]
            if ZE and ci == ZS:
                ZB = Hb[ci]; free.remove(ZB)
        assert nh == NCH
    else:
      for x in reads_l(0): e(x)
    hq = []
    for ci in range(0 if G2W else NCH):
        tags = [("h", ci)] + ([("w2", ci+1)] if ci + 1 < NCH else [])
        e(f"s_waitcnt vmcnt({vm.need(tags)}) lgkmcnt(0)")
        rl = reads_l(ci + 1) if ci + 1 < NCH else []
        dl = issue_l(ci + S) if ci + S < NCH else []
        dl = hq + dl
        hq = issue_h_l(ci + S) if ci + S < NCH else []
        if ci == 10:
            e("buffer_load_dwordx2 v[222:223], v6, s[52:55], 0 offen sc1"); vm.issue(("zf",0))
        b = FR[ci & 1]; sl = ci % S
        for kl in range(2):
            for di in range(2):
                for tj in range(2):
                    d = ACC + 16*(2*di+tj)
                    a = b + 8*kl + 4*di
                    hr = HB + 16*sl + 8*kl + 4*tj
                    e(f"v_mfma_f32_32x32x16_bf16 v[{d}:{d+15}], v[{a}:{a+3}], v[{hr}:{hr+3}], v[{d}:{d+15}]")
                    if rl: e(rl.pop(0))
                    if rl: e(rl.pop(0))
                    if dl: dl.pop(0)()
        assert not rl and not dl
    assert not hq
    stamp(e, 10, SV)
    if ZE and G2W:
        e("s_cmp_eq_u64 s[62:63], 0")
        e("s_cbranch_scc1 G2_ZOK")
    e("s_waitcnt vmcnt(0)")
    e("s_branch G2_CHK")
    e.lab("G2_POLL")
    e(f"s_sleep {PSL}")
    e("buffer_load_dwordx2 v[222:223], v6, s[52:55], 0 offen sc1")
    e("s_waitcnt vmcnt(0)")
    e.lab("G2_CHK")
    e("v_cmp_ne_u32 vcc, v222, v220")
    e("v_cmp_ne_u32 s[60:61], v223, v221")
    e("s_nop 1")
    e("s_or_b64 vcc, vcc, s[60:61]")
    e("s_cmp_eq_u64 vcc, 0")
    e("s_cbranch_scc0 G2_POLL")
    e.lab("G2_GO")
    if not FST and not PST: stamp(e, 11, SV)
    for f in zloads_l(False): f()
    e.lab("G2_ZOK")
    e("v_and_b32 v4, 31, v0")
    e("s_movk_i32 s60, 272")
    e("v_mul_lo_u32 v4, v4, s60")
    e("v_lshrrev_b32 v5, 5, v0")
    e("v_lshl_add_u32 v4, v5, 4, v4")
    e("v_add_u32 v4, s56, v4")
    for di in range(2):
        for tj in range(2):
            d = ACC + 16*(2*di+tj)
            for q in range(4):
                e(f"ds_write_b128 v4, v[{d+4*q}:{d+4*q+3}] offset:{tj*32*272 + di*128 + q*32}")
    e("s_waitcnt lgkmcnt(0)")
    e("s_barrier")
    if FST: stamp(e, 11, SV)
    e("s_lshl_b32 s60, s20, 4")
    e("v_add_u32 v5, s60, v10")
    e("s_movk_i32 s60, 272")
    e("v_mul_lo_u32 v5, v5, s60")
    e("v_lshl_add_u32 v5, v11, 5, v5")
    for pw in range(4):
        for p in range(2):
            for hh in range(2):
                r = 64 + 16*pw + 8*p + 4*hh
                e(f"ds_read_b128 v[{r}:{r+3}], v5 offset:{pw*S*4096 + p*128 + hh*16}")
    e("s_waitcnt lgkmcnt(0)")
    for i in range(16):
        e(f"v_add_f32 v{64+i}, v{64+i}, v{80+i}")
        e(f"v_add_f32 v{96+i}, v{96+i}, v{112+i}")
    for i in range(16):
        e(f"v_add_f32 v{64+i}, v{64+i}, v{96+i}")
    if FST: stamp(e, 13, SV)
    e("s_mov_b32 s62, 0xffff0000")
    def rb(a, t):
        e(f"v_cvt_pk_bf16_f32 v{t}, v{a}, v{a+1}")
        e(f"v_lshlrev_b32 v{a}, 16, v{t}")
        e(f"v_and_b32 v{a+1}, s62, v{t}")
    for i in range(8): rb(64+2*i, 25)
    e("s_waitcnt vmcnt(0)")
    e(f"v_sub_f32 v26, 1.0, v{GV}")
    e("v_mov_b32 v27, v26")
    rb(26, 25)
    for i in range(16): e(f"v_mul_f32 v{64+i}, v{64+i}, v26")
    for i in range(8): rb(64+2*i, 25)
    for p in range(2):
        for i in range(4):
            qv = 212 + 4*p + i
            z0 = ZB + 8*p + 2*i
            e(f"v_lshlrev_b32 v96, 16, v{qv}")
            e(f"v_and_b32 v97, s62, v{qv}")
            e(f"v_lshlrev_b32 v98, 16, v{z0}")
            e(f"v_lshlrev_b32 v99, 16, v{z0+1}")
            e("v_mul_f32 v96, v96, v98")
            e("v_mul_f32 v97, v97, v99")
            rb(96, 25)
            e(f"v_mul_f32 v96, v96, v{GV}")
            e(f"v_mul_f32 v97, v97, v{GV}")
            rb(96, 25)
            o = 64 + 8*p + 2*i
            e(f"v_add_f32 v96, v96, v{o}")
            e(f"v_add_f32 v97, v97, v{o+1}")
            e(f"v_cvt_pk_bf16_f32 v{100+4*p+i}, v96, v97")
        e(f"buffer_store_dwordx4 v[{100+4*p}:{103+4*p}], v13, s[96:99], 0 offen offset:{64*p} sc1 nt")
    if not PST: stamp(e, 12, SV)
    if PROF and not FST: e("s_waitcnt vmcnt(0)")
    if not FST and not PST: stamp(e, 13, SV)
    stamp_store(e, SV, 0, 18)
    if DBG >= 0:
        e(f"s_cmp_lg_u32 s2, {DBG}")
        e("s_cbranch_scc1 A_DBGX")
        e("s_cmp_lg_u32 s20, 0")
        e("s_cbranch_scc1 A_DBGX")
        e("v_lshlrev_b32 v1, 2, v0")
        e("v_add_u32 v1, 8, v1")
        e("s_mov_b64 exec, 0x3fff")
        e(f"buffer_store_dword v{SV}, v1, s[92:95], 0 offen")
        e.lab("A_DBGX")
    e("s_endpgm")

def gen_typeB(e):
    CH = 29440
    KC, UR, RED = 0, 16640, 21248
    e("s_sub_u32 s2, s2, 256")
    if G1ONLY and not BSTOP: e("s_endpgm")
    e("s_load_dwordx4 s[4:7], s[0:1], 0")
    e("s_load_dwordx4 s[8:11], s[0:1], 16")
    e("s_load_dwordx4 s[12:15], s[0:1], 32")
    e("s_load_dwordx2 s[16:17], s[0:1], 72")
    e("s_load_dwordx2 s[22:23], s[0:1], 88")
    e("s_load_dwordx2 s[18:19], s[0:1], 96")
    e("s_load_dwordx4 s[56:59], s[0:1], 56")
    if PRIOB: e(f"s_setprio {PRIOB}")
    e("s_lshr_b32 s24, s20, 1")
    e("s_and_b32 s25, s20, 1")
    e("s_and_b32 s26, s2, 7")
    e("s_lshl_b32 s26, s26, 6")
    e("s_lshr_b32 s27, s2, 3")
    e("s_lshl_b32 s27, s27, 1")
    e("s_add_u32 s26, s26, s27")
    e("s_add_u32 s26, s26, s24")
    e("s_lshl_b32 s27, s26, 12")
    e("s_mul_i32 s28, s24, %d" % CH)
    e("v_lshlrev_b32 v1, 4, v0")
    e("s_waitcnt lgkmcnt(0)")
    stamp(e, 0, 13)
    prep_setup(e)
    e("s_lshr_b32 s29, s2, 3")
    e("s_lshl_b32 s29, s29, 2")
    e("s_add_u32 s29, s29, s20")
    e("s_lshl_b32 s21, s29, 13")
    if PF & 1:
        srd(e, 52, 56, 512*3584)
        e("s_lshr_b32 s29, s2, 3")
        e("s_lshl_b32 s29, s29, 2")
        e("s_add_u32 s29, s29, s20")
        e("s_lshl_b32 s21, s29, 13")
        e("s_add_u32 s29, s21, %d" % (128*8192))
        e("v_lshlrev_b32 v2, 7, v0")
        e("buffer_load_dword v12, v2, s[52:55], s29 offen")
        e("s_and_b32 s30, s2, 7")
        e("s_lshl_b32 s30, s30, 18")
        e("s_add_u32 s30, s30, s21")
        e("s_sub_u32 s30, s30, %d" % (96*8192))
        e("s_cmp_lt_u32 s21, %d" % (96*8192))
        e("s_cbranch_scc1 B_NOQ")
        e("buffer_load_dword v12, v2, s[80:83], s30 offen")
        e.lab("B_NOQ")
    e("s_add_u32 s32, s12, s27"); e("s_addc_u32 s33, s13, 0"); e("s_mov_b32 s34, 4096"); e("s_mov_b32 s35, 0x00020000")
    srd(e, 36, 18, 512*4096, WS_U)
    srd(e, 40, 18, 512*4096, WS_Z)
    srd(e, 44, 14, 1024)
    srd(e, 48, 22, 256)
    srd(e, 60, 18, 0x18000, WS_F)
    def kloads():
        e("s_lshl_b32 s29, s26, 1")
        e("v_mov_b32 v2, s29")
        e("buffer_load_ushort v3, v2, s[44:47], 0 offen")
        if KD:
            KR, KRS = 68608, 4224
            e("s_mul_i32 s29, s24, %d" % KRS)
            e(f"s_add_u32 s29, s29, {KR}")
            e("s_lshl_b32 s30, s25, 11")
            e("s_add_u32 s31, s29, s30")
            e("s_add_u32 m0, s31, 32")
            e("s_nop 0")
            e("buffer_load_dwordx4 v1, s[32:35], s30 offen lds")
            e("s_add_u32 m0, s31, 1056")
            e("s_nop 0")
            e("buffer_load_dwordx4 v1, s[32:35], s30 offen offset:1024 lds")
            e("v_and_b32 v4, 1, v0")
            e("v_lshlrev_b32 v4, 4, v4")
            e("v_add_u32 v5, 4128, v1")
            e("s_cmp_eq_u32 s25, 0")
            e("s_cselect_b64 vcc, -1, 0")
            e("v_cndmask_b32 v4, v5, v4, vcc")
            e("v_add_u32 v4, s29, v4")
            for i in range(4): e(f"v_mov_b32 v{8+i}, 0")
            e("v_cmp_gt_u32 vcc, 4, v0")
            e("s_and_saveexec_b64 s[52:53], vcc")
            e("ds_write_b128 v4, v[8:11]")
            e("s_mov_b64 exec, s[52:53]")
            e("s_lshl_b32 s30, s25, 10")
            e("s_add_u32 s30, s30, s29")
            e("v_add_u32 v4, s30, v1")
        else:
            e("s_lshl_b32 s29, s25, 10")
            e("v_add_u32 v4, s29, v1")
            for n in range(3):
                e(f"v_add_u32 v5, {(2048*n - 32) & 0xffffffff:#x}, v4")
                e(f"v_add_u32 v6, {(2048*n - 16) & 0xffffffff:#x}, v4")
                e(f"buffer_load_dwordx4 v[{16+8*n}:{19+8*n}], v5, s[32:35], 0 offen")
                e(f"buffer_load_dwordx4 v[{20+8*n}:{23+8*n}], v6, s[32:35], 0 offen")
    if not KLATE: kloads()
    if PRIOB: e(f"s_setprio {int(os.environ.get('PRIOB2','0'))}")
    e("s_waitcnt vmcnt(%d)" % (0 if KLATE else (3 if KD else 7)))
    stamp(e, 1, 13)
    if KLATE: kloads()
    if BSTOP == 1: e('s_waitcnt vmcnt(0) lgkmcnt(0)'); e('s_endpgm')
    if PF & 2:
        srd(e, 52, 58, 1792*1024)
        e("v_lshlrev_b32 v2, 7, v0")
        e("buffer_load_dword v12, v2, s[52:55], s21 offen")
        e("s_add_u32 s21, s21, %d" % (128*8192))
        e("buffer_load_dword v12, v2, s[52:55], s21 offen")
    pc = prep_compute()
    stamp(e, 9, 13)
    for ins in pc[:-2]: e(ins)
    stamp(e, 10, 13)
    if UT:
        UST, RS = 59392, 144
        P = 128
        e(f"v_mul_u32_u24 v{P+16}, {2*RS}, v{P+1}")
        e(f"v_lshlrev_b32 v{P+17}, 4, v{P+2}")
        e(f"v_sub_u32 v{P+16}, v{P+16}, v{P+17}")
        e(f"v_add_u32 v{P+16}, 112, v{P+16}")
        e(f"ds_write_b128 v{P+16}, v[{P+104}:{P+107}] offset:{UST}")
        e(f"ds_write_b128 v{P+16}, v[{P+108}:{P+111}] offset:{UST + RS}")
        e(f"v_lshrrev_b32 v{P+17}, 3, v0")
        e("s_lshl_b32 s97, s20, 4")
        e(f"v_add_u32 v{P+17}, s97, v{P+17}")
        e(f"v_and_b32 v{P+18}, 7, v0")
        e(f"v_lshlrev_b32 v{P+18}, 4, v{P+18}")
        e(f"v_mul_u32_u24 v{P+19}, {RS}, v{P+17}")
        e(f"v_add_u32 v{P+19}, v{P+19}, v{P+18}")
        e("s_and_b32 s97, s2, 7")
        e("s_lshl_b32 s97, s97, 18")
        e("s_lshr_b32 s98, s2, 3")
        e("s_lshl_b32 s98, s98, 7")
        e("s_sub_u32 s97, s97, s98")
        e("s_add_u32 s97, s97, 3968")
        e(f"v_lshl_add_u32 v{P+20}, v{P+17}, 12, v{P+18}")
        e("s_waitcnt lgkmcnt(0)")
        e("s_barrier")
        e(f"ds_read_b128 v[{P+104}:{P+107}], v{P+19} offset:{UST}")
        e(f"ds_read_b128 v[{P+108}:{P+111}], v{P+19} offset:{UST + 8*RS}")
        e("s_add_u32 s98, s97, 32768")
        e("s_waitcnt lgkmcnt(1)")
        e(f"buffer_store_dwordx4 v[{P+104}:{P+107}], v{P+20}, s[76:79], s97 offen sc1")
        e("s_waitcnt lgkmcnt(0)")
        e(f"buffer_store_dwordx4 v[{P+108}:{P+111}], v{P+20}, s[76:79], s98 offen sc1")
    else:
        for ins in pc[-2:]: e(ins)
    stamp(e, 11, 13)
    if not GL: prep_gate(e)
    stamp(e, 2, 13)
    if BSTOP == 2: e('s_waitcnt vmcnt(0) lgkmcnt(0)'); e('s_endpgm')
    for i in range(4): e(f"v_mov_b32 v{8+i}, 0")
    e(f"v_add_u32 v7, s28, v1")
    e("v_cmp_gt_u32 vcc, 32, v0")
    e("s_and_saveexec_b64 s[52:53], vcc")
    e(f"ds_write_b128 v7, v[8:11] offset:{UR+4096}")
    e("s_mov_b64 exec, s[52:53]")
    e("v_add_u32 v7, s29, v7")
    e("s_waitcnt vmcnt(0) lgkmcnt(0)")
    e("s_barrier")
    if KD:
        for n in range(3):
            e(f"ds_read_b128 v[{16+8*n}:{19+8*n}], v4 offset:{2048*n}")
            e(f"ds_read_b128 v[{20+8*n}:{23+8*n}], v4 offset:{2048*n + 16}")
    e("s_cmp_lg_u32 s20, 0")
    e("s_cbranch_scc1 B_NOSIG")
    get_nonce(e, "B_N1", 48, 14, 54)
    e("s_lshl_b32 s54, s2, 7")
    e(f"s_add_u32 s54, s54, {F_U}")
    e("v_mov_b32 v8, s54")
    e("s_mov_b64 exec, 1")
    e(f"buffer_store_dwordx2 v[14:15], v8, s[60:63], 0 offen sc1")
    e("s_mov_b64 exec, -1")
    e.lab("B_NOSIG")
    if GL: prep_gate(e)
    def touches():
        if PF & 16:
            srd(e, 52, 58, 1792*1024)
            e("v_lshlrev_b32 v2, 7, v0")
            e("buffer_load_dword v200, v2, s[52:55], s21 offen")
            e("s_add_u32 s21, s21, %d" % (128*8192))
            e("buffer_load_dword v200, v2, s[52:55], s21 offen")
    if not PFD: touches()
    if KD: e("s_waitcnt lgkmcnt(0)")
    stamp(e, 3, 13)
    if BSTOP == 3: e('s_waitcnt vmcnt(0) lgkmcnt(0)'); e('s_endpgm')
    for n in range(3):
        b = 16 + 8*n
        if n == 2:
            e("s_lshl_b32 s54, s25, 6")
            e("v_add_u32 v12, s54, v0")
            e("v_cmp_gt_u32 vcc, 4, v12")
            e("s_and_saveexec_b64 s[52:53], vcc")
            e("s_cbranch_execz CV_SKIPK")
        for i in range(5):
            e(f"v_alignbit_b32 v{48+i}, v{b+i+1}, v{b+i}, 16")
        for i in range(4):
            e(f"v_mov_b32 v{56+i}, v{49+i}")
            e(f"v_mov_b32 v{60+i}, v{b+1+i}")
        o = 2048*n
        e(f"ds_write_b128 v7, v[48:51] offset:{KC + 0*4160 + o}")
        e(f"ds_write_b128 v7, v[60:63] offset:{KC + 1*4160 + o}")
        e(f"ds_write_b128 v7, v[56:59] offset:{KC + 2*4160 + o}")
        e(f"ds_write_b128 v7, v[{b+2}:{b+5}] offset:{KC + 3*4160 + o}")
        if n == 2:
            e.lab("CV_SKIPK")
            e("s_mov_b64 exec, s[52:53]")
    e("v_and_b32 v4, 15, v0")
    e("v_lshrrev_b32 v5, 4, v0")
    e("v_and_b32 v6, 3, v0")
    e("s_movk_i32 s54, 4160")
    e("v_mul_lo_u32 v6, v6, s54")
    e("v_lshl_add_u32 v6, v5, 4, v6")
    e("v_and_b32 v8, 12, v0")
    e("v_lshl_add_u32 v6, v8, 1, v6")
    e("s_lshl_b32 s54, s25, 8")
    e("s_add_u32 s54, s54, s28")
    e("v_add_u32 v6, s54, v6")
    e("v_lshlrev_b32 v8, 5, v4")
    e("v_lshlrev_b32 v9, 4, v5")
    e("v_sub_u32 v8, v9, v8")
    e(f"s_add_u32 s54, s54, {UR + 4064 - 3584}")
    e("v_add_u32 v8, s54, v8")
    ACC = 224
    for i in range(32): e(f"v_mov_b32 v{ACC+i}, 0")
    e("v_and_b32 v10, 31, v0")
    e("v_lshlrev_b32 v10, 3, v10")
    e("s_and_b32 s54, s2, 7")
    e("v_add_u32 v10, s54, v10")
    e("v_lshlrev_b32 v10, 7, v10")
    e(f"v_add_u32 v10, {F_U}, v10")
    if PFD:
        for _ in range(PFD): e("s_sleep 16")
        touches()
    e("s_cmp_lg_u32 s20, 0")
    e("s_cbranch_scc1 B_UG")
    e.lab("B_UP")
    e(f"buffer_load_dwordx2 v[48:49], v10, s[60:63], 0 offen sc1")
    e("s_waitcnt vmcnt(0)")
    e("v_cmp_ne_u32 vcc, v48, v14")
    e("v_cmp_ne_u32 s[54:55], v49, v15")
    e("s_nop 1")
    e("s_or_b64 vcc, vcc, s[54:55]")
    e("s_cmp_eq_u64 vcc, 0")
    e("s_cbranch_scc1 B_UG")
    e(f"s_sleep {PSL}")
    e("s_branch B_UP")
    e.lab("B_UG")
    if PRIOB3 >= 0: e(f"s_setprio {PRIOB3}")
    e("s_barrier")
    stamp(e, 4, 13)
    if BSTOP == 4: e('s_waitcnt vmcnt(0) lgkmcnt(0)'); e('s_endpgm')
    e("s_lshl_b32 s29, s25, 11")
    e("s_add_u32 s30, s27, s29")
    e("s_add_u32 s31, s28, s29")
    e(f"s_add_u32 m0, s31, {UR}")
    e("s_nop 0")
    e("buffer_load_dwordx4 v1, s[36:39], s30 offen sc1 lds")
    e("buffer_load_dwordx4 v1, s[36:39], s30 offen offset:1024 sc1 lds")
    e("s_waitcnt vmcnt(0) lgkmcnt(0)")
    e("s_barrier")
    stamp(e, 5, 13)
    if BSTOP == 5: e('s_waitcnt vmcnt(0) lgkmcnt(0)'); e('s_endpgm')
    SETS = [64, 128]
    def loads_l(rr):
        b = SETS[rr & 1]
        L = []
        for a in range(8):
            L.append(f"ds_read_b128 v[{b+32+4*a}:{b+35+4*a}], v8 offset:{512*(7-a) + 64*rr}")
            for h in range(2):
                L.append(f"ds_read_b64 v[{b+4*a+2*h}:{b+4*a+2*h+1}], v6 offset:{64*rr + 512*a + 8*h}")
        return L
    for x in loads_l(0): e(x)
    for rr in range(4):
        b = SETS[rr & 1]
        e("s_waitcnt lgkmcnt(0)")
        nxt = loads_l(rr + 1) if rr < 3 else []
        n = 0
        for s in range(8):
            for a in range(s + 1):
                bb = s - a
                d = ACC + 4*s
                e(f"v_mfma_f32_16x16x32_bf16 v[{d}:{d+3}], v[{b+4*a}:{b+4*a+3}], v[{b+32+4*bb}:{b+35+4*bb}], v[{d}:{d+3}]")
                if nxt: e(nxt.pop(0))
        assert not nxt
    e("s_nop 7")
    stamp(e, 6, 13)
    if BSTOP == 6: e('s_waitcnt vmcnt(0) lgkmcnt(0)'); e('s_endpgm')
    e(f"s_add_u32 s54, s28, {RED}")
    e("v_add_u32 v9, s54, v1")
    e("s_cmp_eq_u32 s25, 0")
    e("s_cbranch_scc1 CV_X0")
    for nt in range(4):
        e(f"ds_write_b128 v9, v[{ACC+4*nt}:{ACC+4*nt+3}] offset:{1024*nt}")
    e("s_waitcnt lgkmcnt(0)")
    e("s_barrier")
    for nt in range(4):
        e(f"ds_read_b128 v[{64+4*nt}:{67+4*nt}], v9 offset:{1024*(4+nt)}")
    e("s_waitcnt lgkmcnt(0)")
    for i in range(16):
        e(f"v_add_f32 v{64+i}, v{64+i}, v{ACC+16+i}")
    e("s_branch CV_FIN")
    e.lab("CV_X0")
    for nt in range(4):
        e(f"ds_write_b128 v9, v[{ACC+16+4*nt}:{ACC+16+4*nt+3}] offset:{1024*(4+nt)}")
    e("s_waitcnt lgkmcnt(0)")
    e("s_barrier")
    for nt in range(4):
        e(f"ds_read_b128 v[{64+4*nt}:{67+4*nt}], v9 offset:{1024*nt}")
    e("s_waitcnt lgkmcnt(0)")
    for i in range(16):
        e(f"v_add_f32 v{64+i}, v{64+i}, v{ACC+i}")
    e.lab("CV_FIN")
    e("v_lshlrev_b32 v10, 4, v4")
    e("v_lshl_add_u32 v10, v5, 2, v10")
    e("s_lshl_b32 s54, s25, 10")
    e("v_add_u32 v10, s54, v10")
    e(f"s_add_u32 s55, s28, {UR + 2*2044 - 512*3}")
    e("v_lshlrev_b32 v11, 1, v10")
    e("v_sub_u32 v11, s55, v11")
    for t in range(4):
        e(f"ds_read_b64 v[{80+2*t}:{81+2*t}], v11 offset:{512*(3-t)}")
    e("v_lshlrev_b32 v3, 16, v3")
    e("s_mov_b32 s56, 0xffff0000")
    e("v_lshlrev_b32 v12, 1, v10")
    e("v_add_u32 v12, s27, v12")
    e("s_waitcnt lgkmcnt(0)")
    for t in range(4):
        y = 64 + 4*t; kq = 80 + 2*t
        e(f"v_and_b32 v96, s56, v{kq+1}")
        e(f"v_lshlrev_b32 v97, 16, v{kq+1}")
        e(f"v_and_b32 v98, s56, v{kq}")
        e(f"v_lshlrev_b32 v99, 16, v{kq}")
        for i in range(4): e(f"v_mul_f32 v{96+i}, v{96+i}, v3")
        e("v_cvt_pk_bf16_f32 v100, v96, v97")
        e("v_cvt_pk_bf16_f32 v101, v98, v99")
        e(f"v_cvt_pk_bf16_f32 v102, v{y}, v{y+1}")
        e(f"v_cvt_pk_bf16_f32 v103, v{y+2}, v{y+3}")
        for i in range(2):
            e(f"v_lshlrev_b32 v{96+2*i}, 16, v{100+i}")
            e(f"v_and_b32 v{97+2*i}, s56, v{100+i}")
            e(f"v_lshlrev_b32 v{104+2*i}, 16, v{102+i}")
            e(f"v_and_b32 v{105+2*i}, s56, v{102+i}")
        for i in range(4): e(f"v_add_f32 v{96+i}, v{96+i}, v{104+i}")
        e(f"v_cvt_pk_bf16_f32 v{108+2*t}, v96, v97")
        e(f"v_cvt_pk_bf16_f32 v{109+2*t}, v98, v99")
        e(f"buffer_store_dwordx2 v[{108+2*t}:{109+2*t}], v12, s[40:43], 0 offen offset:{512*t} sc1")
    stamp(e, 7, 13)
    if BSTOP == 7: e('s_waitcnt vmcnt(0) lgkmcnt(0)'); e('s_endpgm')
    e("s_waitcnt vmcnt(0)")
    stamp(e, 8, 13)
    if BSTOP == 8: e('s_waitcnt vmcnt(0) lgkmcnt(0)'); e('s_endpgm')
    stamp_store(e, 13, 1, 18)
    e("s_barrier")
    e("s_cmp_lg_u32 s20, 0")
    e("s_cbranch_scc1 F_END")
    e("s_and_b32 s54, s2, 7")
    e("s_lshl_b32 s54, s54, 5")
    e("s_lshr_b32 s55, s2, 3")
    e("s_add_u32 s54, s54, s55")
    e("s_lshl_b32 s54, s54, 7")
    e(f"s_add_u32 s54, s54, {F_Z}")
    e("v_mov_b32 v1, s54")
    e("s_mov_b64 exec, 1")
    e("buffer_store_dwordx2 v[14:15], v1, s[60:63], 0 offen sc1")
    e("s_endpgm")


def gen_fused(e):
    e.lab("fused_kernel")
    if PST and PROF: e("s_memrealtime s[38:39]")
    e("s_cmp_ge_u32 s2, 512")
    e("s_cbranch_scc1 F_END")
    e("v_lshrrev_b32 v1, 6, v0")
    e("v_and_b32 v0, 63, v0")
    e("s_nop 0")
    e("v_readfirstlane_b32 s20, v1")
    if SWAP: e("s_xor_b32 s2, s2, 256")
    e("s_cmp_ge_u32 s2, 256")
    e("s_cbranch_scc1 F_B")
    gen_typeA(e)
    e.lab("F_B")
    gen_typeB(e)
    e.lab("F_END")
    e("s_endpgm")

def kdesc(name, vgpr, sgpr=96):
    return f""".amdhsa_kernel {name}
  .amdhsa_next_free_vgpr {vgpr}
  .amdhsa_next_free_sgpr {sgpr}
  .amdhsa_accum_offset {(vgpr+3)//4*4}
  .amdhsa_group_segment_fixed_size 0
  .amdhsa_kernarg_size 104
  .amdhsa_user_sgpr_count 2
  .amdhsa_user_sgpr_kernarg_segment_ptr 1
  .amdhsa_system_sgpr_workgroup_id_x 1
.end_amdhsa_kernel
"""

def main(out):
    e = E()
    hdr = "; @launch kernel=fused_kernel grid=(512,1,1) block=(256,1,1) lds=81920\n"
    hdr += '.amdgcn_target "amdgcn-amd-amdhsa--gfx950"\n.text\n'
    body = ".globl fused_kernel\n.p2align 8\n.type fused_kernel,@function\n"
    gen_fused(e)
    body += e.text()
    ro = '.section .rodata,"a"\n.p2align 6\n' + kdesc("fused_kernel", 256, 102)
    open(out, "w").write(hdr + body + ro)

if __name__ == "__main__":
    main(sys.argv[1] if len(sys.argv) > 1 else "k.s")
```
